```python
import torch

def _softmax(x, axis=-1):
    return torch.softmax(x, dim=axis)
def _gelu(x):
    return torch.nn.functional.gelu(x, approximate="tanh")
def _silu(x):
    return torch.nn.functional.silu(x)
def _sigmoid(x):
    return torch.sigmoid(x)
def _layernorm(x, axis=-1, eps=1e-5):
    m = x.mean(dim=axis, keepdim=True)
    v = x.var(dim=axis, keepdim=True, unbiased=False)
    return (x - m) / torch.sqrt(v + eps)
def _scatter_add(tgt, idx, src, axis=0):
    return tgt.clone().index_add_(axis, idx, src)
def _segment_sum(src, seg, n):
    out = torch.zeros((n,) + src.shape[1:], dtype=src.dtype)
    return out.index_add_(0, seg, src)
def _pad(x, pw):
    flat = tuple(v for pair in reversed(pw) for v in pair)
    return torch.nn.functional.pad(x, flat)

kernel_name = 'standalone__gqa_block_cached__near_ridge'

def setup_inputs():

    _w = (lambda a: (lambda t: t.to(torch.bfloat16) if t.is_floating_point() else t)(torch.as_tensor(a)))
    B, Sq, D = 8, 224, 512
    Hq, Hkv, Sk, Dh = 32, 32, 512, 128
    assert Hq % Hkv == 0, (Hq, Hkv)
    return {
        "x": _w((lambda *s: torch.randn(*s, dtype=torch.bfloat16) * 0.8)(B, Sq, D)),
        "k_cache": _w((lambda *s: torch.randn(*s, dtype=torch.bfloat16) * 0.8)(B, Hkv, Sk, Dh)),
        "v_cache": _w((lambda *s: torch.randn(*s, dtype=torch.bfloat16) * 0.05)(B, Hkv, Sk, Dh)),
        "wq": _w((lambda *s: torch.randn(*s, dtype=torch.bfloat16) * 0.8)(D, Hq * Dh) * (D ** -0.5)),
        "wo": _w((lambda *s: torch.randn(*s, dtype=torch.bfloat16) * 0.05)(Hq * Dh, D) * ((Hq * Dh) ** -0.5)),
    }

def reference(x, k_cache, v_cache, wq, wo):
    B, Sq, D = x.shape
    Hq, Dh = 32, 128
    Hkv = k_cache.shape[1]
    rep = Hq // Hkv
    q = (lambda x, *d: x.permute(*d))((x @ wq).reshape(B, Sq, Hq, Dh), 0, 2, 1, 3)
    k = (lambda x, n, axis: torch.repeat_interleave(x, n, dim=axis))(k_cache, rep, axis=1)
    v = (lambda x, n, axis: torch.repeat_interleave(x, n, dim=axis))(v_cache, rep, axis=1)
    scores = torch.einsum("bhqd,bhkd->bhqk", q, k) * (Dh ** -0.5)
    p = _softmax(scores, axis=-1)
    o = torch.einsum("bhqk,bhkd->bhqd", p, v)
    return (lambda x, *d: x.permute(*d))(o, 0, 2, 1, 3).reshape(B, Sq, Hq * Dh) @ wo
```

```python
KN = "standalone__gqa_block_cached__near_ridge_kernel"
STAMP_OFF = 200 << 20

class Asm:
    def __init__(self):
        self.lines = []
        self.nstamp = 0
        self.stamp_base = None
        self.max_stamps = 0
    def __call__(self, s):
        for l in s.split("\n"):
            l = l.strip()
            if l: self.lines.append("    " + l)
    def label(self, l): self.lines.append(l + ":")
    def raw(self, l): self.lines.append(l)
    def comment(self, c): self.lines.append("    ; " + c)
    def stamps_init(self, base, n):
        self.stamp_base = base; self.max_stamps = n; self.nstamp = 0
    def stamp(self, idx=None, wait=True):
        if self.stamp_base is None: return
        i = self.nstamp if idx is None else idx
        assert i < self.max_stamps
        b = self.stamp_base + 4 * i
        self("s_memrealtime s[%d:%d]" % (b, b + 1))
        self("s_memtime s[%d:%d]" % (b + 2, b + 3))
        if wait: self("s_waitcnt lgkmcnt(0)")
        self.nstamp = i + 1
    def stamps_flush(self, ws_lo, wg_sreg, wave_sreg, tmp_s, v0=0, nwave=4):
        if self.stamp_base is None: return
        n = self.max_stamps
        self("s_waitcnt vmcnt(0) lgkmcnt(0)")
        self("s_mul_i32 s%d, s%d, %d" % (tmp_s, wg_sreg, nwave))
        self("s_add_u32 s%d, s%d, s%d" % (tmp_s, tmp_s, wave_sreg))
        self("s_mul_i32 s%d, s%d, %d" % (tmp_s, tmp_s, 2 * n * 8))
        self("s_add_u32 s%d, s%d, 0x%x" % (tmp_s, tmp_s, STAMP_OFF))
        self("s_mov_b64 exec, 1")
        self("v_mov_b32 v%d, s%d" % (v0 + 2, tmp_s))
        for i in range(n):
            b = self.stamp_base + 4 * i
            self("v_mov_b32 v%d, s%d" % (v0, b)); self("v_mov_b32 v%d, s%d" % (v0 + 1, b + 1))
            self("global_store_dwordx2 v%d, v[%d:%d], s[%d:%d] offset:%d" % (v0 + 2, v0, v0 + 1, ws_lo, ws_lo + 1, 8 * i))
            self("s_nop 1")
            self("v_mov_b32 v%d, s%d" % (v0, b + 2)); self("v_mov_b32 v%d, s%d" % (v0 + 1, b + 3))
            self("global_store_dwordx2 v%d, v[%d:%d], s[%d:%d] offset:%d" % (v0 + 2, v0, v0 + 1, ws_lo, ws_lo + 1, 8 * (n + i)))
            self("s_nop 1")
        self("s_waitcnt vmcnt(0)")
    def text(self): return "\n".join(self.lines) + "\n"

def kd(name, vgpr=512, accum=256, sgpr=102):
    return """.amdhsa_kernel %s
  .amdhsa_next_free_vgpr %d
  .amdhsa_next_free_sgpr %d
  .amdhsa_accum_offset %d
  .amdhsa_group_segment_fixed_size 0
  .amdhsa_kernarg_size 64
  .amdhsa_user_sgpr_count 2
  .amdhsa_user_sgpr_kernarg_segment_ptr 1
  .amdhsa_system_sgpr_workgroup_id_x 1
  .amdhsa_float_denorm_mode_32 3
.end_amdhsa_kernel
""" % (name, vgpr, sgpr, accum)

def wrap(kernels, header=""):
    out = header
    if len(kernels) == 1 and kernels[0][0] == KN:
        n, b, g, blk, lds, vg, ac = kernels[0]
        out += "; @launch grid=(%d,1,1) block=(%d,1,1) lds=%d\n" % (g, blk, lds)
    else:
        for n, b, g, blk, lds, vg, ac in kernels:
            out += "; @launch kernel=%s grid=(%d,1,1) block=(%d,1,1) lds=%d\n" % (n, g, blk, lds)
    out += '.amdgcn_target "amdgcn-amd-amdhsa--gfx950"\n.text\n'
    seen = []
    for n, b, g, blk, lds, vg, ac in kernels:
        if n in seen: continue
        seen.append(n)
        out += ".globl %s\n.p2align 8\n.type %s,@function\n%s:\n%s" % (n, n, n, b)
    out += '.section .rodata,"a"\n'
    seen = []
    for n, b, g, blk, lds, vg, ac in kernels:
        if n in seen: continue
        seen.append(n)
        out += ".p2align 6\n" + kd(n, vg, ac)
    return out

def srd(a, d, base, nbytes):
    a("s_mov_b32 s%d, s%d" % (d, base))
    a("s_and_b32 s%d, s%d, 0xffff" % (d + 1, base + 1))
    a("s_mov_b32 s%d, 0x%x" % (d + 2, nbytes))
    a("s_mov_b32 s%d, 0x20000" % (d + 3))
```

```python
import re

def regs(tok):
    tok = tok.strip()
    tok = tok.lstrip("-")
    if tok.startswith("abs("): tok = tok[4:-1]
    if tok.startswith("|"): tok = tok.strip("|")
    m = re.fullmatch(r"([vas])\[(\d+):(\d+)\]", tok)
    if m: return {(m.group(1), i) for i in range(int(m.group(2)), int(m.group(3)) + 1)}
    m = re.fullmatch(r"([vas])(\d+)", tok)
    if m: return {(m.group(1), int(m.group(2)))}
    if tok == "vcc": return {("s", "vcc")}
    if tok == "m0": return {("s", "m0")}
    if tok == "exec": return {("s", "exec")}
    return set()

TRANS = ("v_exp_f32", "v_log_f32", "v_rcp_f32", "v_rsq_f32", "v_sqrt_f32")

class I:
    __slots__ = ("t", "op", "ops", "kind", "w", "r", "A", "B", "C", "tag", "need", "lds")
    def __init__(self, text, tag=None):
        self.t = text; self.tag = tag; self.need = None
        s = text.split(";")[0].strip()
        if s.endswith(":") or s.startswith("."):
            self.op = "label"; self.kind = "label"; self.w = set(); self.r = set(); self.ops = []; return
        p = s.split(None, 1); self.op = p[0]
        rest = p[1] if len(p) > 1 else ""
        rest = re.sub(r"\b(op_sel|op_sel_hi|neg_lo|neg_hi|quad_perm):\[[^\]]*\]", "", rest)
        rest = re.sub(r"hwreg\([^)]*\)", "hwreg", rest)
        ops = [o.strip() for o in rest.split(",")] if rest else []
        mods = []
        if ops:
            last = ops[-1].split(); ops[-1] = last[0] if last else ""; mods = last[1:]
        self.ops = ops; op = self.op
        R = lambda xs: set().union(*[regs(x) for x in xs]) if xs else set()
        self.A = self.B = self.C = set(); self.lds = False
        if op.startswith("v_mfma"):
            self.kind = "mfma"; self.w = regs(ops[0]); self.A = regs(ops[1]); self.B = regs(ops[2]); self.C = regs(ops[3]); self.r = self.A | self.B | self.C
        elif op.startswith("ds_read"):
            self.kind = "ds"; self.w = regs(ops[0]); self.r = R(ops[1:])
        elif op.startswith("ds_write"):
            self.kind = "ds"; self.w = set(); self.r = R(ops)
        elif op.startswith("buffer_load"):
            self.kind = "vm"
            if "lds" in mods: self.w = set(); self.r = R(ops) | {("s", "m0")}; self.lds = True
            else: self.w = regs(ops[0]); self.r = R(ops[1:])
        elif op.startswith("global_load"):
            self.kind = "vm"; self.w = regs(ops[0]); self.r = R(ops[1:])
        elif op.startswith("buffer_store") or op.startswith("global_store") or op.startswith("global_atomic") or op.startswith("buffer_atomic"):
            self.kind = "vm"; self.w = set(); self.r = R(ops)
        elif op.startswith("buffer_"):
            self.kind = "vm"; self.w = set(); self.r = set()
        elif op.startswith("v_"):
            self.kind = "valu"
            if op.startswith("v_permlane"): self.w = R(ops[:2]); self.r = R(ops[:2])
            elif op.startswith("v_cmp"): self.w = regs(ops[0]); self.r = R(ops[1:])
            elif op.startswith("v_fmac") or op.startswith("v_dot2c") or op.startswith("v_writelane"): self.w = regs(ops[0]); self.r = R(ops)
            elif op.startswith("v_cndmask") and len(ops) == 4: self.w = regs(ops[0]); self.r = R(ops[1:])
            else: self.w = regs(ops[0]); self.r = R(ops[1:])
        elif op in ("s_waitcnt", "s_nop", "s_barrier", "s_endpgm", "s_sleep", "s_setprio") or op.startswith("s_cbranch") or op == "s_branch":
            self.kind = "ctl"; self.w = set(); self.r = set()
        elif op.startswith("s_load") or op.startswith("s_mem"):
            self.kind = "smem"; self.w = regs(ops[0]); self.r = R(ops[1:])
        elif op.startswith("s_cmp") or op.startswith("s_bitcmp"):
            self.kind = "salu"; self.w = set(); self.r = R(ops)
        elif op == "WAIT":
            self.kind = "pseudo"; self.w = set(); self.r = set()
        else:
            assert op.startswith("s_"), text
            self.kind = "salu"; self.w = regs(ops[0]); self.r = R(ops[1:])
    def states(self):
        if self.kind in ("label", "pseudo"): return 0
        if self.op == "s_nop": return int(self.ops[0]) + 1
        return 1

def W(vm=None, lgkm0=False):
    i = I("WAIT"); i.need = (vm, lgkm0); return i

def parse_wait(i):
    vm = lg = None
    m = re.search(r"vmcnt\((\d+)\)", i.t); vm = int(m.group(1)) if m else None
    m = re.search(r"lgkmcnt\((\d+)\)", i.t); lg = int(m.group(1)) if m else None
    return vm, lg

def insert_waits(ins, hoist=True):
    out = []
    ds = []
    vm = []
    last_mfma = -1
    def issued_after(lst, k, pos):
        return sum(1 for (p, x) in lst[k + 1:] if p < pos)
    def shift(pos):
        nonlocal last_mfma
        for lst in (ds, vm):
            for n in range(len(lst)):
                if lst[n][0] >= pos: lst[n] = (lst[n][0] + 1, lst[n][1])
    def add_wait(lst, k, name, mx, can_hoist):
        pos = len(out)
        if can_hoist and hoist and last_mfma >= 0 and lst[k][0] < last_mfma:
            if all(x.kind not in ("label",) and not (x.kind == "ctl" and x.op != "s_waitcnt" and x.op != "s_nop") for x in out[last_mfma + 1:]):
                pos = last_mfma + 1
        n = min(issued_after(lst, k, pos), mx)
        if pos < len(out) and out[pos].op == "s_waitcnt" and out[pos].tag == "auto":
            v, l = parse_wait(out[pos])
            if name == "vmcnt": v = n if v is None else min(v, n)
            else: l = n if l is None else min(l, n)
            out[pos] = I("s_waitcnt" + (" vmcnt(%d)" % v if v is not None else "") + (" lgkmcnt(%d)" % l if l is not None else ""), "auto")
        elif pos == len(out) and out and out[-1].op == "s_waitcnt" and out[-1].tag == "auto":
            v, l = parse_wait(out[-1])
            if name == "vmcnt": v = n if v is None else min(v, n)
            else: l = n if l is None else min(l, n)
            out[-1] = I("s_waitcnt" + (" vmcnt(%d)" % v if v is not None else "") + (" lgkmcnt(%d)" % l if l is not None else ""), "auto")
        else:
            shift(pos)
            out.insert(pos, I("s_waitcnt %s(%d)" % (name, n), "auto"))
        before = [j for j, (p, x) in enumerate(lst) if p < pos + 1]
        done = len(before) - n
        del lst[:max(done, k + 1)]
    for i in ins:
        if i.kind == "pseudo":
            tags, l0 = i.need
            if tags is not None:
                if not isinstance(tags, (list, tuple)): tags = [tags]
                ks = [k for k, (p, x) in enumerate(vm) if x.tag in tags or "all" in tags]
                if ks: add_wait(vm, max(ks), "vmcnt", 63, False)
            if l0 and ds: add_wait(ds, len(ds) - 1, "lgkmcnt", 15, False)
            continue
        touch = i.r | i.w
        if touch:
            ks = [k for k, (p, x) in enumerate(ds) if x.w & touch]
            if ks: add_wait(ds, max(ks), "lgkmcnt", 15, True)
            ks = [k for k, (p, x) in enumerate(vm) if x.w & touch]
            if ks: add_wait(vm, max(ks), "vmcnt", 63, True)
        if i.op == "s_waitcnt":
            v, l = parse_wait(i)
            if v is not None and len(vm) > v: del vm[:len(vm) - v]
            if l is not None and len(ds) > l: del ds[:len(ds) - l]
        out.append(i)
        if i.kind == "mfma": last_mfma = len(out) - 1
        if i.kind == "ds": ds.append((len(out) - 1, i))
        if i.kind == "vm":
            vm.append((len(out) - 1, i))
            assert len(vm) <= 63, "vmcnt overflow"
        if i.kind == "smem":
            assert not ds or True
    return out

def passes(i):
    return 8 if "32x32" in i.op else 4

def need_states(p, c):
    n = 0
    vg = lambda s: {x for x in s if x[0] in "va"}
    sg = lambda s: {x for x in s if x[0] == "s"}
    if p.kind == "valu":
        if c.kind == "mfma" and vg(p.w) & c.r: n = max(n, 2)
        if p.op.replace("_e32", "").replace("_e64", "") in TRANS and c.kind == "valu" and vg(p.w) & c.r: n = max(n, 1)
        if c.op.startswith("v_permlane") and vg(p.w) & c.r: n = max(n, 2)
        if (c.op.startswith("v_readfirstlane") or c.op.startswith("v_readlane")) and vg(p.w) & c.r: n = max(n, 1)
        if c.kind == "valu" and "dpp" in c.t or "row_" in c.t or "quad_perm" in c.t:
            if vg(p.w) & c.r: n = max(n, 2)
        if sg(p.w):
            if c.kind == "vm" and sg(p.w) & c.r: n = max(n, 5)
            if c.kind == "valu" and sg(p.w) & c.r: n = max(n, 2)
            if c.kind == "valu" and c.op.startswith("v_cndmask") and ("s", "vcc") in p.w: n = max(n, 2)
            if c.kind in ("salu",) and sg(p.w) & c.r: n = max(n, 1)
    if p.kind == "mfma":
        k = passes(p)
        d = p.w
        if c.kind == "mfma":
            if d & (c.A | c.B): n = max(n, k + 4)
            if d & c.C and c.C != d: n = max(n, k + 2)
            if d & c.w and c.w != d: n = max(n, k + 2)
        elif c.kind in ("valu", "vm", "ds"):
            if d & (c.r | c.w): n = max(n, k + 4)
            if c.kind == "valu" and p.C & c.w: n = max(n, k - 1)
    if p.kind == "salu" and ("s", "m0") in p.w and c.kind == "vm" and c.lds: n = max(n, 1)
    if p.kind == "vm" and ("dwordx4" in p.op or "dwordx3" in p.op) and "store" in p.op:
        if vg(p.r) & c.w: n = max(n, 2)
    return n

def fix_hazards(ins, verbose=False):
    out = []; added = 0
    for c in ins:
        if c.kind not in ("label", "pseudo"):
            dist = 0; worst = 0; who = None
            for p in reversed(out[-24:]):
                if dist >= 12: break
                if p.kind != "label":
                    n = need_states(p, c) - dist
                    if n > worst: worst = n; who = p
                dist += p.states()
            if worst > 0:
                if verbose: print("hazard pad %d: [%s] -> [%s]" % (worst, who.t, c.t))
                out.append(I("s_nop %d" % (worst - 1), "haz")); added += worst
        out.append(c)
    return out, added

class Gaps:
    def __init__(self):
        self.m = []; self.pre = []; self.mem = []; self.val = []; self.head = []
    def mfma(self, text):
        self.m.append(I(text)); self.pre.append([]); self.mem.append([]); self.val.append([]); return len(self.m) - 1
    def n(self): return len(self.m)
    def cost(self, g):
        c = 4 * len(self.mem[g])
        for v in self.val[g]: c += 0 if v.kind == "label" else 8 if v.op in TRANS else 4
        return c
    def flatten(self):
        out = list(self.head)
        for k in range(len(self.m)):
            out.append(self.m[k]); out += self.pre[k]; out += self.mem[k]; out += self.val[k]
        return out
    def est(self):
        return sum(max(16, 8 + self.cost(g) + 4 * max(0, len(self.pre[g]) - 1)) for g in range(len(self.m)))
```

```python
import sys, math, struct
from asmlib import Asm, wrap, KN, STAMP_OFF
from stream import *

MF = "v_mfma_f32_16x16x32_bf16"
def vr(b, n=4): return "v[%d:%d]" % (b, b + n - 1)
def ar(b, n=4): return "a[%d:%d]" % (b, b + n - 1)
def sr(b, n=4): return "s[%d:%d]" % (b, b + n - 1)
def f2u(x): return struct.unpack("<I", struct.pack("<f", x))[0]

S_WG, S_W = 2, 3
SRD_X, SRD_WQ, SRD_K, SRD_V, SRD_WO, SRD_WS, SRD_OUT, SRD_DBG = 20, 24, 28, 32, 36, 40, 44, 48
S_B, S_H, S_HG, S_CQ, S_E, S_ROT = 4, 5, 6, 7, 8, 9
S_XB, S_WB, S_KVB, S_WOB, S_LX, S_L4 = 10, 11, 12, 13, 14, 15
S_OB, S_PB = 16, 17
S_C0 = 52
S_SO = 54
S_T0, S_T1, S_T2, S_T3 = 55, 56, 57, 58
S_XCC, S_RETRY, S_FL = 59, 60, 61
S_KC = 62
S_SPIN = 63
SPIN_MAX = 1 << 20
STAMP0 = 64
V_OK, V_OV, V_OO = 8, 12, 14
V_L16, V_L0, V_POLL, V_SCR = 18, 19, 20, 21
V_AKX, V_AKY, V_AVX, V_AVY = 22, 26, 30, 38
V_T = 46
V_SX, V_SY = 56, 88
V_NEGM = 112
V_O = 128
V_OX, V_OW, V_AX, V_AW = 56, 60, 64, 68
A_Q, A_L, A_ONE, A_XF, A_RING = 0, 64, 80, 96, 192
NRING = 16
SL = lambda i: i * 16384
XS = lambda c: ((7 - c) % 3) * 28672
WS_ = lambda c: SL(6 + (7 - c) % 3)
KSL = lambda i: SL([9, 8, 7][i % 3])
VSL = lambda i: SL([5, 4, 6][i % 3])
WOSL = {(0, 0): SL(0), (0, 1): SL(1), (1, 0): SL(2), (1, 1): SL(3), (2, 0): SL(7), (2, 1): SL(6), (3, 0): SL(9), (3, 1): SL(8)}
K_WIN, V_WIN, WQ_WIN = SL(6), SL(4), SL(6)
QSCR = SL(2); OSCR = SL(5); LSCR = SL(8)
OB_OFF, FL_OFF, PB_OFF = 0, 16 << 20, 32 << 20
WS_BYTES = 256 << 20
ACT = (0, 1, 4, 5)

class Op:
    def __init__(self, ins, lo, hi, hard=None, pre=(), dep=None):
        self.i = ins; self.lo = lo; self.hi = hi; self.hard = hi if hard is None else hard; self.pre = list(pre); self.dep = dep; self.g = None; self.use = self.hard + 1

def schedule(G, L, D, X, C, name=""):
    n = G.n()
    for q in (L, D, X, C):
        for k in range(len(q) - 2, -1, -1):
            q[k].hi = min(q[k].hi, q[k + 1].hi - 1); q[k].hard = min(q[k].hard, q[k + 1].hard)
    ptr = {"L": 0, "D": 0, "X": 0, "C": 0}; Q = {"L": L, "D": D, "X": X, "C": C}
    lastD = [-5]
    def head(k):
        return Q[k][ptr[k]] if ptr[k] < len(Q[k]) else None
    def avail(o, g, strict=True):
        if o is None or o.lo > g: return False
        if o.dep is not None:
            for d in o.dep:
                if d.g is None or (strict and d.g >= g): return False
        return True
    def put(k, g):
        o = head(k); o.g = g; ptr[k] += 1
        if g < 0:
            G.head += o.pre + [o.i]; return
        if k in "LD":
            pre = list(o.pre)
            if k == "D":
                if len(pre) >= 2 and lastD[0] < g - 1 and g - 1 >= 0 and o.lo <= g - 1 and not G.pre[g - 1]:
                    G.pre[g - 1].append(pre.pop(0))
                lastD[0] = g
            if G.mem[g] and pre: G.mem[g] += pre + [o.i]
            else: G.pre[g] += pre; G.mem[g].append(o.i)
        else: G.val[g].append(o.i)
    over = 0
    for g in range(-1, n):
        if g >= 0:
            cands = [(head(k).hi, k) for k in "LDX" if avail(head(k), g)]
            if cands and G.cost(g) <= 0:
                put(min(cands)[1], g)
            while G.cost(g) <= 4:
                if avail(head("C"), g): put("C", g)
                elif avail(head("X"), g) and head("X").i.op not in TRANS: put("X", g)
                else: break
        if g < 0:
            while head("L") is not None and head("L").hi < 0 and head("L").lo < 0: put("L", g)
        ch = True
        while ch:
            ch = False
            for k in "LDXC":
                o = head(k)
                if o is not None and o.hard <= g:
                    assert avail(o, g, False), "%s: cannot meet hard deadline g=%d lo=%d %s" % (name, g, o.lo, o.i.t)
                    put(k, g); ch = True; over += g >= 0
    for k in "LDXC": assert head(k) is None, (name, k, head(k).i.t, head(k).lo, n)
    leads = sorted(o.use - o.g for o in L if o.g >= 0)
    sys.stderr.write("%s: mfma %d est %d cycles (floor %d), forced %d, lds leads min %s\n" % (name, n, G.est(), 16 * n, over, leads[:24]))

class Ring:
    def __init__(self): self.k = 0; self.free_at = [-1] * NRING
    def alloc(self, last_use):
        s = self.k % NRING; self.k += 1; lo = self.free_at[s]; self.free_at[s] = last_use
        return A_RING + 4 * s, lo
    def peek(self, ahead=0): return A_RING + 4 * ((self.k + ahead) % NRING)

def tile_dma(kind, idx, lds, lo, hi, nt=True):
    ops = []
    if kind == "K": srd, vo, base, off, fl = SRD_K, lambda j: V_OK + j, S_KVB, idx * 16384, " nt" if nt else ""
    elif kind == "V": srd, vo, base, off, fl = SRD_V, lambda j: V_OV + (j & 1), S_KVB, idx * 16384, " nt" if nt else ""
    elif kind == "WO": srd, vo, fl = SRD_WO, lambda j: V_OO + j, ""
    tag = "%s%s" % (kind, idx)
    for j in range(4):
        pre = []
        if j == 0:
            pre = [I("s_add_u32 m0, s%d, 0x%x" % (S_L4, lds))]
            if kind == "WO":
                hh, half = idx
                pre += [I("s_xor_b32 s%d, s%d, 0x%x" % (S_SO, S_WOB, (hh << 17) | (half << 16)))]
            else: pre += [I("s_add_u32 s%d, s%d, 0x%x" % (S_SO, base, off))]
        h = lo + (hi - lo) * (j + 1) // 4
        ops.append(Op(I("buffer_load_dwordx4 v%d, %s, s%d offen offset:%d%s lds" % (vo(j), sr(srd), S_SO, j * 1024, fl), tag), lo, h, hard=hi, pre=pre))
    return ops

def stage_dma(c, lo, hi):
    ops = []; tag = "A%d" % c
    seq = []
    pre = [I("s_add_u32 s%d, s%d, %d" % (S_KC, S_ROT, c)), I("s_and_b32 s%d, s%d, 7" % (S_KC, S_KC)),
           I("s_lshl_b32 s%d, s%d, 19" % (S_SO, S_KC)), I("s_add_u32 m0, s%d, 0x%x" % (S_L4, WS_(c))), I("s_add_u32 s%d, s%d, s%d" % (S_SO, S_SO, S_WB))]
    for j in range(4):
        seq.append((I("buffer_load_dwordx4 v%d, %s, s%d offen offset:%d lds" % (V_OW + j, sr(SRD_WQ), S_SO, j * 1024), tag), pre if j == 0 else []))
    for j in range(7):
        p = []
        if j == 0: p = [I("s_add_u32 m0, s%d, 0x%x" % (S_LX, XS(c))), I("s_lshl_b32 s%d, s%d, 7" % (S_SO, S_KC)), I("s_add_u32 s%d, s%d, s%d" % (S_SO, S_SO, S_XB))]
        if j == 4: p = [I("s_add_u32 m0, s%d, 0x%x" % (S_LX, XS(c) + 4096)), I("s_add_u32 s%d, s%d, 0x8000" % (S_SO, S_SO))]
        seq.append((I("buffer_load_dwordx4 v%d, %s, s%d offen offset:%d lds" % (V_OX + (j & 3), sr(SRD_X), S_SO, (j & 3) * 1024), tag), p))
    for k, (ins, p) in enumerate(seq):
        ops.append(Op(ins, lo, lo + (hi - lo) * (k + 1) // len(seq), hard=hi, pre=p))
    return ops

def flat(ops):
    out = []
    for o in ops: out += o.pre + [o.i]
    return out

class K:
    def __init__(self, cfg):
        self.c = cfg; self.ins = []; self.nst = 0
    def __call__(self, s, tag=None):
        for l in s.split("\n"):
            l = l.strip()
            if l: self.ins.append(I(l, tag))
    def add(self, lst): self.ins += lst
    def stamp(self):
        if not self.c.get("stamps"): return
        b = STAMP0 + 4 * self.nst; self.nst += 1
        assert b + 3 <= 101
        self("s_waitcnt lgkmcnt(0)")
        self("s_memrealtime s[%d:%d]" % (b, b + 1)); self("s_memtime s[%d:%d]" % (b + 2, b + 3)); self("s_waitcnt lgkmcnt(0)")

    def prologue(self):
        a = self; c = self.c
        a("s_cmp_ge_u32 s2, 256"); a("s_cbranch_scc1 L_end")
        a("s_load_dwordx16 s[4:19], s[0:1], 0")
        if c.get("stamps"):
            a("s_memrealtime s[%d:%d]" % (STAMP0, STAMP0 + 1)); a("s_memtime s[%d:%d]" % (STAMP0 + 2, STAMP0 + 3)); self.nst = 1
        a("v_lshrrev_b32 v1, 6, v0"); a("v_and_b32 v0, 63, v0"); a("v_readfirstlane_b32 s3, v1")
        T = V_T
        a("v_lshrrev_b32 v1, 4, v0"); a("v_and_b32 v2, 15, v0"); a("v_lshrrev_b32 v3, 3, v0"); a("v_and_b32 v4, 7, v0")
        a("v_lshlrev_b32 v5, 1, v1"); a("v_xor_b32 v5, v5, v2"); a("v_lshlrev_b32 v5, 4, v5")
        a("v_lshl_add_u32 v%d, v1, 13, v5" % V_OW)
        a("v_add_u32 v%d, %d, v%d" % (V_OW + 1, 31744, V_OW))
        a("v_xor_b32 v6, 0x80, v%d" % V_OW)
        a("v_add_u32 v%d, %d, v6" % (V_OW + 2, 2 * 31744)); a("v_add_u32 v%d, %d, v6" % (V_OW + 3, 3 * 31744))
        a("s_and_b32 s%d, s3, 1" % S_T0); a("s_lshl_b32 s%d, s%d, 6" % (S_T1, S_T0))
        a("v_xor_b32 v6, v4, v1"); a("v_lshlrev_b32 v6, 4, v6"); a("v_lshl_add_u32 v6, v3, 10, v6")
        a("v_xor_b32 v%d, s%d, v6" % (V_OX, S_T1))
        a("v_xor_b32 v7, 64, v%d" % V_OX)
        a("v_add_u32 v%d, %d, v7" % (V_OX + 1, 7168)); a("v_add_u32 v%d, %d, v%d" % (V_OX + 2, 2 * 7168, V_OX)); a("v_add_u32 v%d, %d, v7" % (V_OX + 3, 3 * 7168))
        a("s_and_b32 s%d, s2, 7" % S_T2); a("s_lshr_b32 s%d, s2, 3" % S_T3)
        a("s_waitcnt lgkmcnt(0)")
        def srd(d, base, nb):
            a("s_mov_b32 s%d, s%d" % (d, base)); a("s_and_b32 s%d, s%d, 0xffff" % (d + 1, base + 1)); a("s_mov_b32 s%d, 0x%x" % (d + 2, nb)); a("s_mov_b32 s%d, 0x20000" % (d + 3))
        srd(SRD_X, 4, 8 * 224 * 512 * 2); srd(SRD_WQ, 10, 512 * 4096 * 2)
        srd(SRD_K, 6, 8 * 32 * 512 * 128 * 2); srd(SRD_V, 8, 8 * 32 * 512 * 128 * 2); srd(SRD_WO, 12, 4096 * 512 * 2)
        srd(SRD_OUT, 14, 8 * 224 * 512 * 2); srd(SRD_DBG, 16, 256); srd(SRD_WS, 18, WS_BYTES)
        a("s_mov_b32 s%d, s%d" % (S_E, S_T0))
        if c.get("map", 2) == 2:
            a("s_and_b32 s%d, s%d, 7" % (S_B, S_T3)); a("s_lshr_b32 s%d, s%d, 3" % (S_CQ, S_T3)); a("s_mov_b32 s%d, s%d" % (S_HG, S_T2))
            a("s_lshl_b32 s%d, s%d, 2" % (S_H, S_HG)); a("s_add_u32 s%d, s%d, s%d" % (S_H, S_H, S_CQ))
        else:
            a("s_and_b32 s%d, s%d, 1" % (S_B, S_T2)); a("s_lshl_b32 s%d, s%d, 2" % (S_B, S_B)); a("s_and_b32 s%d, s%d, 3" % (S_T0, S_T3)); a("s_add_u32 s%d, s%d, s%d" % (S_B, S_B, S_T0))
            a("s_lshr_b32 s%d, s%d, 1" % (S_H, S_T2)); a("s_lshl_b32 s%d, s%d, 3" % (S_H, S_H)); a("s_lshr_b32 s%d, s%d, 2" % (S_T0, S_T3)); a("s_add_u32 s%d, s%d, s%d" % (S_H, S_H, S_T0))
            a("s_lshr_b32 s%d, s%d, 2" % (S_HG, S_H)); a("s_and_b32 s%d, s%d, 3" % (S_CQ, S_H))
        a("s_mov_b32 s%d, s%d" % (S_ROT, S_T2))
        a("s_mul_i32 s%d, s%d, %d" % (S_XB, S_B, 229376)); a("s_mul_i32 s%d, s3, %d" % (S_T0, 57344)); a("s_add_u32 s%d, s%d, s%d" % (S_XB, S_XB, S_T0))
        a("s_lshl_b32 s%d, s%d, 8" % (S_WB, S_H)); a("s_lshl_b32 s%d, s3, 17" % S_T0); a("s_add_u32 s%d, s%d, s%d" % (S_WB, S_WB, S_T0))
        a("s_mul_i32 s%d, s3, 7168" % S_LX); a("s_lshl_b32 s%d, s3, 12" % S_L4)
        a.add(flat(stage_dma(0, 0, 0)))
        if c.get("touch", 1):
            a("s_getpc_b64 s[%d:%d]" % (S_T1, S_T2)); a("L_pc:")
            a("s_and_b32 s%d, s%d, 3" % (S_T0, S_T3)); a("s_lshl_b32 s%d, s%d, 2" % (S_T0, S_T0)); a("s_add_u32 s%d, s%d, s3" % (S_T0, S_T0)); a("s_mul_i32 s%d, s%d, %d" % (S_T0, S_T0, c["touch_n"] * 128))
            a("v_min_u32 v6, %d, v0" % (c["touch_n"] - 1)); a("v_lshl_add_u32 v6, v6, 7, s%d" % S_T0)
            a("v_min_u32 v6, L_codeend-L_pc-4, v6")
            a("global_load_dword v%d, v6, s[%d:%d]" % (V_T + 9, S_T1, S_T2), "touch")
        a.add(flat(stage_dma(1, 0, 0)))
        a("s_lshl_b32 s%d, s%d, 5" % (S_T0, S_B)); a("s_add_u32 s%d, s%d, s%d" % (S_T0, S_T0, S_H))
        a("s_lshl_b32 s%d, s%d, 17" % (S_KVB, S_T0)); a("s_add_u32 s%d, s%d, s%d" % (S_KVB, S_KVB, S_L4))
        a("s_lshl_b32 s%d, s%d, 2" % (S_T0, S_T0)); a("s_add_u32 s%d, s%d, s3" % (S_T0, S_T0))
        a("s_lshl_b32 s%d, s%d, 14" % (S_OB, S_T0))
        a("s_lshl_b32 s%d, s%d, 7" % (S_FL, S_T0)); a("s_add_u32 s%d, s%d, 0x%x" % (S_FL, S_FL, FL_OFF))
        a("s_lshl_b32 s%d, s%d, 17" % (S_WOB, S_H)); a("s_lshl_b32 s%d, s3, 14" % S_T0); a("s_add_u32 s%d, s%d, s%d" % (S_WOB, S_WOB, S_T0))
        a("s_lshl_b32 s%d, s%d, 8" % (S_T0, S_CQ)); a("s_add_u32 s%d, s%d, s%d" % (S_WOB, S_WOB, S_T0))
        a("s_lshl_b32 s%d, s%d, 2" % (S_T0, S_B)); a("s_add_u32 s%d, s%d, s%d" % (S_T0, S_T0, S_CQ)); a("s_lshl_b32 s%d, s%d, 3" % (S_T0, S_T0)); a("s_add_u32 s%d, s%d, s%d" % (S_T0, S_T0, S_HG))
        a("s_lshl_b32 s%d, s%d, 3" % (S_T0, S_T0)); a("s_add_u32 s%d, s%d, s%d" % (S_T0, S_T0, S_HG)); a("s_lshl_b32 s%d, s%d, 2" % (S_T0, S_T0)); a("s_add_u32 s%d, s%d, s3" % (S_T0, S_T0))
        a("s_lshl_b32 s%d, s%d, 11" % (S_PB, S_T0)); a("s_add_u32 s%d, s%d, 0x%x" % (S_PB, S_PB, PB_OFF))
        cc = f2u(math.log2(math.e) / math.sqrt(128.0))
        a("s_mov_b32 s%d, 0x%x" % (S_C0, cc)); a("s_mov_b32 s%d, 0x%x" % (S_C0 + 1, cc))
        a("s_getreg_b32 s%d, hwreg(HW_REG_XCC_ID, 0, 4)" % S_XCC); a("s_mov_b32 s%d, 0" % S_RETRY); a("s_mov_b32 s%d, 0" % S_SPIN)
        a("v_lshlrev_b32 v%d, 4, v0" % V_L16)
        a("v_cmp_eq_u32 vcc, 0, v0"); a("v_bfrev_b32 v6, 1"); a("v_cndmask_b32 v%d, v6, 0, vcc" % V_L0)
        a("v_mov_b32 v6, 0")
        a("buffer_store_dword v6, v%d, %s, s%d offen sc1" % (V_L0, sr(SRD_WS), S_FL), "flagreset")
        a("v_and_b32 v6, 3, v0"); a("v_lshlrev_b32 v%d, 9, v6" % V_POLL); a("v_xor_b32 v%d, s%d, v%d" % (V_POLL, S_FL, V_POLL))
        a("v_xor_b32 v7, v2, v1"); a("v_lshlrev_b32 v7, 4, v7"); a("v_lshl_add_u32 v%d, v1, 8, v7" % V_OK)
        for j in (1, 2, 3): a("v_xor_b32 v%d, %d, v%d" % (V_OK + j, j << 6, V_OK))
        a("v_lshl_add_u32 v%d, v1, 8, v5" % V_OV); a("v_xor_b32 v%d, 0x80, v%d" % (V_OV + 1, V_OV))
        a("v_lshl_add_u32 v%d, v1, 10, v5" % V_OO); a("v_xor_b32 v7, 0x80, v%d" % V_OO)
        a("v_add_u32 v%d, 3072, v7" % (V_OO + 1)); a("v_add_u32 v%d, 6144, v%d" % (V_OO + 2, V_OO)); a("v_add_u32 v%d, 9216, v7" % (V_OO + 3))
        a("v_lshrrev_b32 v7, 1, v2"); a("v_xor_b32 v7, v7, v1"); a("v_lshlrev_b32 v7, 4, v7"); a("v_lshl_add_u32 v7, v2, 7, v7")
        a("s_lshr_b32 s%d, s3, 1" % S_T0); a("s_mul_i32 s%d, s%d, %d" % (S_T0, S_T0, 7 * 2048))
        a("s_lshl_b32 s%d, s%d, 13" % (S_T1, S_E)); a("s_add_u32 s%d, s%d, s%d" % (S_T2, S_T0, S_T1)); a("s_add_u32 s%d, s%d, %d" % (S_T0, S_T0, 3 * 2048))
        a("v_add_u32 v%d, s%d, v7" % (V_AX, S_T2)); a("v_xor_b32 v%d, 64, v%d" % (V_AX + 1, V_AX))
        a("v_add_u32 v%d, s%d, v7" % (V_AX + 2, S_T0)); a("v_xor_b32 v%d, 64, v%d" % (V_AX + 3, V_AX + 2))
        a("v_lshrrev_b32 v3, 2, v2"); a("v_and_b32 v4, 1, v1"); a("v_lshl_or_b32 v4, v4, 2, v3")
        a("s_lshl_b32 s%d, s%d, 1" % (S_T0, S_E)); a("v_xor_b32 v4, s%d, v4" % S_T0); a("v_lshlrev_b32 v4, 5, v4"); a("v_lshl_add_u32 v4, v6, 3, v4")
        a("v_lshl_add_u32 v7, v1, 3, v3"); a("v_lshl_add_u32 v7, v7, 8, v4"); a("v_add_u32 v%d, 0x%x, v7" % (V_AW, WQ_WIN))
        for j in range(1, 8): a("v_xor_b32 v%d, %d, v%d" % (V_AW + j, j << 5, V_AW))
        a("v_lshl_add_u32 v7, v1, 2, v3"); a("v_lshl_add_u32 v7, v7, 8, v4")
        a("s_add_u32 s%d, s%d, 0x%x" % (S_T2, S_T1, V_WIN)); a("v_add_u32 v%d, s%d, v7" % (V_AVX, S_T2))
        for j in range(1, 8): a("v_xor_b32 v%d, %d, v%d" % (V_AVX + j, j << 5, V_AVX))
        for j in range(8): a("v_xor_b32 v%d, 0x2000, v%d" % (V_AVY + j, V_AVX + j))
        a("v_and_b32 v7, 1, v1"); a("v_lshlrev_b32 v7, 1, v7"); a("v_lshrrev_b32 v3, 1, v1"); a("v_or_b32 v7, v7, v3")
        a("s_lshl_b32 s%d, s%d, 2" % (S_T0, S_E)); a("v_xor_b32 v7, s%d, v7" % S_T0); a("v_xor_b32 v7, v7, v2"); a("v_lshlrev_b32 v7, 4, v7"); a("v_lshl_add_u32 v7, v2, 8, v7")
        a("s_add_u32 s%d, s%d, 0x%x" % (S_T2, S_T1, K_WIN)); a("v_add_u32 v%d, s%d, v7" % (V_AKX, S_T2))
        for s in range(1, 4): a("v_xor_b32 v%d, %d, v%d" % (V_AKX + s, s << 6, V_AKX))
        for s in range(4): a("v_xor_b32 v%d, 0x2000, v%d" % (V_AKY + s, V_AKX + s))
        a("v_mov_b32 v7, 0x3f803f80")
        for k in range(4): a("v_accvgpr_write_b32 a%d, v7" % (A_ONE + k))
        a("v_add_u32 v%d, s%d, v%d" % (V_SCR, S_L4, V_L16))

    def acc(self, u, j): return V_O + (u * 8 + j) * 4 if u < 3 else V_O + 96 + 4 * ACT.index(j)
    def phaseA(self):
        c = self.c
        G = Gaps(); ring = Ring(); L = []; D = []
        LEAD = c.get("leadA", 10); BOFF = c.get("boffA", 16); BUB = c.get("bubA", 5)
        xf = lambda ch, u, ks: A_XF + 32 * (ch & 1) + 8 * u + 4 * ks
        bar = {ch: 56 * ch - BOFF for ch in range(1, 8)}; bar[0] = -1; bar[8] = 10 ** 6
        xlast = {}
        for ch in range(8):
            Lx = []; Lw = []
            firstx = {}
            for j in range(8):
                us = [0, 1, 2] + ([3] if j in ACT else [])
                m0 = G.n(); last = m0 + 2 * len(us) - 1
                fr = []
                for ks in range(2):
                    reg, lo = ring.alloc(last - 1 + ks); fr.append(reg)
                    for eh in range(2):
                        Lw.append((m0 + ks, Op(I("ds_read_b64_tr_b16 %s, v%d offset:%d" % (ar(reg + 2 * eh, 2), V_AW + j, WS_(ch) - WQ_WIN + ks * 8192 + eh * 1024)),
                                               max(lo, bar[ch]), min(m0 + ks - LEAD, bar[ch + 1] - BUB), hard=min(m0 + ks - 1, bar[ch + 1] - 1))))
                for u in us:
                    for ks in range(2):
                        A = self.acc(u, j)
                        m = G.mfma("%s %s, %s, %s, %s" % (MF, vr(A), ar(fr[ks]), ar(xf(ch, u, ks)), "0" if ch == 0 and ks == 0 else vr(A)))
                        firstx.setdefault((u, ks), m); xlast[(ch, u, ks)] = m
            for (u, ks), m in firstx.items():
                lo = max(bar[ch], xlast.get((ch - 2, u, ks), -1))
                Lx.append((m, Op(I("ds_read_b128 %s, v%d offset:%d" % (ar(xf(ch, u, ks)), V_AX + (2 if u == 3 else 0) + ks, XS(ch) + (u * 2048 if u < 3 else 0))), lo, m - LEAD, hard=m - 1)))
            L += [o for m, o in sorted(Lx + Lw, key=lambda t: t[0])]
        n = G.n()
        for ch in range(8):
            lo = max(bar[ch], 0); hi = min(bar[ch + 1] - 1, n - 1)
            extra = c["kvA"].get(ch, [])
            if ch + 2 < 8:
                mid = hi if not extra else lo + (hi - lo) * 11 // (11 + 4 * len(extra))
                D += stage_dma(ch + 2, lo, mid); lo = mid
            for k, (kind, i) in enumerate(extra):
                l0 = lo + (hi - lo) * k // len(extra); h0 = lo + (hi - lo) * (k + 1) // len(extra)
                D += tile_dma(kind, i, KSL(i) if kind == "K" else VSL(i), max(bar[ch], 0), h0, c.get("nt", True))
        for ch in range(1, 8): G.pre[bar[ch]] += [W(vm="A%d" % ch, lgkm0=True), I("s_barrier")]
        self.add([W(vm="A0"), I("s_barrier")])
        self.stamp()
        schedule(G, L, D, [], [], "phaseA")
        self.add(G.flatten())

    def transAB(self):
        a = self
        fr = [(u, s) for u in (3, 0, 1, 2) for s in range(4) if u < 3 or s % 2 == 0]
        base = lambda u, s: self.acc(u, 2 * s)
        def conv(lst):
            for u, s in lst:
                A = base(u, s)
                for k in range(4): a("v_pk_mul_f32 %s, %s, %s" % (vr(A + 2 * k, 2), vr(A + 2 * k, 2), sr(S_C0, 2)))
                for k in range(4): a("v_cvt_pk_bf16_f32 v%d, v%d, v%d" % (A + k, A + 2 * k, A + 2 * k + 1))
            for u, s in lst:
                A = base(u, s)
                a("v_permlane16_swap_b32 v%d, v%d" % (A, A + 2)); a("v_permlane16_swap_b32 v%d, v%d" % (A + 1, A + 3))
        conv(fr[:2])
        for k, (u, s) in enumerate(fr[:2]): a("ds_write_b128 v%d, %s offset:%d" % (V_SCR, vr(base(u, s)), QSCR + k * 1024))
        conv(fr[2:])
        for u, s in fr:
            for k in range(4): a("v_accvgpr_write_b32 a%d, v%d" % (A_Q + 16 * u + 4 * s + k, base(u, s) + k))
        a("v_xor_b32 v%d, 0x1000, v%d" % (V_T, V_SCR))
        a.add([W(vm="K0", lgkm0=True), I("s_barrier")])
        for k in range(2): a("ds_read_b128 %s, v%d offset:%d" % (ar(A_Q + 48 + 4 * (2 * k + 1)), V_T, QSCR + k * 1024))
        a("s_add_u32 s%d, s%d, 1" % (S_T0, S_XCC)); a("s_lshl_b32 s%d, s%d, 3" % (S_T1, S_CQ)); a("s_lshl_b32 s%d, s%d, s%d" % (S_T0, S_T0, S_T1))
        a("s_lshl_b32 s%d, s%d, 3" % (S_T1, S_B)); a("s_add_u32 s%d, s%d, s%d" % (S_T1, S_T1, S_HG)); a("s_lshl_b32 s%d, s%d, 2" % (S_T1, S_T1))
        a("s_lshl_b32 s%d, s3, 8" % S_T2); a("s_add_u32 s%d, s%d, s%d" % (S_T2, S_T2, S_T1))
        a("v_mov_b32 v%d, s%d" % (V_T + 1, S_T0))
        a("buffer_atomic_add v%d, v%d, %s, s%d offen" % (V_T + 1, V_L0, sr(SRD_DBG), S_T2), "hello")

    def rowmax_finish(self, M):
        a = self; T = V_T
        for u in range(4): a("v_mov_b32 v%d, v%d" % (T + u, M[u]))
        for u in range(4): a("v_permlane16_swap_b32 v%d, v%d" % (M[u], T + u))
        for u in range(4): a("v_max_f32 v%d, v%d, v%d" % (M[u], M[u], T + u))
        for u in range(4): a("v_mov_b32 v%d, v%d" % (T + u, M[u]))
        for u in range(4): a("v_permlane32_swap_b32 v%d, v%d" % (M[u], T + u))
        for u in range(4): a("v_max_f32 v%d, v%d, v%d" % (M[u], M[u], T + u))
        for u in range(4):
            for k in range(4): a("v_sub_f32 v%d, 0, v%d" % (V_NEGM + 4 * u + k, M[u]))

    def premax(self):
        a = self; T = V_T
        for s in range(4): a("v_and_b32 v%d, 0xffffdfff, v%d" % (T + 4 + s, V_AKX + s))
        for s in range(4): a("ds_read_b128 %s, v%d offset:%d" % (ar(A_XF + 4 * s), T + 4 + s, KSL(0) - K_WIN))
        for u in range(4):
            for s in range(4):
                D = V_SY + 4 * u
                a("%s %s, %s, %s, %s" % (MF, vr(D), ar(A_XF + 4 * s), ar(A_Q + 16 * u + 4 * s), "0" if s == 0 else vr(D)))
        for u in range(4):
            D = V_SY + 4 * u
            a("v_max3_f32 v%d, v%d, v%d, v%d" % (D, D, D + 1, D + 2))
        for u in range(4):
            D = V_SY + 4 * u
            a("v_max_f32 v%d, v%d, v%d" % (D, D, D + 3))
        self.rowmax_finish([V_SY + 4 * u for u in range(4)])

    def attention(self):
        c = self.c
        G = Gaps(); ring = Ring(); L = []; D = []; X = []; C = []
        LEAD = c.get("leadB", 10); BOFF = c.get("boffB", 13); BUB = c.get("bubB", 5); SLAT = 5
        pend = {}
        segs = [("QK", "X", 0), ("QK", "Y", 0)]
        for i in range(8):
            segs += [("PV", "X", i)] + ([("QK", "X", i + 1)] if i < 7 else []) + [("PV", "Y", i)] + ([("QK", "Y", i + 1)] if i < 7 else [])
        pos = {}; p = 0
        for sg in segs:
            pos[sg] = p; nu = 4 if sg[1] == "X" else 3
            p += 8 * nu + (nu if sg[0] == "PV" else 0)
        bar = {i: pos[("PV", "X", i)] - BOFF for i in range(8)}; bar[-1] = -1; bar[8] = 10 ** 6
        sm = []
        for op, un, i in segs:
            nu = 4 if un == "X" else 3; S = V_SX if un == "X" else V_SY
            if op == "QK":
                st = i - 1; ad = V_AKX if un == "X" else V_AKY
                pv0 = pos[("PV", un, i)]
                for kt in range(2):
                    m0 = G.n(); fr = []
                    for s in range(4):
                        reg, lo = ring.alloc(m0 + 4 * (nu - 1) + s); fr.append(reg)
                        L.append(Op(I("ds_read_b128 %s, v%d offset:%d" % (ar(reg), ad + s, KSL(i) - K_WIN + kt * 4096)),
                                    max(lo, bar[st]), min(m0 + s - LEAD, bar[st + 1] - BUB), hard=min(m0 + s - 1, bar[st + 1] - 1)))
                    for u in range(nu):
                        Dd = S + 8 * u + 4 * kt
                        for s in range(4):
                            m = G.mfma("%s %s, %s, %s, %s" % (MF, vr(Dd), ar(fr[s]), ar(A_Q + 16 * u + 4 * s), vr(V_NEGM + 4 * u) if s == 0 else vr(Dd)))
                        dl = pv0 + u - 2
                        ex = [Op(I("v_exp_f32 v%d, v%d" % (Dd + k, Dd + k)), m + SLAT, dl - 1) for k in range(4)]
                        cv = [Op(I("v_cvt_pk_bf16_f32 v%d, v%d, v%d" % (S + 8 * u + 2 * kt + k, Dd + 2 * k, Dd + 2 * k + 1)), m + SLAT, dl, dep=ex[2 * k:2 * k + 2]) for k in range(2)]
                        X += ex; C += cv
            else:
                ad = V_AVX if un == "X" else V_AVY
                first = (un == "X" and i == 0)
                for j in range(8):
                    m0 = G.n()
                    reg, lo = ring.alloc(m0 + nu - 1)
                    for t in range(2):
                        L.append(Op(I("ds_read_b64_tr_b16 %s, v%d offset:%d" % (ar(reg + 2 * t, 2), ad + j, VSL(i) - V_WIN + t * 4096)),
                                    max(lo, bar[i]), min(m0 - LEAD, bar[i + 1] - BUB), hard=min(m0 - 1, bar[i + 1] - 1)))
                    for u in range(nu):
                        O = V_O + (u * 8 + j) * 4
                        G.mfma("%s %s, %s, %s, %s" % (MF, vr(O), ar(reg), vr(S + 8 * u), "0" if first else vr(O)))
                    if j == 0:
                        for u in range(nu):
                            G.mfma("%s %s, %s, %s, %s" % (MF, ar(A_L + 4 * u), ar(A_ONE), vr(S + 8 * u), "0" if first else ar(A_L + 4 * u)))
        n = G.n()
        for i in range(-1, 8):
            lo = max(bar[i], 0); hi = min(bar[i + 1] - 1, n - 1); lst = c["kvB"].get(i, [])
            for k, (kind, ix) in enumerate(lst):
                h0 = lo + (hi - lo) * (k + 1) // len(lst)
                D += tile_dma(kind, ix, KSL(ix) if kind == "K" else VSL(ix) if kind == "V" else WOSL[ix], lo + 1, h0, c.get("nt", True))
        for i in range(8): G.pre[bar[i]] += [W(vm=["V%d" % i, "K%d" % (i + 1)], lgkm0=True), I("s_barrier")]
        schedule(G, L, D, X, C, "attention")
        self.add(G.flatten())

    def ofrag(self, u, s): return V_SX + 4 * (4 * u + s if u < 3 else 12 + s // 2)
    def transBC(self):
        a = self; T = V_T; c = self.c
        sc = " sc1" if c.get("osc1", 1) else ""
        for k, j in enumerate((2, 3, 6, 7)): a("ds_write_b128 v%d, %s offset:%d" % (V_SCR, vr(V_O + (24 + j) * 4), OSCR - SL(2) + k * 1024), None)
        for u in range(4): a("v_accvgpr_read_b32 v%d, a%d" % (T + u, A_L + 4 * u))
        a("v_max3_f32 v%d, v%d, v%d, v%d" % (T + 4, T, T + 1, T + 2)); a("v_max_f32 v%d, v%d, v%d" % (T + 4, T + 4, T + 3))
        a("v_cmp_lt_f32 vcc, 0x%x, v%d" % (f2u(2.0 ** 40), T + 4))
        a("s_cmp_lg_u64 vcc, 0"); a("s_cselect_b32 s%d, 1, 0" % S_T0)
        a("v_mov_b32 v%d, s%d" % (T + 4, S_T0))
        a("v_lshlrev_b32 v%d, 2, v0" % (T + 5)); a("s_lshl_b32 s%d, s3, 8" % S_T1); a("s_add_u32 s%d, s%d, 0x%x" % (S_T1, S_T1, LSCR)); a("v_add_u32 v%d, s%d, v%d" % (T + 5, S_T1, T + 5))
        a("s_lshl_b32 s%d, s3, 2" % S_T1); a("s_add_u32 s%d, s%d, 0x%x" % (S_T1, S_T1, LSCR + 1024)); a("v_mov_b32 v%d, s%d" % (T + 6, S_T1))
        a("ds_write_b32 v%d, v%d" % (T + 5, T + 3)); a("ds_write_b32 v%d, v%d" % (T + 6, T + 4))
        a("v_xor_b32 v%d, 0x100, v%d" % (T + 5, T + 5)); a("v_mov_b32 v%d, 0x%x" % (T + 6, LSCR + 1024)); a("v_xor_b32 v%d, 0x1000, v%d" % (T + 7, V_SCR))
        for u in range(3): a("v_rcp_f32 v%d, v%d" % (T + u, T + u))
        a.add([W(vm=["WO(0, 0)", "WO(0, 1)"], lgkm0=True), I("s_barrier")])
        a("ds_read_b128 %s, v%d" % (vr(4), T + 6))
        a("ds_read_b32 v%d, v%d" % (T + 4, T + 5))
        for k, j in enumerate((2, 3, 6, 7)): a("ds_read_b128 %s, v%d offset:%d" % (vr(V_O + (24 + j) * 4), T + 7, OSCR - SL(2) + k * 1024))
        a("s_lshl_b32 s%d, s%d, 3" % (S_T1, S_B)); a("s_add_u32 s%d, s%d, s%d" % (S_T1, S_T1, S_HG)); a("s_lshl_b32 s%d, s%d, 2" % (S_T3, S_T1))
        a("buffer_load_dword v%d, off, %s, s%d sc1" % (T + 8, sr(SRD_DBG), S_T3), "hl")
        a("v_or_b32 v4, v4, v5"); a("v_or3_b32 v4, v4, v6, v7"); a("v_readfirstlane_b32 s%d, v4" % S_T0)
        a("s_andn2_b32 s%d, s%d, s%d" % (S_T0, S_T0, S_RETRY)); a("s_cbranch_scc1 L_fallback")
        def norm(u, s, rl):
            O = V_O + (u * 8 + 2 * s) * 4; F = self.ofrag(u, s)
            for k in range(4): a("v_pk_mul_f32 %s, %s, %s op_sel_hi:[1,0]" % (vr(O + 2 * k, 2), vr(O + 2 * k, 2), vr(rl, 2)))
            for k in range(4): a("v_cvt_pk_bf16_f32 v%d, v%d, v%d" % (F + k, O + 2 * k, O + 2 * k + 1))
        def store(f):
            if f % 4 == 0: a("s_add_u32 s%d, s%d, %d" % (S_SO, S_OB, f * 1024))
            a("buffer_store_dwordx4 %s, v%d, %s, s%d offen offset:%d%s" % (vr(V_SX + 4 * f), V_L16, sr(SRD_WS), S_SO, (f % 4) * 1024, sc), "ost")
        a("v_mov_b32 v2, v%d" % T); a("v_mov_b32 v4, v%d" % (T + 1)); a("v_mov_b32 v6, v%d" % (T + 2))
        for u in range(3):
            for s in range(4): norm(u, s, 2 + 2 * u)
            for s in range(4): store(4 * u + s)
        a("v_add_f32 v%d, v%d, v%d" % (T + 3, T + 3, T + 4)); a("v_rcp_f32 v2, v%d" % (T + 3))
        for j in ACT:
            O = V_O + (24 + j) * 4
            for k in range(2): a("v_pk_add_f32 %s, %s, %s" % (vr(O + 2 * k, 2), vr(O + 2 * k, 2), vr(O + 8 + 2 * k, 2)))
        for s in (0, 2): norm(3, s, 2)
        store(12); store(13)
        a("s_lshl_b32 s%d, s%d, 1" % (S_T0, S_E)); a("s_xor_b32 s%d, s%d, s%d" % (S_T0, S_T0, S_HG)); a("s_lshl_b32 s%d, s%d, 5" % (S_T0, S_T0))
        a("s_or_b32 s%d, s%d, 0x%x" % (S_T0, S_T0, V_WIN))
        for k in range(16): a("v_xor_b32 v%d, s%d, v%d" % (V_AVX + k, S_T0, V_AVX + k))
        for k in range(16): a("v_add_u32 v%d, 0x%x, v%d" % (V_NEGM + k, SL(6), V_AVX + k))
        a("L_hello:")
        a("v_readfirstlane_b32 s%d, v%d" % (S_T0, T + 8))
        a("s_sub_u32 s%d, s%d, 0x01010101" % (S_T1, S_T0)); a("s_andn2_b32 s%d, s%d, s%d" % (S_T1, S_T1, S_T0)); a("s_and_b32 s%d, s%d, 0x80808080" % (S_T1, S_T1))
        a("s_cbranch_scc1 L_hello_spin")
        a("L_hello_ok:")
        a("s_barrier")
        self.tail = []
        t = self.tail.append
        for s in ["L_hello_spin:", "s_add_u32 s%d, s%d, 1" % (S_SPIN, S_SPIN), "s_cmp_ge_u32 s%d, 0x%x" % (S_SPIN, SPIN_MAX), "s_cbranch_scc1 L_hello_ok", "s_sleep 4", "buffer_load_dword v%d, off, %s, s%d sc1" % (T + 8, sr(SRD_DBG), S_T3), "s_waitcnt vmcnt(0)", "s_branch L_hello"]: t(I(s))

    def phaseC(self):
        a = self; c = self.c; T = V_T
        sc = " sc1" if c.get("osc1", 1) else ""
        G = Gaps(); ring = Ring(); L = []; D = []; X = []; C = []
        LEAD = c.get("leadC", 10)
        acc = lambda u, j: V_O + (j * 4 + u) * 4
        def bfrag(hh, u, s):
            f = 4 * u + s if u < 3 else 12 + s // 2
            return vr(V_SX + 4 * f) if hh == 0 else ar(56 * (hh - 1) + 4 * f)
        order = [(0, j) for j in range(1, 8)] + [(1, j) for j in range(1, 8)]
        for j in range(1, 8): order += [(2, j), (3, j)]
        order += [(hh, 0) for hh in range(4)]
        BOFF = c.get("boffC", 12)
        barg = {0: -1, 1: 98 - BOFF, 2: 196 - BOFF, 3: 196 - BOFF}
        started = set(); done = {}
        for hh, j in order:
            m0 = G.n(); fr = []
            for s in range(4):
                reg, lo = ring.alloc(m0 + (12 + s // 2 if s % 2 == 0 else 8 + s)); fr.append(reg)
                slot = WOSL[(hh, s >> 1)]
                ad = (V_AVX if hh < 2 else V_NEGM) + (8 if s & 1 else 0) + j
                off = slot - (0 if hh < 2 else SL(6))
                for t in range(2):
                    L.append(Op(I("ds_read_b64_tr_b16 %s, v%d offset:%d" % (ar(reg + 2 * t, 2), ad, off + t * 4096)), max(lo, barg[hh]), m0 + s - LEAD, hard=m0 + s - 1))
            for u in range(4):
                for s in range(4):
                    if u == 3 and s & 1: continue
                    A = acc(u, j)
                    m = G.mfma("%s %s, %s, %s, %s" % (MF, vr(A), ar(fr[s]), bfrag(hh, u, s), vr(A) if (u, j) in started else "0"))
                    started.add((u, j)); done[(u, j)] = m
        n = G.n()
        D += tile_dma("WO", (3, 1), WOSL[(3, 1)], 0, 8)
        g1 = c.get("gflag", 30); g2 = c.get("gpoll", 44); g3 = c.get("gchk", 64)
        a("v_mov_b32 v%d, 1" % (T + 9))
        D.append(Op(I("buffer_store_dword v%d, v%d, %s, s%d offen%s" % (T + 9, V_L0, sr(SRD_WS), S_FL, sc), "flag"), g1, g1, pre=[W(vm="ost")]))
        D.append(Op(I("buffer_load_dword v%d, v%d, %s, 0 offen sc1" % (T + 8, V_POLL, sr(SRD_WS)), "poll"), g2, g2))
        G.val[g3] += [I("L_poll:"), I("v_cmp_ne_u32 vcc, 1, v%d" % (T + 8)), I("s_cbranch_vccnz L_poll_spin"), I("L_poll_ok:")]
        for s in ["L_poll_spin:", "s_add_u32 s%d, s%d, 1" % (S_SPIN, S_SPIN), "s_cmp_ge_u32 s%d, 0x%x" % (S_SPIN, SPIN_MAX), "s_cbranch_scc1 L_poll_ok", "s_sleep 1", "buffer_load_dword v%d, v%d, %s, 0 offen sc1" % (T + 8, V_POLL, sr(SRD_WS)), "s_waitcnt vmcnt(0)", "s_branch L_poll"]: self.tail.append(I(s))
        k = 0
        for hh in (1, 2, 3):
            for f in range(14):
                pre = []
                if f == 0: pre = [I("s_xor_b32 s%d, s%d, 0x%x" % (S_SO, S_OB, hh << 16))]
                elif f % 4 == 0: pre = [I("s_add_u32 s%d, s%d, 4096" % (S_SO, S_SO))]
                D.append(Op(I("buffer_load_dwordx4 %s, v%d, %s, s%d offen offset:%d sc1" % (ar(56 * (hh - 1) + 4 * f), V_L16, sr(SRD_WS), S_SO, (f % 4) * 1024), "of%d" % hh),
                            g3 + 1, g3 + 1 + 2 * k, hard=(97 if hh == 1 else 195), pre=pre)); k += 1
        G.pre[barg[1]] += [W(vm=["WO(1, 0)", "WO(1, 1)"]), I("s_barrier")]
        G.pre[barg[2]] += [W(vm=["WO(2, 0)", "WO(2, 1)", "WO(3, 0)", "WO(3, 1)"]), I("s_barrier")]
        tailv = []
        for idx, j in enumerate(list(range(1, 8)) + [0]):
            B = (V_AKX if idx & 1 else V_T)
            cv = []
            for u in range(4):
                for k in range(2):
                    ins = I("v_cvt_pk_bf16_f32 v%d, v%d, v%d" % (B + 2 * u + k, acc(u, j) + 2 * k, acc(u, j) + 2 * k + 1))
                    if j: cv.append(Op(ins, done[(u, j)] + 5, done[(3, j)] + 20))
                    else: tailv.append(ins)
            st = [I("buffer_store_dwordx4 %s, v%d, %s, s%d offen offset:%d%s" % (vr(B + 4 * hf), V_L16, sr(SRD_WS), S_SO, hf * 1024, c.get("psc", "")), "pst") for hf in range(2)]
            pre = [I("s_xor_b32 s%d, s%d, 0x%x" % (S_SO, S_PB, j << 16))]
            if j:
                C += cv
                D.append(Op(st[0], done[(1, j)] + 6, done[(3, j)] + 8, hard=done[(3, j)] + 24, pre=pre, dep=cv[:4]))
                D.append(Op(st[1], done[(3, j)] + 6, done[(3, j)] + 10, hard=done[(3, j)] + 25, dep=cv[4:]))
            else: tailv += pre + st
        schedule(G, L, D, X, C, "phaseC")
        self.add(G.flatten())
        self.add(tailv)

    def fallback(self):
        t = lambda s: self.tail.append(I(s)); T = V_T
        t("L_fallback:")
        t("s_waitcnt vmcnt(0) lgkmcnt(0)"); t("s_barrier")
        t("s_mov_b32 s%d, 1" % S_RETRY); t("s_mov_b32 s%d, 0" % S_KC)
        M = [V_NEGM + 4 * u for u in range(4)]
        for u in range(4): t("v_mov_b32 v%d, 0xff800000" % M[u])
        t("L_fb_loop:")
        t("s_add_u32 m0, s%d, 0x%x" % (S_L4, KSL(0))); t("s_add_u32 s%d, s%d, s%d" % (S_SO, S_KVB, S_KC))
        for j in range(4): t("buffer_load_dwordx4 v%d, %s, s%d offen offset:%d lds" % (V_OK + j, sr(SRD_K), S_SO, j * 1024))
        t("s_waitcnt vmcnt(0)"); t("s_barrier")
        for ad in (V_AKX, V_AKY):
            for kt in range(2):
                for s in range(4): t("ds_read_b128 %s, v%d offset:%d" % (ar(A_XF + 4 * s), ad + s, KSL(0) - K_WIN + kt * 4096))
                t("s_waitcnt lgkmcnt(0)")
                for u in range(4):
                    for s in range(4):
                        Dd = V_SY + 4 * u
                        t("%s %s, %s, %s, %s" % (MF, vr(Dd), ar(A_XF + 4 * s), ar(A_Q + 16 * u + 4 * s), "0" if s == 0 else vr(Dd)))
                t("s_nop 7")
                for u in range(4):
                    Dd = V_SY + 4 * u
                    t("v_max3_f32 v%d, v%d, v%d, v%d" % (M[u], M[u], Dd, Dd + 1)); t("v_max3_f32 v%d, v%d, v%d, v%d" % (M[u], M[u], Dd + 2, Dd + 3))
                t("s_nop 1")
        t("s_barrier")
        t("s_add_u32 s%d, s%d, 0x4000" % (S_KC, S_KC)); t("s_cmp_lt_u32 s%d, 0x20000" % S_KC); t("s_cbranch_scc1 L_fb_loop")
        for u in range(4): t("v_mov_b32 v%d, v%d" % (V_SY + u, M[u]))
        save = self.ins; self.ins = self.tail
        self.rowmax_finish([V_SY + u for u in range(4)])
        for ch in sorted(self.c["kvA"]):
            for kind, i in self.c["kvA"][ch]: self.add(flat(tile_dma(kind, i, KSL(i) if kind == "K" else VSL(i), 0, 0)))
        self.ins = save
        t("s_waitcnt vmcnt(0)"); t("s_barrier"); t("s_branch L_attn")

    def build(self):
        a = self
        self.prologue(); self.phaseA(); self.stamp(); self.transAB()
        a("v_add_u32 v%d, 0x%x, v%d" % (V_SCR, SL(2), V_SCR))
        self.premax(); self.stamp()
        a("s_waitcnt lgkmcnt(0)")
        a("L_attn:")
        self.attention(); self.stamp(); self.transBC(); self.stamp(); self.phaseC(); self.stamp()
        self.fallback()
        main = insert_waits(self.ins)
        main, n1 = fix_hazards(main, self.c.get("verbose"))
        tail, n2 = fix_hazards(self.tail)
        sys.stderr.write("hazard pads %d, instructions %d\n" % (n1, len(main) + len(tail)))
        A = Asm()
        for i in main:
            if i.kind == "label": A.raw(i.t)
            else: A(i.t)
        if self.c.get("stamps"):
            A("s_waitcnt vmcnt(0)")
            b = STAMP0 + 4 * self.nst; self.nst += 1
            A("s_memrealtime s[%d:%d]" % (b, b + 1)); A("s_memtime s[%d:%d]" % (b + 2, b + 3))
            A.stamps_init(STAMP0, self.nst); A.stamps_flush(18, 2, 3, S_T0, v0=2)
            sys.stderr.write("stamps: %d\n" % (2 * self.nst))
        A.label("L_end"); A("s_endpgm")
        for i in tail:
            if i.kind == "label": A.raw(i.t)
            else: A(i.t)
        A.label("L_codeend")
        return A.text()

def reduce_kernel():
    a = Asm()
    a("s_cmp_ge_u32 s2, 256"); a("s_cbranch_scc1 R_end")
    a("s_load_dwordx2 s[4:5], s[0:1], 40"); a("s_load_dwordx2 s[6:7], s[0:1], 56")
    a("v_lshrrev_b32 v1, 6, v0"); a("v_and_b32 v0, 63, v0"); a("v_readfirstlane_b32 s3, v1"); a("v_lshlrev_b32 v2, 4, v0")
    a("s_waitcnt lgkmcnt(0)")
    a("s_mov_b32 s8, s4"); a("s_and_b32 s9, s5, 0xffff"); a("s_mov_b32 s10, %d" % (8 * 224 * 512 * 2)); a("s_mov_b32 s11, 0x20000")
    a("s_mov_b32 s12, s6"); a("s_and_b32 s13, s7, 0xffff"); a("s_mov_b32 s14, 0x%x" % WS_BYTES); a("s_mov_b32 s15, 0x20000")
    a("s_lshl_b32 s16, s2, 16"); a("s_lshl_b32 s17, s3, 11"); a("s_add_u32 s16, s16, s17"); a("s_add_u32 s16, s16, 0x%x" % PB_OFF)
    for hg in range(8):
        a("s_add_u32 s17, s16, %d" % (hg * 8192)); a("s_xor_b32 s18, s17, 2048")
        a("buffer_load_dwordx4 %s, v2, s[12:15], s17 offen" % vr(32 + 12 * hg))
        a("buffer_load_dwordx4 %s, v2, s[12:15], s17 offen offset:1024" % vr(36 + 12 * hg))
        a("buffer_load_dwordx2 %s, v2, s[12:15], s18 offen offset:1032" % vr(40 + 12 * hg, 2))
    a("s_lshr_b32 s19, s2, 5"); a("s_mul_i32 s19, s19, 224"); a("s_lshr_b32 s20, s3, 1"); a("s_mul_i32 s20, s20, 112"); a("s_add_u32 s19, s19, s20")
    a("s_lshl_b32 s19, s19, 10"); a("s_and_b32 s20, s2, 31"); a("s_lshl_b32 s20, s20, 5"); a("s_add_u32 s19, s19, s20")
    a("s_and_b32 s20, s3, 1"); a("s_lshl_b32 s21, s20, 16"); a("s_add_u32 s21, s21, s19"); a("s_add_u32 s22, s19, %d" % (48 * 1024))
    a("v_and_b32 v3, 15, v0"); a("v_lshlrev_b32 v3, 10, v3"); a("v_lshrrev_b32 v4, 4, v0"); a("v_lshl_add_u32 v3, v4, 3, v3")
    for k in range(16): a("v_mov_b32 v%d, 0" % (8 + k))
    for hg in range(8):
        a("s_waitcnt vmcnt(%d)" % (21 - 3 * hg))
        for d in range(10):
            src = 32 + 12 * hg + d; dd = d if d < 8 else d - 2
            a("v_lshlrev_b32 v4, 16, v%d" % src); a("v_and_b32 v5, 0xffff0000, v%d" % src)
            a("v_add_f32 v%d, v%d, v4" % (8 + 2 * dd, 8 + 2 * dd)); a("v_add_f32 v%d, v%d, v5" % (9 + 2 * dd, 9 + 2 * dd))
    for d in range(8): a("v_cvt_pk_bf16_f32 v%d, v%d, v%d" % (24 + d, 8 + 2 * d, 9 + 2 * d))
    for u in range(3):
        a("buffer_store_dwordx2 %s, v3, s[8:11], s21 offen" % vr(24 + 2 * u, 2)); a("s_add_u32 s21, s21, 16384")
    a("s_cmp_eq_u32 s20, 1"); a("s_cbranch_scc1 R_end")
    a("buffer_store_dwordx2 %s, v3, s[8:11], s22 offen" % vr(30, 2))
    a.label("R_end"); a("s_endpgm")
    return a.text()

DEFAULT = dict(
    kvA={5: [("K", 0)], 6: [("V", 0), ("K", 1)], 7: [("V", 1)]},
    kvB={-1: [("K", 2)], 0: [("V", 2), ("K", 3)], 1: [("V", 3), ("K", 4)], 2: [("V", 4), ("K", 5)], 3: [("V", 5), ("K", 6)], 4: [("V", 6), ("K", 7)],
         5: [("V", 7), ("WO", (0, 0))], 6: [("WO", (0, 1)), ("WO", (1, 0)), ("WO", (1, 1))], 7: [("WO", (2, 0)), ("WO", (2, 1)), ("WO", (3, 0))]},
    touch_n=20,
)
HEADER = open("standalone__gqa_block_cached__near_ridge.s.ref").read().split("; Override")[0]

def generate(fn, **kw):
    cfg = dict(DEFAULT); cfg.update(kw)
    body = K(cfg).build()
    ks = [("attn_kernel", body, 256, 256, 163840, 512, 256), ("reduce_kernel", reduce_kernel(), 256, 256, 0, 128, 128)]
    open(fn, "w").write(wrap(ks, HEADER))

if __name__ == "__main__":
    import ast
    kw = {}
    for x in sys.argv[2:]:
        k, v = x.split("=", 1)
        try: v = ast.literal_eval(v)
        except Exception: pass
        kw[k] = v
    generate(sys.argv[1], **kw)
```

```python
import sys, math, struct
from asmlib import Asm, wrap, KN, STAMP_OFF
from stream import *

MF = "v_mfma_f32_16x16x32_bf16"
def vr(b, n=4): return "v[%d:%d]" % (b, b + n - 1)
def ar(b, n=4): return "a[%d:%d]" % (b, b + n - 1)
def sr(b, n=4): return "s[%d:%d]" % (b, b + n - 1)
def f2u(x): return struct.unpack("<I", struct.pack("<f", x))[0]

S_WG, S_W = 2, 3
SRD_X, SRD_WQ, SRD_K, SRD_V, SRD_WO, SRD_WS, SRD_OUT, SRD_DBG = 20, 24, 28, 32, 36, 40, 44, 48
S_B, S_H, S_HG, S_CQ, S_E, S_ROT = 4, 5, 6, 7, 8, 9
S_XB, S_WB, S_KVB, S_WOB, S_LX, S_L4 = 10, 11, 12, 13, 14, 15
S_OB, S_PB = 16, 17
S_C0 = 52
S_SO = 54
S_T0, S_T1, S_T2, S_T3 = 55, 56, 57, 58
S_XCC, S_RETRY, S_FL = 59, 60, 61
S_KC = 62
S_SPIN = 63
SPIN_MAX = 1 << 20
STAMP0 = 64
V_OK, V_OV, V_OO = 8, 12, 14
V_L16, V_L0, V_POLL, V_SCR = 18, 19, 20, 21
V_AKX, V_AKY, V_AVX, V_AVY = 22, 26, 30, 38
V_T = 46
V_SX, V_SY = 56, 88
V_NEGM = 112
V_O = 128
V_OX, V_OW, V_AX, V_AW = 56, 60, 64, 68
A_Q, A_L, A_ONE, A_XF, A_RING = 0, 64, 80, 96, 192
NRING = 16
SL = lambda i: i * 16384
XS = lambda c: ((7 - c) % 3) * 28672
WS_ = lambda c: SL(6 + (7 - c) % 3)
KSL = lambda i: SL([9, 8, 7][i % 3])
VSL = lambda i: SL([5, 4, 6][i % 3])
WOSL = {(0, 0): SL(0), (0, 1): SL(1), (1, 0): SL(2), (1, 1): SL(3), (2, 0): SL(7), (2, 1): SL(6), (3, 0): SL(9), (3, 1): SL(8)}
K_WIN, V_WIN, WQ_WIN = SL(6), SL(4), SL(6)
QSCR = SL(2); OSCR = SL(5); LSCR = SL(8)
OB_OFF, FL_OFF, PB_OFF = 0, 16 << 20, 32 << 20
WS_BYTES = 256 << 20
ACT = (0, 1, 4, 5)

class Op:
    def __init__(self, ins, lo, hi, hard=None, pre=(), dep=None):
        self.i = ins; self.lo = lo; self.hi = hi; self.hard = hi if hard is None else hard; self.pre = list(pre); self.dep = dep; self.g = None; self.use = self.hard + 1

def schedule(G, L, D, X, C, name=""):
    n = G.n()
    for q in (L, D, X, C):
        for k in range(len(q) - 2, -1, -1):
            q[k].hi = min(q[k].hi, q[k + 1].hi - 1); q[k].hard = min(q[k].hard, q[k + 1].hard)
    ptr = {"L": 0, "D": 0, "X": 0, "C": 0}; Q = {"L": L, "D": D, "X": X, "C": C}
    lastD = [-5]
    def head(k):
        return Q[k][ptr[k]] if ptr[k] < len(Q[k]) else None
    def avail(o, g, strict=True):
        if o is None or o.lo > g: return False
        if o.dep is not None:
            for d in o.dep:
                if d.g is None or (strict and d.g >= g): return False
        return True
    def put(k, g):
        o = head(k); o.g = g; ptr[k] += 1
        if g < 0:
            G.head += o.pre + [o.i]; return
        if k in "LD":
            pre = list(o.pre)
            if k == "D":
                if len(pre) >= 2 and lastD[0] < g - 1 and g - 1 >= 0 and o.lo <= g - 1 and not G.pre[g - 1]:
                    G.pre[g - 1].append(pre.pop(0))
                lastD[0] = g
            if G.mem[g] and pre: G.mem[g] += pre + [o.i]
            else: G.pre[g] += pre; G.mem[g].append(o.i)
        else: G.val[g].append(o.i)
    over = 0
    for g in range(-1, n):
        if g >= 0:
            cands = [(head(k).hi, k) for k in "LDX" if avail(head(k), g)]
            if cands and G.cost(g) <= 0:
                put(min(cands)[1], g)
            while G.cost(g) <= 4:
                if avail(head("C"), g): put("C", g)
                elif avail(head("X"), g) and head("X").i.op not in TRANS: put("X", g)
                else: break
        if g < 0:
            while head("L") is not None and head("L").hi < 0 and head("L").lo < 0: put("L", g)
        ch = True
        while ch:
            ch = False
            for k in "LDXC":
                o = head(k)
                if o is not None and o.hard <= g:
                    assert avail(o, g, False), "%s: cannot meet hard deadline g=%d lo=%d %s" % (name, g, o.lo, o.i.t)
                    put(k, g); ch = True; over += g >= 0
    for k in "LDXC": assert head(k) is None, (name, k, head(k).i.t, head(k).lo, n)
    leads = sorted(o.use - o.g for o in L if o.g >= 0)
    sys.stderr.write("%s: mfma %d est %d cycles (floor %d), forced %d, lds leads min %s\n" % (name, n, G.est(), 16 * n, over, leads[:24]))

class Ring:
    def __init__(self): self.k = 0; self.free_at = [-1] * NRING
    def alloc(self, last_use):
        s = self.k % NRING; self.k += 1; lo = self.free_at[s]; self.free_at[s] = last_use
        return A_RING + 4 * s, lo
    def peek(self, ahead=0): return A_RING + 4 * ((self.k + ahead) % NRING)

def tile_dma(kind, idx, lds, lo, hi, nt=True):
    ops = []
    if kind == "K": srd, vo, base, off, fl = SRD_K, lambda j: V_OK + j, S_KVB, idx * 16384, " nt" if nt else ""
    elif kind == "V": srd, vo, base, off, fl = SRD_V, lambda j: V_OV + (j & 1), S_KVB, idx * 16384, " nt" if nt else ""
    elif kind == "WO": srd, vo, fl = SRD_WO, lambda j: V_OO + j, ""
    tag = "%s%s" % (kind, idx)
    for j in range(4):
        pre = []
        if j == 0:
            pre = [I("s_add_u32 m0, s%d, 0x%x" % (S_L4, lds))]
            if kind == "WO":
                hh, half = idx
                pre += [I("s_xor_b32 s%d, s%d, 0x%x" % (S_SO, S_WOB, (hh << 17) | (half << 16)))]
            else: pre += [I("s_add_u32 s%d, s%d, 0x%x" % (S_SO, base, off))]
        h = lo + (hi - lo) * (j + 1) // 4
        ops.append(Op(I("buffer_load_dwordx4 v%d, %s, s%d offen offset:%d%s lds" % (vo(j), sr(srd), S_SO, j * 1024, fl), tag), lo, h, hard=hi, pre=pre))
    return ops

def stage_dma(c, lo, hi):
    ops = []; tag = "A%d" % c
    seq = []
    pre = [I("s_add_u32 s%d, s%d, %d" % (S_KC, S_ROT, c)), I("s_and_b32 s%d, s%d, 7" % (S_KC, S_KC)),
           I("s_lshl_b32 s%d, s%d, 19" % (S_SO, S_KC)), I("s_add_u32 m0, s%d, 0x%x" % (S_L4, WS_(c))), I("s_add_u32 s%d, s%d, s%d" % (S_SO, S_SO, S_WB))]
    for j in range(4):
        seq.append((I("buffer_load_dwordx4 v%d, %s, s%d offen offset:%d lds" % (V_OW + j, sr(SRD_WQ), S_SO, j * 1024), tag), pre if j == 0 else []))
    for j in range(7):
        p = []
        if j == 0: p = [I("s_add_u32 m0, s%d, 0x%x" % (S_LX, XS(c))), I("s_lshl_b32 s%d, s%d, 7" % (S_SO, S_KC)), I("s_add_u32 s%d, s%d, s%d" % (S_SO, S_SO, S_XB))]
        if j == 4: p = [I("s_add_u32 m0, s%d, 0x%x" % (S_LX, XS(c) + 4096)), I("s_add_u32 s%d, s%d, 0x8000" % (S_SO, S_SO))]
        seq.append((I("buffer_load_dwordx4 v%d, %s, s%d offen offset:%d lds" % (V_OX + (j & 3), sr(SRD_X), S_SO, (j & 3) * 1024), tag), p))
    for k, (ins, p) in enumerate(seq):
        ops.append(Op(ins, lo, lo + (hi - lo) * (k + 1) // len(seq), hard=hi, pre=p))
    return ops

def flat(ops):
    out = []
    for o in ops: out += o.pre + [o.i]
    return out

class K:
    def __init__(self, cfg):
        self.c = cfg; self.ins = []; self.nst = 0
    def __call__(self, s, tag=None):
        for l in s.split("\n"):
            l = l.strip()
            if l: self.ins.append(I(l, tag))
    def add(self, lst): self.ins += lst
    def stamp_ins(self, name):
        st = self.c.get("stamps")
        if not st or name not in st.split(","): return []
        b = STAMP0 + 4 * (1 + st.split(",").index(name))
        assert b + 7 <= 101
        return [I("s_waitcnt lgkmcnt(0)"), I("s_memrealtime s[%d:%d]" % (b, b + 1)), I("s_memtime s[%d:%d]" % (b + 2, b + 3)), I("s_waitcnt lgkmcnt(0)")]
    def stamp(self, name): self.add(self.stamp_ins(name))
    def gstamps(self, G, prefix):
        for nm in (self.c.get("stamps") or "").split(","):
            if nm.startswith(prefix) and nm[len(prefix):].isdigit(): G.val[int(nm[len(prefix):])] += self.stamp_ins(nm)

    def prologue(self):
        a = self; c = self.c
        a("s_cmp_ge_u32 s2, 256"); a("s_cbranch_scc1 L_end")
        a("s_load_dwordx16 s[4:19], s[0:1], 0")
        if c.get("stamps"):
            a("s_memrealtime s[%d:%d]" % (STAMP0, STAMP0 + 1)); a("s_memtime s[%d:%d]" % (STAMP0 + 2, STAMP0 + 3)); self.nst = 1
        a("v_lshrrev_b32 v1, 6, v0"); a("v_and_b32 v0, 63, v0"); a("v_readfirstlane_b32 s3, v1")
        T = V_T
        a("v_lshrrev_b32 v1, 4, v0"); a("v_and_b32 v2, 15, v0"); a("v_lshrrev_b32 v3, 3, v0"); a("v_and_b32 v4, 7, v0")
        a("v_lshlrev_b32 v5, 1, v1"); a("v_xor_b32 v5, v5, v2"); a("v_lshlrev_b32 v5, 4, v5")
        a("v_lshl_add_u32 v%d, v1, 13, v5" % V_OW)
        a("v_add_u32 v%d, %d, v%d" % (V_OW + 1, 31744, V_OW))
        a("v_xor_b32 v6, 0x80, v%d" % V_OW)
        a("v_add_u32 v%d, %d, v6" % (V_OW + 2, 2 * 31744)); a("v_add_u32 v%d, %d, v6" % (V_OW + 3, 3 * 31744))
        a("s_and_b32 s%d, s3, 1" % S_T0); a("s_lshl_b32 s%d, s%d, 6" % (S_T1, S_T0))
        a("v_xor_b32 v6, v4, v1"); a("v_lshlrev_b32 v6, 4, v6"); a("v_lshl_add_u32 v6, v3, 10, v6")
        a("v_xor_b32 v%d, s%d, v6" % (V_OX, S_T1))
        a("v_xor_b32 v7, 64, v%d" % V_OX)
        a("v_add_u32 v%d, %d, v7" % (V_OX + 1, 7168)); a("v_add_u32 v%d, %d, v%d" % (V_OX + 2, 2 * 7168, V_OX)); a("v_add_u32 v%d, %d, v7" % (V_OX + 3, 3 * 7168))
        a("s_and_b32 s%d, s2, 7" % S_T2); a("s_lshr_b32 s%d, s2, 3" % S_T3)
        a("s_waitcnt lgkmcnt(0)")
        def srd(d, base, nb):
            a("s_mov_b32 s%d, s%d" % (d, base)); a("s_and_b32 s%d, s%d, 0xffff" % (d + 1, base + 1)); a("s_mov_b32 s%d, 0x%x" % (d + 2, nb)); a("s_mov_b32 s%d, 0x20000" % (d + 3))
        srd(SRD_X, 4, 8 * 224 * 512 * 2); srd(SRD_WQ, 10, 512 * 4096 * 2)
        srd(SRD_K, 6, 8 * 32 * 512 * 128 * 2); srd(SRD_V, 8, 8 * 32 * 512 * 128 * 2); srd(SRD_WO, 12, 4096 * 512 * 2)
        srd(SRD_OUT, 14, 8 * 224 * 512 * 2); srd(SRD_DBG, 16, 256); srd(SRD_WS, 18, WS_BYTES)
        a("s_mov_b32 s%d, s%d" % (S_E, S_T0))
        if c.get("map", 2) == 2:
            a("s_and_b32 s%d, s%d, 7" % (S_B, S_T3)); a("s_lshr_b32 s%d, s%d, 3" % (S_CQ, S_T3)); a("s_mov_b32 s%d, s%d" % (S_HG, S_T2))
            a("s_lshl_b32 s%d, s%d, 2" % (S_H, S_HG)); a("s_add_u32 s%d, s%d, s%d" % (S_H, S_H, S_CQ))
        else:
            a("s_and_b32 s%d, s%d, 1" % (S_B, S_T2)); a("s_lshl_b32 s%d, s%d, 2" % (S_B, S_B)); a("s_and_b32 s%d, s%d, 3" % (S_T0, S_T3)); a("s_add_u32 s%d, s%d, s%d" % (S_B, S_B, S_T0))
            a("s_lshr_b32 s%d, s%d, 1" % (S_H, S_T2)); a("s_lshl_b32 s%d, s%d, 3" % (S_H, S_H)); a("s_lshr_b32 s%d, s%d, 2" % (S_T0, S_T3)); a("s_add_u32 s%d, s%d, s%d" % (S_H, S_H, S_T0))
            a("s_lshr_b32 s%d, s%d, 2" % (S_HG, S_H)); a("s_and_b32 s%d, s%d, 3" % (S_CQ, S_H))
        a("s_mov_b32 s%d, s%d" % (S_ROT, S_T2))
        a("s_mul_i32 s%d, s%d, %d" % (S_XB, S_B, 229376)); a("s_mul_i32 s%d, s3, %d" % (S_T0, 57344)); a("s_add_u32 s%d, s%d, s%d" % (S_XB, S_XB, S_T0))
        a("s_lshl_b32 s%d, s%d, 8" % (S_WB, S_H)); a("s_lshl_b32 s%d, s3, 17" % S_T0); a("s_add_u32 s%d, s%d, s%d" % (S_WB, S_WB, S_T0))
        a("s_mul_i32 s%d, s3, 7168" % S_LX); a("s_lshl_b32 s%d, s3, 12" % S_L4)
        a.add(flat(stage_dma(0, 0, 0)))
        if c.get("touch", 1):
            a("s_getpc_b64 s[%d:%d]" % (S_T1, S_T2)); a("L_pc:")
            a("s_and_b32 s%d, s%d, 3" % (S_T0, S_T3)); a("s_lshl_b32 s%d, s%d, 2" % (S_T0, S_T0)); a("s_add_u32 s%d, s%d, s3" % (S_T0, S_T0)); a("s_mul_i32 s%d, s%d, %d" % (S_T0, S_T0, c["touch_n"] * 128))
            a("v_min_u32 v6, %d, v0" % (c["touch_n"] - 1)); a("v_lshl_add_u32 v6, v6, 7, s%d" % S_T0)
            a("v_min_u32 v6, L_codeend-L_pc-4, v6")
            a("global_load_dword v%d, v6, s[%d:%d]" % (V_T + 9, S_T1, S_T2), "touch")
        a.add(flat(stage_dma(1, 0, 0)))
        a("s_lshl_b32 s%d, s%d, 5" % (S_T0, S_B)); a("s_add_u32 s%d, s%d, s%d" % (S_T0, S_T0, S_H))
        a("s_lshl_b32 s%d, s%d, 17" % (S_KVB, S_T0)); a("s_add_u32 s%d, s%d, s%d" % (S_KVB, S_KVB, S_L4))
        a("s_lshl_b32 s%d, s%d, 2" % (S_T0, S_T0)); a("s_add_u32 s%d, s%d, s3" % (S_T0, S_T0))
        a("s_lshl_b32 s%d, s%d, 14" % (S_OB, S_T0))
        a("s_lshl_b32 s%d, s%d, 7" % (S_FL, S_T0)); a("s_add_u32 s%d, s%d, 0x%x" % (S_FL, S_FL, FL_OFF))
        a("s_lshl_b32 s%d, s%d, 17" % (S_WOB, S_H)); a("s_lshl_b32 s%d, s3, 14" % S_T0); a("s_add_u32 s%d, s%d, s%d" % (S_WOB, S_WOB, S_T0))
        a("s_lshl_b32 s%d, s%d, 8" % (S_T0, S_CQ)); a("s_add_u32 s%d, s%d, s%d" % (S_WOB, S_WOB, S_T0))
        a("s_lshl_b32 s%d, s%d, 2" % (S_T0, S_B)); a("s_add_u32 s%d, s%d, s%d" % (S_T0, S_T0, S_CQ)); a("s_lshl_b32 s%d, s%d, 3" % (S_T0, S_T0)); a("s_add_u32 s%d, s%d, s%d" % (S_T0, S_T0, S_HG))
        a("s_lshl_b32 s%d, s%d, 3" % (S_T0, S_T0)); a("s_add_u32 s%d, s%d, s%d" % (S_T0, S_T0, S_HG)); a("s_lshl_b32 s%d, s%d, 2" % (S_T0, S_T0)); a("s_add_u32 s%d, s%d, s3" % (S_T0, S_T0))
        a("s_lshl_b32 s%d, s%d, 11" % (S_PB, S_T0)); a("s_add_u32 s%d, s%d, 0x%x" % (S_PB, S_PB, PB_OFF))
        cc = f2u(math.log2(math.e) / math.sqrt(128.0))
        a("s_mov_b32 s%d, 0x%x" % (S_C0, cc)); a("s_mov_b32 s%d, 0x%x" % (S_C0 + 1, cc))
        a("s_getreg_b32 s%d, hwreg(HW_REG_XCC_ID, 0, 4)" % S_XCC); a("s_mov_b32 s%d, 0" % S_RETRY); a("s_mov_b32 s%d, 0" % S_SPIN)
        a("v_lshlrev_b32 v%d, 4, v0" % V_L16)
        a("v_cmp_eq_u32 vcc, 0, v0"); a("v_bfrev_b32 v6, 1"); a("v_cndmask_b32 v%d, v6, 0, vcc" % V_L0)
        a("v_mov_b32 v6, 0")
        a("buffer_store_dword v6, v%d, %s, s%d offen sc1" % (V_L0, sr(SRD_WS), S_FL), "flagreset")
        a("v_and_b32 v6, 3, v0"); a("v_lshlrev_b32 v%d, 9, v6" % V_POLL); a("v_xor_b32 v%d, s%d, v%d" % (V_POLL, S_FL, V_POLL))
        a("v_xor_b32 v7, v2, v1"); a("v_lshlrev_b32 v7, 4, v7"); a("v_lshl_add_u32 v%d, v1, 8, v7" % V_OK)
        for j in (1, 2, 3): a("v_xor_b32 v%d, %d, v%d" % (V_OK + j, j << 6, V_OK))
        a("v_lshl_add_u32 v%d, v1, 8, v5" % V_OV); a("v_xor_b32 v%d, 0x80, v%d" % (V_OV + 1, V_OV))
        a("v_lshl_add_u32 v%d, v1, 10, v5" % V_OO); a("v_xor_b32 v7, 0x80, v%d" % V_OO)
        a("v_add_u32 v%d, 3072, v7" % (V_OO + 1)); a("v_add_u32 v%d, 6144, v%d" % (V_OO + 2, V_OO)); a("v_add_u32 v%d, 9216, v7" % (V_OO + 3))
        a("v_lshrrev_b32 v7, 1, v2"); a("v_xor_b32 v7, v7, v1"); a("v_lshlrev_b32 v7, 4, v7"); a("v_lshl_add_u32 v7, v2, 7, v7")
        a("s_lshr_b32 s%d, s3, 1" % S_T0); a("s_mul_i32 s%d, s%d, %d" % (S_T0, S_T0, 7 * 2048))
        a("s_lshl_b32 s%d, s%d, 13" % (S_T1, S_E)); a("s_add_u32 s%d, s%d, s%d" % (S_T2, S_T0, S_T1)); a("s_add_u32 s%d, s%d, %d" % (S_T0, S_T0, 3 * 2048))
        a("v_add_u32 v%d, s%d, v7" % (V_AX, S_T2)); a("v_xor_b32 v%d, 64, v%d" % (V_AX + 1, V_AX))
        a("v_add_u32 v%d, s%d, v7" % (V_AX + 2, S_T0)); a("v_xor_b32 v%d, 64, v%d" % (V_AX + 3, V_AX + 2))
        a("v_lshrrev_b32 v3, 2, v2"); a("v_and_b32 v4, 1, v1"); a("v_lshl_or_b32 v4, v4, 2, v3")
        a("s_lshl_b32 s%d, s%d, 1" % (S_T0, S_E)); a("v_xor_b32 v4, s%d, v4" % S_T0); a("v_lshlrev_b32 v4, 5, v4"); a("v_lshl_add_u32 v4, v6, 3, v4")
        a("v_lshl_add_u32 v7, v1, 3, v3"); a("v_lshl_add_u32 v7, v7, 8, v4"); a("v_add_u32 v%d, 0x%x, v7" % (V_AW, WQ_WIN))
        for j in range(1, 8): a("v_xor_b32 v%d, %d, v%d" % (V_AW + j, j << 5, V_AW))
        a("v_lshl_add_u32 v7, v1, 2, v3"); a("v_lshl_add_u32 v7, v7, 8, v4")
        a("s_add_u32 s%d, s%d, 0x%x" % (S_T2, S_T1, V_WIN)); a("v_add_u32 v%d, s%d, v7" % (V_AVX, S_T2))
        for j in range(1, 8): a("v_xor_b32 v%d, %d, v%d" % (V_AVX + j, j << 5, V_AVX))
        for j in range(8): a("v_xor_b32 v%d, 0x2000, v%d" % (V_AVY + j, V_AVX + j))
        a("v_and_b32 v7, 1, v1"); a("v_lshlrev_b32 v7, 1, v7"); a("v_lshrrev_b32 v3, 1, v1"); a("v_or_b32 v7, v7, v3")
        a("s_lshl_b32 s%d, s%d, 2" % (S_T0, S_E)); a("v_xor_b32 v7, s%d, v7" % S_T0); a("v_xor_b32 v7, v7, v2"); a("v_lshlrev_b32 v7, 4, v7"); a("v_lshl_add_u32 v7, v2, 8, v7")
        a("s_add_u32 s%d, s%d, 0x%x" % (S_T2, S_T1, K_WIN)); a("v_add_u32 v%d, s%d, v7" % (V_AKX, S_T2))
        for s in range(1, 4): a("v_xor_b32 v%d, %d, v%d" % (V_AKX + s, s << 6, V_AKX))
        for s in range(4): a("v_xor_b32 v%d, 0x2000, v%d" % (V_AKY + s, V_AKX + s))
        a("v_mov_b32 v7, 0x3f803f80")
        for k in range(4): a("v_accvgpr_write_b32 a%d, v7" % (A_ONE + k))
        a("v_add_u32 v%d, s%d, v%d" % (V_SCR, S_L4, V_L16))

    def acc(self, u, j): return V_O + (u * 8 + j) * 4 if u < 3 else V_O + 96 + 4 * ACT.index(j)
    def phaseA(self):
        c = self.c
        G = Gaps(); ring = Ring(); L = []; D = []
        LEAD = c.get("leadA", 10); BOFF = c.get("boffA", 16); BUB = c.get("bubA", 5)
        xf = lambda ch, u, ks: A_XF + 32 * (ch & 1) + 8 * u + 4 * ks
        bar = {ch: 56 * ch - BOFF for ch in range(1, 8)}; bar[0] = -1; bar[8] = 10 ** 6
        xlast = {}
        for ch in range(8):
            Lx = []; Lw = []
            firstx = {}
            for j in range(8):
                us = [0, 1, 2] + ([3] if j in ACT else [])
                m0 = G.n(); last = m0 + 2 * len(us) - 1
                fr = []
                for ks in range(2):
                    reg, lo = ring.alloc(last - 1 + ks); fr.append(reg)
                    for eh in range(2):
                        Lw.append((m0 + ks, Op(I("ds_read_b64_tr_b16 %s, v%d offset:%d" % (ar(reg + 2 * eh, 2), V_AW + j, WS_(ch) - WQ_WIN + ks * 8192 + eh * 1024)),
                                               max(lo, bar[ch]), min(m0 + ks - LEAD, bar[ch + 1] - BUB), hard=min(m0 + ks - 1, bar[ch + 1] - 1))))
                for u in us:
                    for ks in range(2):
                        A = self.acc(u, j)
                        m = G.mfma("%s %s, %s, %s, %s" % (MF, vr(A), ar(fr[ks]), ar(xf(ch, u, ks)), "0" if ch == 0 and ks == 0 else vr(A)))
                        firstx.setdefault((u, ks), m); xlast[(ch, u, ks)] = m
            for (u, ks), m in firstx.items():
                lo = max(bar[ch], xlast.get((ch - 2, u, ks), -1))
                Lx.append((m, Op(I("ds_read_b128 %s, v%d offset:%d" % (ar(xf(ch, u, ks)), V_AX + (2 if u == 3 else 0) + ks, XS(ch) + (u * 2048 if u < 3 else 0))), lo, m - LEAD, hard=m - 1)))
            L += [o for m, o in sorted(Lx + Lw, key=lambda t: t[0])]
        n = G.n()
        for ch in range(8):
            lo = max(bar[ch], 0); hi = min(bar[ch + 1] - 1, n - 1)
            extra = c["kvA"].get(ch, [])
            if ch + 2 < 8:
                mid = hi if not extra else lo + (hi - lo) * 11 // (11 + 4 * len(extra))
                D += stage_dma(ch + 2, lo, mid); lo = mid
            for k, (kind, i) in enumerate(extra):
                l0 = lo + (hi - lo) * k // len(extra); h0 = lo + (hi - lo) * (k + 1) // len(extra)
                D += tile_dma(kind, i, KSL(i) if kind == "K" else VSL(i), max(bar[ch], 0), h0, c.get("nt", True))
        for ch in range(1, 8): G.pre[bar[ch]] += [W(vm="A%d" % ch, lgkm0=True), I("s_barrier")]
        self.add([W(vm="A0"), I("s_barrier")])
        self.stamp("A0")
        schedule(G, L, D, [], [], "phaseA"); self.gstamps(G, "a")
        self.add(G.flatten())

    def transAB(self):
        a = self
        fr = [(u, s) for u in (3, 0, 1, 2) for s in range(4) if u < 3 or s % 2 == 0]
        base = lambda u, s: self.acc(u, 2 * s)
        def conv(lst):
            for u, s in lst:
                A = base(u, s)
                for k in range(4): a("v_pk_mul_f32 %s, %s, %s" % (vr(A + 2 * k, 2), vr(A + 2 * k, 2), sr(S_C0, 2)))
                for k in range(4): a("v_cvt_pk_bf16_f32 v%d, v%d, v%d" % (A + k, A + 2 * k, A + 2 * k + 1))
            for u, s in lst:
                A = base(u, s)
                a("v_permlane16_swap_b32 v%d, v%d" % (A, A + 2)); a("v_permlane16_swap_b32 v%d, v%d" % (A + 1, A + 3))
        conv(fr[:2])
        for k, (u, s) in enumerate(fr[:2]): a("ds_write_b128 v%d, %s offset:%d" % (V_SCR, vr(base(u, s)), QSCR + k * 1024))
        conv(fr[2:])
        for u, s in fr:
            for k in range(4): a("v_accvgpr_write_b32 a%d, v%d" % (A_Q + 16 * u + 4 * s + k, base(u, s) + k))
        a("v_xor_b32 v%d, 0x1000, v%d" % (V_T, V_SCR))
        a.add([W(vm="K0", lgkm0=True), I("s_barrier")])
        for k in range(2): a("ds_read_b128 %s, v%d offset:%d" % (ar(A_Q + 48 + 4 * (2 * k + 1)), V_T, QSCR + k * 1024))
        a("s_add_u32 s%d, s%d, 1" % (S_T0, S_XCC)); a("s_lshl_b32 s%d, s%d, 3" % (S_T1, S_CQ)); a("s_lshl_b32 s%d, s%d, s%d" % (S_T0, S_T0, S_T1))
        a("s_lshl_b32 s%d, s%d, 3" % (S_T1, S_B)); a("s_add_u32 s%d, s%d, s%d" % (S_T1, S_T1, S_HG)); a("s_lshl_b32 s%d, s%d, 2" % (S_T1, S_T1))
        a("s_lshl_b32 s%d, s3, 8" % S_T2); a("s_add_u32 s%d, s%d, s%d" % (S_T2, S_T2, S_T1))
        a("v_mov_b32 v%d, s%d" % (V_T + 1, S_T0))
        a("buffer_atomic_add v%d, v%d, %s, s%d offen" % (V_T + 1, V_L0, sr(SRD_DBG), S_T2), "hello")

    def rowmax_finish(self, M):
        a = self; T = V_T
        for u in range(4): a("v_mov_b32 v%d, v%d" % (T + u, M[u]))
        for u in range(4): a("v_permlane16_swap_b32 v%d, v%d" % (M[u], T + u))
        for u in range(4): a("v_max_f32 v%d, v%d, v%d" % (M[u], M[u], T + u))
        for u in range(4): a("v_mov_b32 v%d, v%d" % (T + u, M[u]))
        for u in range(4): a("v_permlane32_swap_b32 v%d, v%d" % (M[u], T + u))
        for u in range(4): a("v_max_f32 v%d, v%d, v%d" % (M[u], M[u], T + u))
        for u in range(4):
            for k in range(4): a("v_sub_f32 v%d, 0, v%d" % (V_NEGM + 4 * u + k, M[u]))

    def premax(self):
        a = self; T = V_T
        for s in range(4): a("v_and_b32 v%d, 0xffffdfff, v%d" % (T + 4 + s, V_AKX + s))
        for s in range(4): a("ds_read_b128 %s, v%d offset:%d" % (ar(A_XF + 4 * s), T + 4 + s, KSL(0) - K_WIN))
        for u in range(4):
            for s in range(4):
                D = V_SY + 4 * u
                a("%s %s, %s, %s, %s" % (MF, vr(D), ar(A_XF + 4 * s), ar(A_Q + 16 * u + 4 * s), "0" if s == 0 else vr(D)))
        for u in range(4):
            D = V_SY + 4 * u
            a("v_max3_f32 v%d, v%d, v%d, v%d" % (D, D, D + 1, D + 2))
        for u in range(4):
            D = V_SY + 4 * u
            a("v_max_f32 v%d, v%d, v%d" % (D, D, D + 3))
        self.rowmax_finish([V_SY + 4 * u for u in range(4)])

    def attention(self):
        c = self.c
        G = Gaps(); ring = Ring(); L = []; D = []; X = []; C = []
        LEAD = c.get("leadB", 10); BOFF = c.get("boffB", 13); BUB = c.get("bubB", 5); SLAT = 5
        pend = {}
        segs = [("QK", "X", 0), ("QK", "Y", 0)]
        for i in range(8):
            segs += [("PV", "X", i)] + ([("QK", "X", i + 1)] if i < 7 else []) + [("PV", "Y", i)] + ([("QK", "Y", i + 1)] if i < 7 else [])
        pos = {}; p = 0
        for sg in segs:
            pos[sg] = p; nu = 4 if sg[1] == "X" else 3
            p += 8 * nu + (nu if sg[0] == "PV" else 0)
        bar = {i: pos[("PV", "X", i)] - BOFF for i in range(8)}; bar[-1] = -1; bar[8] = 10 ** 6
        sm = []
        for op, un, i in segs:
            nu = 4 if un == "X" else 3; S = V_SX if un == "X" else V_SY
            if op == "QK":
                st = i - 1; ad = V_AKX if un == "X" else V_AKY
                pv0 = pos[("PV", un, i)]
                for kt in range(2):
                    m0 = G.n(); fr = []
                    for s in range(4):
                        reg, lo = ring.alloc(m0 + 4 * (nu - 1) + s); fr.append(reg)
                        L.append(Op(I("ds_read_b128 %s, v%d offset:%d" % (ar(reg), ad + s, KSL(i) - K_WIN + kt * 4096)),
                                    max(lo, bar[st]), min(m0 + s - LEAD, bar[st + 1] - BUB), hard=min(m0 + s - 1, bar[st + 1] - 1)))
                    for u in range(nu):
                        Dd = S + 8 * u + 4 * kt
                        for s in range(4):
                            m = G.mfma("%s %s, %s, %s, %s" % (MF, vr(Dd), ar(fr[s]), ar(A_Q + 16 * u + 4 * s), vr(V_NEGM + 4 * u) if s == 0 else vr(Dd)))
                        dl = pv0 + u - 2
                        ex = [Op(I("v_exp_f32 v%d, v%d" % (Dd + k, Dd + k)), m + SLAT, dl - 1) for k in range(4)]
                        cv = [Op(I("v_cvt_pk_bf16_f32 v%d, v%d, v%d" % (S + 8 * u + 2 * kt + k, Dd + 2 * k, Dd + 2 * k + 1)), m + SLAT, dl, dep=ex[2 * k:2 * k + 2]) for k in range(2)]
                        X += ex; C += cv
            else:
                ad = V_AVX if un == "X" else V_AVY
                first = (un == "X" and i == 0)
                for j in range(8):
                    m0 = G.n()
                    reg, lo = ring.alloc(m0 + nu - 1)
                    for t in range(2):
                        L.append(Op(I("ds_read_b64_tr_b16 %s, v%d offset:%d" % (ar(reg + 2 * t, 2), ad + j, VSL(i) - V_WIN + t * 4096)),
                                    max(lo, bar[i]), min(m0 - LEAD, bar[i + 1] - BUB), hard=min(m0 - 1, bar[i + 1] - 1)))
                    for u in range(nu):
                        O = V_O + (u * 8 + j) * 4
                        G.mfma("%s %s, %s, %s, %s" % (MF, vr(O), ar(reg), vr(S + 8 * u), "0" if first else vr(O)))
                    if j == 0:
                        for u in range(nu):
                            G.mfma("%s %s, %s, %s, %s" % (MF, ar(A_L + 4 * u), ar(A_ONE), vr(S + 8 * u), "0" if first else ar(A_L + 4 * u)))
        n = G.n()
        for i in range(-1, 8):
            lo = max(bar[i], 0); hi = min(bar[i + 1] - 1, n - 1); lst = c["kvB"].get(i, [])
            for k, (kind, ix) in enumerate(lst):
                h0 = lo + (hi - lo) * (k + 1) // len(lst)
                D += tile_dma(kind, ix, KSL(ix) if kind == "K" else VSL(ix) if kind == "V" else WOSL[ix], lo + 1, h0, c.get("nt", True))
        for i in range(8): G.pre[bar[i]] += [W(vm=["V%d" % i, "K%d" % (i + 1)], lgkm0=True), I("s_barrier")]
        schedule(G, L, D, X, C, "attention"); self.gstamps(G, "b")
        self.add(G.flatten())

    def ofrag(self, u, s): return V_SX + 4 * (4 * u + s if u < 3 else 12 + s // 2)
    def transBC(self):
        a = self; T = V_T; c = self.c
        sc = " sc1" if c.get("osc1", 1) else ""
        for k, j in enumerate((2, 3, 6, 7)): a("ds_write_b128 v%d, %s offset:%d" % (V_SCR, vr(V_O + (24 + j) * 4), OSCR - SL(2) + k * 1024), None)
        for u in range(4): a("v_accvgpr_read_b32 v%d, a%d" % (T + u, A_L + 4 * u))
        a("v_max3_f32 v%d, v%d, v%d, v%d" % (T + 4, T, T + 1, T + 2)); a("v_max_f32 v%d, v%d, v%d" % (T + 4, T + 4, T + 3))
        a("v_cmp_lt_f32 vcc, 0x%x, v%d" % (f2u(2.0 ** 40), T + 4))
        a("s_cmp_lg_u64 vcc, 0"); a("s_cselect_b32 s%d, 1, 0" % S_T0)
        a("v_mov_b32 v%d, s%d" % (T + 4, S_T0))
        a("v_lshlrev_b32 v%d, 2, v0" % (T + 5)); a("s_lshl_b32 s%d, s3, 8" % S_T1); a("s_add_u32 s%d, s%d, 0x%x" % (S_T1, S_T1, LSCR)); a("v_add_u32 v%d, s%d, v%d" % (T + 5, S_T1, T + 5))
        a("s_lshl_b32 s%d, s3, 2" % S_T1); a("s_add_u32 s%d, s%d, 0x%x" % (S_T1, S_T1, LSCR + 1024)); a("v_mov_b32 v%d, s%d" % (T + 6, S_T1))
        a("ds_write_b32 v%d, v%d" % (T + 5, T + 3)); a("ds_write_b32 v%d, v%d" % (T + 6, T + 4))
        a("v_xor_b32 v%d, 0x100, v%d" % (T + 5, T + 5)); a("v_mov_b32 v%d, 0x%x" % (T + 6, LSCR + 1024)); a("v_xor_b32 v%d, 0x1000, v%d" % (T + 7, V_SCR))
        for u in range(3): a("v_rcp_f32 v%d, v%d" % (T + u, T + u))
        a.add([W(vm=["WO(0, 0)", "WO(0, 1)"], lgkm0=True), I("s_barrier")])
        a.stamp("M")
        a("ds_read_b128 %s, v%d" % (vr(4), T + 6))
        a("ds_read_b32 v%d, v%d" % (T + 4, T + 5))
        for k, j in enumerate((2, 3, 6, 7)): a("ds_read_b128 %s, v%d offset:%d" % (vr(V_O + (24 + j) * 4), T + 7, OSCR - SL(2) + k * 1024))
        a("s_lshl_b32 s%d, s%d, 3" % (S_T1, S_B)); a("s_add_u32 s%d, s%d, s%d" % (S_T1, S_T1, S_HG)); a("s_lshl_b32 s%d, s%d, 2" % (S_T3, S_T1))
        a("buffer_load_dword v%d, off, %s, s%d sc1" % (T + 8, sr(SRD_DBG), S_T3), "hl")
        a("v_or_b32 v4, v4, v5"); a("v_or3_b32 v4, v4, v6, v7"); a("v_readfirstlane_b32 s%d, v4" % S_T0)
        a("s_andn2_b32 s%d, s%d, s%d" % (S_T0, S_T0, S_RETRY)); a("s_cbranch_scc1 L_fallback")
        def norm(u, s, rl):
            O = V_O + (u * 8 + 2 * s) * 4; F = self.ofrag(u, s)
            for k in range(4): a("v_pk_mul_f32 %s, %s, %s op_sel_hi:[1,0]" % (vr(O + 2 * k, 2), vr(O + 2 * k, 2), vr(rl, 2)))
            for k in range(4): a("v_cvt_pk_bf16_f32 v%d, v%d, v%d" % (F + k, O + 2 * k, O + 2 * k + 1))
        def store(f):
            if f % 4 == 0: a("s_add_u32 s%d, s%d, %d" % (S_SO, S_OB, f * 1024))
            a("buffer_store_dwordx4 %s, v%d, %s, s%d offen offset:%d%s" % (vr(V_SX + 4 * f), V_L16, sr(SRD_WS), S_SO, (f % 4) * 1024, sc), "ost")
        a("v_mov_b32 v2, v%d" % T); a("v_mov_b32 v4, v%d" % (T + 1)); a("v_mov_b32 v6, v%d" % (T + 2))
        for u in range(3):
            for s in range(4): norm(u, s, 2 + 2 * u)
            for s in range(4): store(4 * u + s)
        a("v_add_f32 v%d, v%d, v%d" % (T + 3, T + 3, T + 4)); a("v_rcp_f32 v2, v%d" % (T + 3))
        for j in ACT:
            O = V_O + (24 + j) * 4
            for k in range(2): a("v_pk_add_f32 %s, %s, %s" % (vr(O + 2 * k, 2), vr(O + 2 * k, 2), vr(O + 8 + 2 * k, 2)))
        for s in (0, 2): norm(3, s, 2)
        store(12); store(13)
        a("s_lshl_b32 s%d, s%d, 1" % (S_T0, S_E)); a("s_xor_b32 s%d, s%d, s%d" % (S_T0, S_T0, S_HG)); a("s_lshl_b32 s%d, s%d, 5" % (S_T0, S_T0))
        a("s_or_b32 s%d, s%d, 0x%x" % (S_T0, S_T0, V_WIN))
        for k in range(16): a("v_xor_b32 v%d, s%d, v%d" % (V_AVX + k, S_T0, V_AVX + k))
        for k in range(16): a("v_add_u32 v%d, 0x%x, v%d" % (V_NEGM + k, SL(6), V_AVX + k))
        a("L_hello:")
        a("v_readfirstlane_b32 s%d, v%d" % (S_T0, T + 8))
        a("s_sub_u32 s%d, s%d, 0x01010101" % (S_T1, S_T0)); a("s_andn2_b32 s%d, s%d, s%d" % (S_T1, S_T1, S_T0)); a("s_and_b32 s%d, s%d, 0x80808080" % (S_T1, S_T1))
        a("s_cbranch_scc1 L_hello_spin")
        a("L_hello_ok:")
        a("s_barrier")
        self.tail = []
        t = self.tail.append
        for s in ["L_hello_spin:", "s_add_u32 s%d, s%d, 1" % (S_SPIN, S_SPIN), "s_cmp_ge_u32 s%d, 0x%x" % (S_SPIN, SPIN_MAX), "s_cbranch_scc1 L_hello_ok", "s_sleep 4", "buffer_load_dword v%d, off, %s, s%d sc1" % (T + 8, sr(SRD_DBG), S_T3), "s_waitcnt vmcnt(0)", "s_branch L_hello"]: t(I(s))

    def phaseC(self):
        a = self; c = self.c; T = V_T
        sc = " sc1" if c.get("osc1", 1) else ""
        G = Gaps(); ring = Ring(); L = []; D = []; X = []; C = []
        LEAD = c.get("leadC", 10)
        acc = lambda u, j: V_O + (j * 4 + u) * 4
        def bfrag(hh, u, s):
            f = 4 * u + s if u < 3 else 12 + s // 2
            return vr(V_SX + 4 * f) if hh == 0 else ar(56 * (hh - 1) + 4 * f)
        order = [(0, j) for j in range(1, 8)] + [(1, j) for j in range(1, 8)]
        for j in range(1, 8): order += [(2, j), (3, j)]
        order += [(hh, 0) for hh in range(4)]
        BOFF = c.get("boffC", 12)
        barg = {0: -1, 1: 98 - BOFF, 2: 196 - BOFF, 3: 196 - BOFF}
        started = set(); done = {}
        for hh, j in order:
            m0 = G.n(); fr = []
            for s in range(4):
                reg, lo = ring.alloc(m0 + (12 + s // 2 if s % 2 == 0 else 8 + s)); fr.append(reg)
                slot = WOSL[(hh, s >> 1)]
                ad = (V_AVX if hh < 2 else V_NEGM) + (8 if s & 1 else 0) + j
                off = slot - (0 if hh < 2 else SL(6))
                for t in range(2):
                    L.append(Op(I("ds_read_b64_tr_b16 %s, v%d offset:%d" % (ar(reg + 2 * t, 2), ad, off + t * 4096)), max(lo, barg[hh]), m0 + s - LEAD, hard=m0 + s - 1))
            for u in range(4):
                for s in range(4):
                    if u == 3 and s & 1: continue
                    A = acc(u, j)
                    m = G.mfma("%s %s, %s, %s, %s" % (MF, vr(A), ar(fr[s]), bfrag(hh, u, s), vr(A) if (u, j) in started else "0"))
                    started.add((u, j)); done[(u, j)] = m
        n = G.n()
        D += tile_dma("WO", (3, 1), WOSL[(3, 1)], 0, 8)
        g1 = c.get("gflag", 30); g2 = c.get("gpoll", 44); g3 = c.get("gchk", 64)
        a("v_mov_b32 v%d, 1" % (T + 9))
        D.append(Op(I("buffer_store_dword v%d, v%d, %s, s%d offen%s" % (T + 9, V_L0, sr(SRD_WS), S_FL, sc), "flag"), g1, g1, pre=[W(vm="ost")]))
        D.append(Op(I("buffer_load_dword v%d, v%d, %s, 0 offen sc1" % (T + 8, V_POLL, sr(SRD_WS)), "poll"), g2, g2))
        G.val[g3] += [I("L_poll:"), I("v_cmp_ne_u32 vcc, 1, v%d" % (T + 8)), I("s_cbranch_vccnz L_poll_spin"), I("L_poll_ok:")]
        for s in ["L_poll_spin:", "s_add_u32 s%d, s%d, 1" % (S_SPIN, S_SPIN), "s_cmp_ge_u32 s%d, 0x%x" % (S_SPIN, SPIN_MAX), "s_cbranch_scc1 L_poll_ok", "s_sleep 1", "buffer_load_dword v%d, v%d, %s, 0 offen sc1" % (T + 8, V_POLL, sr(SRD_WS)), "s_waitcnt vmcnt(0)", "s_branch L_poll"]: self.tail.append(I(s))
        k = 0
        for hh in (1, 2, 3):
            for f in range(14):
                pre = []
                if f == 0: pre = [I("s_xor_b32 s%d, s%d, 0x%x" % (S_SO, S_OB, hh << 16))]
                elif f % 4 == 0: pre = [I("s_add_u32 s%d, s%d, 4096" % (S_SO, S_SO))]
                D.append(Op(I("buffer_load_dwordx4 %s, v%d, %s, s%d offen offset:%d sc1" % (ar(56 * (hh - 1) + 4 * f), V_L16, sr(SRD_WS), S_SO, (f % 4) * 1024), "of%d" % hh),
                            g3 + 1, g3 + 1 + 2 * k, hard=(97 if hh == 1 else 195), pre=pre)); k += 1
        G.pre[barg[1]] += [W(vm=["WO(1, 0)", "WO(1, 1)"]), I("s_barrier")]
        G.pre[barg[2]] += [W(vm=["WO(2, 0)", "WO(2, 1)", "WO(3, 0)", "WO(3, 1)"]), I("s_barrier")]
        tailv = []
        for idx, j in enumerate(list(range(1, 8)) + [0]):
            B = (V_AKX if idx & 1 else V_T)
            cv = []
            for u in range(4):
                for k in range(2):
                    ins = I("v_cvt_pk_bf16_f32 v%d, v%d, v%d" % (B + 2 * u + k, acc(u, j) + 2 * k, acc(u, j) + 2 * k + 1))
                    if j: cv.append(Op(ins, done[(u, j)] + 5, done[(3, j)] + 20))
                    else: tailv.append(ins)
            st = [I("buffer_store_dwordx4 %s, v%d, %s, s%d offen offset:%d%s" % (vr(B + 4 * hf), V_L16, sr(SRD_WS), S_SO, hf * 1024, c.get("psc", "")), "pst") for hf in range(2)]
            pre = [I("s_xor_b32 s%d, s%d, 0x%x" % (S_SO, S_PB, j << 16))]
            if j:
                C += cv
                D.append(Op(st[0], done[(1, j)] + 6, done[(3, j)] + 8, hard=done[(3, j)] + 24, pre=pre, dep=cv[:4]))
                D.append(Op(st[1], done[(3, j)] + 6, done[(3, j)] + 10, hard=done[(3, j)] + 25, dep=cv[4:]))
            else: tailv += pre + st
        schedule(G, L, D, X, C, "phaseC"); self.gstamps(G, "c")
        self.add(G.flatten())
        self.add(tailv)

    def fallback(self):
        t = lambda s: self.tail.append(I(s)); T = V_T
        t("L_fallback:")
        t("s_waitcnt vmcnt(0) lgkmcnt(0)"); t("s_barrier")
        t("s_mov_b32 s%d, 1" % S_RETRY); t("s_mov_b32 s%d, 0" % S_KC)
        M = [V_NEGM + 4 * u for u in range(4)]
        for u in range(4): t("v_mov_b32 v%d, 0xff800000" % M[u])
        t("L_fb_loop:")
        t("s_add_u32 m0, s%d, 0x%x" % (S_L4, KSL(0))); t("s_add_u32 s%d, s%d, s%d" % (S_SO, S_KVB, S_KC))
        for j in range(4): t("buffer_load_dwordx4 v%d, %s, s%d offen offset:%d lds" % (V_OK + j, sr(SRD_K), S_SO, j * 1024))
        t("s_waitcnt vmcnt(0)"); t("s_barrier")
        for ad in (V_AKX, V_AKY):
            for kt in range(2):
                for s in range(4): t("ds_read_b128 %s, v%d offset:%d" % (ar(A_XF + 4 * s), ad + s, KSL(0) - K_WIN + kt * 4096))
                t("s_waitcnt lgkmcnt(0)")
                for u in range(4):
                    for s in range(4):
                        Dd = V_SY + 4 * u
                        t("%s %s, %s, %s, %s" % (MF, vr(Dd), ar(A_XF + 4 * s), ar(A_Q + 16 * u + 4 * s), "0" if s == 0 else vr(Dd)))
                t("s_nop 7")
                for u in range(4):
                    Dd = V_SY + 4 * u
                    t("v_max3_f32 v%d, v%d, v%d, v%d" % (M[u], M[u], Dd, Dd + 1)); t("v_max3_f32 v%d, v%d, v%d, v%d" % (M[u], M[u], Dd + 2, Dd + 3))
                t("s_nop 1")
        t("s_barrier")
        t("s_add_u32 s%d, s%d, 0x4000" % (S_KC, S_KC)); t("s_cmp_lt_u32 s%d, 0x20000" % S_KC); t("s_cbranch_scc1 L_fb_loop")
        for u in range(4): t("v_mov_b32 v%d, v%d" % (V_SY + u, M[u]))
        save = self.ins; self.ins = self.tail
        self.rowmax_finish([V_SY + u for u in range(4)])
        for ch in sorted(self.c["kvA"]):
            for kind, i in self.c["kvA"][ch]: self.add(flat(tile_dma(kind, i, KSL(i) if kind == "K" else VSL(i), 0, 0)))
        self.ins = save
        t("s_waitcnt vmcnt(0)"); t("s_barrier"); t("s_branch L_attn")

    def build(self):
        a = self
        self.prologue(); self.phaseA(); self.stamp("A1"); self.transAB(); self.stamp("Q")
        a("v_add_u32 v%d, 0x%x, v%d" % (V_SCR, SL(2), V_SCR))
        self.premax(); self.stamp("B0")
        a("s_waitcnt lgkmcnt(0)")
        a("L_attn:")
        self.attention(); self.stamp("B1"); self.transBC(); self.stamp("C0"); self.phaseC(); self.stamp("C1")
        self.fallback()
        main = insert_waits(self.ins)
        main, n1 = fix_hazards(main, self.c.get("verbose"))
        tail, n2 = fix_hazards(self.tail)
        sys.stderr.write("hazard pads %d, instructions %d\n" % (n1, len(main) + len(tail)))
        A = Asm()
        for i in main:
            if i.kind == "label": A.raw(i.t)
            else: A(i.t)
        if self.c.get("stamps"):
            A("s_waitcnt vmcnt(0)")
            self.nst = 1 + len(self.c["stamps"].split(","))
            b = STAMP0 + 4 * self.nst; self.nst += 1
            A("s_memrealtime s[%d:%d]" % (b, b + 1)); A("s_memtime s[%d:%d]" % (b + 2, b + 3))
            A.stamps_init(STAMP0, self.nst); A.stamps_flush(18, 2, 3, S_T0, v0=2)
            sys.stderr.write("stamps: %d\n" % (2 * self.nst))
        A.label("L_end"); A("s_endpgm")
        for i in tail:
            if i.kind == "label": A.raw(i.t)
            else: A(i.t)
        A.label("L_codeend")
        return A.text()

def reduce_kernel():
    a = Asm()
    a("s_cmp_ge_u32 s2, 256"); a("s_cbranch_scc1 R_end")
    a("s_load_dwordx2 s[4:5], s[0:1], 40"); a("s_load_dwordx2 s[6:7], s[0:1], 56")
    a("v_lshrrev_b32 v1, 6, v0"); a("v_and_b32 v0, 63, v0"); a("v_readfirstlane_b32 s3, v1"); a("v_lshlrev_b32 v2, 4, v0")
    a("s_waitcnt lgkmcnt(0)")
    a("s_mov_b32 s8, s4"); a("s_and_b32 s9, s5, 0xffff"); a("s_mov_b32 s10, %d" % (8 * 224 * 512 * 2)); a("s_mov_b32 s11, 0x20000")
    a("s_mov_b32 s12, s6"); a("s_and_b32 s13, s7, 0xffff"); a("s_mov_b32 s14, 0x%x" % WS_BYTES); a("s_mov_b32 s15, 0x20000")
    a("s_lshl_b32 s16, s2, 16"); a("s_lshl_b32 s17, s3, 11"); a("s_add_u32 s16, s16, s17"); a("s_add_u32 s16, s16, 0x%x" % PB_OFF)
    for hg in range(8):
        a("s_add_u32 s17, s16, %d" % (hg * 8192)); a("s_xor_b32 s18, s17, 2048")
        a("buffer_load_dwordx4 %s, v2, s[12:15], s17 offen" % vr(32 + 12 * hg))
        a("buffer_load_dwordx4 %s, v2, s[12:15], s17 offen offset:1024" % vr(36 + 12 * hg))
        a("buffer_load_dwordx2 %s, v2, s[12:15], s18 offen offset:1032" % vr(40 + 12 * hg, 2))
    a("s_lshr_b32 s19, s2, 5"); a("s_mul_i32 s19, s19, 224"); a("s_lshr_b32 s20, s3, 1"); a("s_mul_i32 s20, s20, 112"); a("s_add_u32 s19, s19, s20")
    a("s_lshl_b32 s19, s19, 10"); a("s_and_b32 s20, s2, 31"); a("s_lshl_b32 s20, s20, 5"); a("s_add_u32 s19, s19, s20")
    a("s_and_b32 s20, s3, 1"); a("s_lshl_b32 s21, s20, 16"); a("s_add_u32 s21, s21, s19"); a("s_add_u32 s22, s19, %d" % (48 * 1024))
    a("v_and_b32 v3, 15, v0"); a("v_lshlrev_b32 v3, 10, v3"); a("v_lshrrev_b32 v4, 4, v0"); a("v_lshl_add_u32 v3, v4, 3, v3")
    for k in range(16): a("v_mov_b32 v%d, 0" % (8 + k))
    for hg in range(8):
        a("s_waitcnt vmcnt(%d)" % (21 - 3 * hg))
        for d in range(10):
            src = 32 + 12 * hg + d; dd = d if d < 8 else d - 2
            a("v_lshlrev_b32 v4, 16, v%d" % src); a("v_and_b32 v5, 0xffff0000, v%d" % src)
            a("v_add_f32 v%d, v%d, v4" % (8 + 2 * dd, 8 + 2 * dd)); a("v_add_f32 v%d, v%d, v5" % (9 + 2 * dd, 9 + 2 * dd))
    for d in range(8): a("v_cvt_pk_bf16_f32 v%d, v%d, v%d" % (24 + d, 8 + 2 * d, 9 + 2 * d))
    for u in range(3):
        a("buffer_store_dwordx2 %s, v3, s[8:11], s21 offen" % vr(24 + 2 * u, 2)); a("s_add_u32 s21, s21, 16384")
    a("s_cmp_eq_u32 s20, 1"); a("s_cbranch_scc1 R_end")
    a("buffer_store_dwordx2 %s, v3, s[8:11], s22 offen" % vr(30, 2))
    a.label("R_end"); a("s_endpgm")
    return a.text()

DEFAULT = dict(
    kvA={5: [("K", 0)], 6: [("V", 0), ("K", 1)], 7: [("V", 1)]},
    kvB={-1: [("K", 2)], 0: [("V", 2), ("K", 3)], 1: [("V", 3), ("K", 4)], 2: [("V", 4), ("K", 5)], 3: [("V", 5), ("K", 6)], 4: [("V", 6), ("K", 7)],
         5: [("V", 7), ("WO", (0, 0))], 6: [("WO", (0, 1)), ("WO", (1, 0)), ("WO", (1, 1))], 7: [("WO", (2, 0)), ("WO", (2, 1)), ("WO", (3, 0))]},
    touch_n=20,
)
HEADER = open("standalone__gqa_block_cached__near_ridge.s.ref").read().split("; Override")[0]

def generate(fn, **kw):
    cfg = dict(DEFAULT); cfg.update(kw)
    body = K(cfg).build()
    ks = [("attn_kernel", body, 256, 256, 163840, 512, 256), ("reduce_kernel", reduce_kernel(), 256, 256, 0, 128, 128)]
    open(fn, "w").write(wrap(ks, HEADER))

if __name__ == "__main__":
    import ast
    kw = {}
    for x in sys.argv[2:]:
        k, v = x.split("=", 1)
        try: v = ast.literal_eval(v)
        except Exception: pass
        kw[k] = v
    generate(sys.argv[1], **kw)
```

```python
import sys, math, struct
from asmlib import Asm, wrap, KN, STAMP_OFF
from stream import *

MF = "v_mfma_f32_16x16x32_bf16"
def vr(b, n=4): return "v[%d:%d]" % (b, b + n - 1)
def ar(b, n=4): return "a[%d:%d]" % (b, b + n - 1)
def sr(b, n=4): return "s[%d:%d]" % (b, b + n - 1)
def f2u(x): return struct.unpack("<I", struct.pack("<f", x))[0]

S_WG, S_W = 2, 3
SRD_X, SRD_WQ, SRD_K, SRD_V, SRD_WO, SRD_WS, SRD_OUT, SRD_DBG = 20, 24, 28, 32, 36, 40, 44, 48
S_B, S_H, S_HG, S_CQ, S_E, S_ROT = 4, 5, 6, 7, 8, 9
S_XB, S_WB, S_KVB, S_WOB, S_LX, S_L4 = 10, 11, 12, 13, 14, 15
S_OB, S_PB = 16, 17
S_C0 = 52
S_SO = 54
S_T0, S_T1, S_T2, S_T3 = 55, 56, 57, 58
S_XCC, S_RETRY, S_FL = 59, 60, 61
S_KC = 62
S_SPIN = 63
SPIN_MAX = 1 << 20
STAMP0 = 64
V_OK, V_OV, V_OO = 8, 12, 14
V_L16, V_L0, V_POLL, V_SCR = 18, 19, 20, 21
V_AKX, V_AKY, V_AVX, V_AVY = 22, 26, 30, 38
V_T = 46
V_SX, V_SY = 56, 88
V_NEGM = 112
V_O = 128
V_OX, V_OW, V_AX, V_AW = 56, 60, 64, 68
A_Q, A_L, A_ONE, A_XF, A_RING = 0, 64, 80, 96, 192
NRING = 16
SL = lambda i: i * 16384
XS = lambda c: ((7 - c) % 3) * 28672
WS_ = lambda c: SL(6 + (7 - c) % 3)
KSL = lambda i: SL([9, 8, 7][i % 3])
VSL = lambda i: SL([5, 4, 6][i % 3])
WOSL = {(0, 0): SL(0), (0, 1): SL(1), (1, 0): SL(2), (1, 1): SL(3), (2, 0): SL(7), (2, 1): SL(6), (3, 0): SL(9), (3, 1): SL(8)}
K_WIN, V_WIN, WQ_WIN = SL(6), SL(4), SL(6)
QSCR = SL(2); OSCR = SL(5); LSCR = SL(8)
OB_OFF, FL_OFF, PB_OFF = 0, 16 << 20, 32 << 20
FL2 = 1 << 17
WS_BYTES = 256 << 20
ACT = (0, 1, 4, 5)

class Op:
    def __init__(self, ins, lo, hi, hard=None, pre=(), dep=None):
        self.i = ins; self.lo = lo; self.hi = hi; self.hard = hi if hard is None else hard; self.pre = list(pre); self.dep = dep; self.g = None; self.use = self.hard + 1

def schedule(G, L, D, X, C, name=""):
    n = G.n()
    for q in (L, D, X, C):
        for k in range(len(q) - 2, -1, -1):
            q[k].hi = min(q[k].hi, q[k + 1].hi - 1); q[k].hard = min(q[k].hard, q[k + 1].hard)
    ptr = {"L": 0, "D": 0, "X": 0, "C": 0}; Q = {"L": L, "D": D, "X": X, "C": C}
    lastD = [-5]
    def head(k):
        return Q[k][ptr[k]] if ptr[k] < len(Q[k]) else None
    def avail(o, g, strict=True):
        if o is None or o.lo > g: return False
        if o.dep is not None:
            for d in o.dep:
                if d.g is None or (strict and d.g >= g): return False
        return True
    def put(k, g):
        o = head(k); o.g = g; ptr[k] += 1
        if g < 0:
            G.head += o.pre + [o.i]; return
        if k in "LD":
            pre = list(o.pre)
            if k == "D":
                if len(pre) >= 2 and lastD[0] < g - 1 and g - 1 >= 0 and o.lo <= g - 1 and not G.pre[g - 1]:
                    G.pre[g - 1].append(pre.pop(0))
                lastD[0] = g
            if G.mem[g] and pre: G.mem[g] += pre + [o.i]
            else: G.pre[g] += pre; G.mem[g].append(o.i)
        else: G.val[g].append(o.i)
    over = 0
    for g in range(-1, n):
        if g >= 0:
            cands = [(head(k).hi, k) for k in "LDX" if avail(head(k), g)]
            if cands and G.cost(g) <= 0:
                put(min(cands)[1], g)
            while G.cost(g) <= 4:
                if avail(head("C"), g): put("C", g)
                elif avail(head("X"), g) and head("X").i.op not in TRANS: put("X", g)
                else: break
        if g < 0:
            while head("L") is not None and head("L").hi < 0 and head("L").lo < 0: put("L", g)
        ch = True
        while ch:
            ch = False
            for k in "LDXC":
                o = head(k)
                if o is not None and o.hard <= g:
                    assert avail(o, g, False), "%s: cannot meet hard deadline g=%d lo=%d %s" % (name, g, o.lo, o.i.t)
                    put(k, g); ch = True; over += g >= 0
    for k in "LDXC": assert head(k) is None, (name, k, head(k).i.t, head(k).lo, n)
    leads = sorted(o.use - o.g for o in L if o.g >= 0)
    sys.stderr.write("%s: mfma %d est %d cycles (floor %d), forced %d, lds leads min %s\n" % (name, n, G.est(), 16 * n, over, leads[:24]))

class Ring:
    def __init__(self): self.k = 0; self.free_at = [-1] * NRING
    def alloc(self, last_use):
        s = self.k % NRING; self.k += 1; lo = self.free_at[s]; self.free_at[s] = last_use
        return A_RING + 4 * s, lo
    def peek(self, ahead=0): return A_RING + 4 * ((self.k + ahead) % NRING)

def tile_dma(kind, idx, lds, lo, hi, nt=True):
    ops = []
    if kind == "K": srd, vo, base, off, fl = SRD_K, lambda j: V_OK + j, S_KVB, idx * 16384, " nt" if nt else ""
    elif kind == "V": srd, vo, base, off, fl = SRD_V, lambda j: V_OV + (j & 1), S_KVB, idx * 16384, " nt" if nt else ""
    elif kind == "WO": srd, vo, fl = SRD_WO, lambda j: V_OO + j, ""
    tag = "%s%s" % (kind, idx)
    for j in range(4):
        pre = []
        if j == 0:
            pre = [I("s_add_u32 m0, s%d, 0x%x" % (S_L4, lds))]
            if kind == "WO":
                hh, half = idx
                pre += [I("s_xor_b32 s%d, s%d, 0x%x" % (S_SO, S_WOB, (hh << 17) | (half << 16)))]
            else: pre += [I("s_add_u32 s%d, s%d, 0x%x" % (S_SO, base, off))]
        h = lo + (hi - lo) * (j + 1) // 4
        ops.append(Op(I("buffer_load_dwordx4 v%d, %s, s%d offen offset:%d%s lds" % (vo(j), sr(srd), S_SO, j * 1024, fl), tag), lo, h, hard=hi, pre=pre))
    return ops

def stage_dma(c, lo, hi):
    ops = []; tag = "A%d" % c
    seq = []
    pre = [I("s_add_u32 s%d, s%d, %d" % (S_KC, S_ROT, c)), I("s_and_b32 s%d, s%d, 7" % (S_KC, S_KC)),
           I("s_lshl_b32 s%d, s%d, 19" % (S_SO, S_KC)), I("s_add_u32 m0, s%d, 0x%x" % (S_L4, WS_(c))), I("s_add_u32 s%d, s%d, s%d" % (S_SO, S_SO, S_WB))]
    for j in range(4):
        seq.append((I("buffer_load_dwordx4 v%d, %s, s%d offen offset:%d lds" % (V_OW + j, sr(SRD_WQ), S_SO, j * 1024), tag), pre if j == 0 else []))
    for j in range(7):
        p = []
        if j == 0: p = [I("s_add_u32 m0, s%d, 0x%x" % (S_LX, XS(c))), I("s_lshl_b32 s%d, s%d, 7" % (S_SO, S_KC)), I("s_add_u32 s%d, s%d, s%d" % (S_SO, S_SO, S_XB))]
        if j == 4: p = [I("s_add_u32 m0, s%d, 0x%x" % (S_LX, XS(c) + 4096)), I("s_add_u32 s%d, s%d, 0x8000" % (S_SO, S_SO))]
        seq.append((I("buffer_load_dwordx4 v%d, %s, s%d offen offset:%d lds" % (V_OX + (j & 3), sr(SRD_X), S_SO, (j & 3) * 1024), tag), p))
    for k, (ins, p) in enumerate(seq):
        ops.append(Op(ins, lo, lo + (hi - lo) * (k + 1) // len(seq), hard=hi, pre=p))
    return ops

def flat(ops):
    out = []
    for o in ops: out += o.pre + [o.i]
    return out

class K:
    def __init__(self, cfg):
        self.c = cfg; self.ins = []; self.nst = 0
    def __call__(self, s, tag=None):
        for l in s.split("\n"):
            l = l.strip()
            if l: self.ins.append(I(l, tag))
    def add(self, lst): self.ins += lst
    def stamp_ins(self, name):
        st = self.c.get("stamps")
        if not st or name not in st.split(","): return []
        b = STAMP0 + 4 * (1 + st.split(",").index(name))
        assert b + 7 <= 101
        return [I("s_waitcnt lgkmcnt(0)"), I("s_memrealtime s[%d:%d]" % (b, b + 1)), I("s_memtime s[%d:%d]" % (b + 2, b + 3)), I("s_waitcnt lgkmcnt(0)")]
    def stamp(self, name): self.add(self.stamp_ins(name))
    def gstamps(self, G, prefix):
        for nm in (self.c.get("stamps") or "").split(","):
            if nm.startswith(prefix) and nm[len(prefix):].isdigit(): G.val[int(nm[len(prefix):])] += self.stamp_ins(nm)

    def prologue(self):
        a = self; c = self.c
        a("s_cmp_ge_u32 s2, 256"); a("s_cbranch_scc1 L_end")
        a("s_load_dwordx16 s[4:19], s[0:1], 0")
        if c.get("stamps"):
            a("s_memrealtime s[%d:%d]" % (STAMP0, STAMP0 + 1)); a("s_memtime s[%d:%d]" % (STAMP0 + 2, STAMP0 + 3)); self.nst = 1
        a("v_lshrrev_b32 v1, 6, v0"); a("v_and_b32 v0, 63, v0"); a("v_readfirstlane_b32 s3, v1")
        T = V_T
        a("v_lshrrev_b32 v1, 4, v0"); a("v_and_b32 v2, 15, v0"); a("v_lshrrev_b32 v3, 3, v0"); a("v_and_b32 v4, 7, v0")
        a("v_lshlrev_b32 v5, 1, v1"); a("v_xor_b32 v5, v5, v2"); a("v_lshlrev_b32 v5, 4, v5")
        a("v_lshl_add_u32 v%d, v1, 13, v5" % V_OW)
        a("v_add_u32 v%d, %d, v%d" % (V_OW + 1, 31744, V_OW))
        a("v_xor_b32 v6, 0x80, v%d" % V_OW)
        a("v_add_u32 v%d, %d, v6" % (V_OW + 2, 2 * 31744)); a("v_add_u32 v%d, %d, v6" % (V_OW + 3, 3 * 31744))
        a("s_and_b32 s%d, s3, 1" % S_T0); a("s_lshl_b32 s%d, s%d, 6" % (S_T1, S_T0))
        a("v_xor_b32 v6, v4, v1"); a("v_lshlrev_b32 v6, 4, v6"); a("v_lshl_add_u32 v6, v3, 10, v6")
        a("v_xor_b32 v%d, s%d, v6" % (V_OX, S_T1))
        a("v_xor_b32 v7, 64, v%d" % V_OX)
        a("v_add_u32 v%d, %d, v7" % (V_OX + 1, 7168)); a("v_add_u32 v%d, %d, v%d" % (V_OX + 2, 2 * 7168, V_OX)); a("v_add_u32 v%d, %d, v7" % (V_OX + 3, 3 * 7168))
        a("s_and_b32 s%d, s2, 7" % S_T2); a("s_lshr_b32 s%d, s2, 3" % S_T3)
        a("s_waitcnt lgkmcnt(0)")
        def srd(d, base, nb):
            a("s_mov_b32 s%d, s%d" % (d, base)); a("s_and_b32 s%d, s%d, 0xffff" % (d + 1, base + 1)); a("s_mov_b32 s%d, 0x%x" % (d + 2, nb)); a("s_mov_b32 s%d, 0x20000" % (d + 3))
        srd(SRD_X, 4, 8 * 224 * 512 * 2); srd(SRD_WQ, 10, 512 * 4096 * 2)
        srd(SRD_K, 6, 8 * 32 * 512 * 128 * 2); srd(SRD_V, 8, 8 * 32 * 512 * 128 * 2); srd(SRD_WO, 12, 4096 * 512 * 2)
        srd(SRD_OUT, 14, 8 * 224 * 512 * 2); srd(SRD_DBG, 16, 256); srd(SRD_WS, 18, WS_BYTES)
        a("s_mov_b32 s%d, s%d" % (S_E, S_T0))
        if c.get("map", 2) == 2:
            a("s_and_b32 s%d, s%d, 7" % (S_B, S_T3)); a("s_lshr_b32 s%d, s%d, 3" % (S_CQ, S_T3)); a("s_mov_b32 s%d, s%d" % (S_HG, S_T2))
            a("s_lshl_b32 s%d, s%d, 2" % (S_H, S_HG)); a("s_add_u32 s%d, s%d, s%d" % (S_H, S_H, S_CQ))
        else:
            a("s_and_b32 s%d, s%d, 1" % (S_B, S_T2)); a("s_lshl_b32 s%d, s%d, 2" % (S_B, S_B)); a("s_and_b32 s%d, s%d, 3" % (S_T0, S_T3)); a("s_add_u32 s%d, s%d, s%d" % (S_B, S_B, S_T0))
            a("s_lshr_b32 s%d, s%d, 1" % (S_H, S_T2)); a("s_lshl_b32 s%d, s%d, 3" % (S_H, S_H)); a("s_lshr_b32 s%d, s%d, 2" % (S_T0, S_T3)); a("s_add_u32 s%d, s%d, s%d" % (S_H, S_H, S_T0))
            a("s_lshr_b32 s%d, s%d, 2" % (S_HG, S_H)); a("s_and_b32 s%d, s%d, 3" % (S_CQ, S_H))
        a("s_mov_b32 s%d, s%d" % (S_ROT, S_T2))
        a("s_mul_i32 s%d, s%d, %d" % (S_XB, S_B, 229376)); a("s_mul_i32 s%d, s3, %d" % (S_T0, 57344)); a("s_add_u32 s%d, s%d, s%d" % (S_XB, S_XB, S_T0))
        a("s_lshl_b32 s%d, s%d, 8" % (S_WB, S_H)); a("s_lshl_b32 s%d, s3, 17" % S_T0); a("s_add_u32 s%d, s%d, s%d" % (S_WB, S_WB, S_T0))
        a("s_mul_i32 s%d, s3, 7168" % S_LX); a("s_lshl_b32 s%d, s3, 12" % S_L4)
        a.add(flat(stage_dma(0, 0, 0)))
        if c.get("touch", 1):
            a("s_getpc_b64 s[%d:%d]" % (S_T1, S_T2)); a("L_pc:")
            a("s_and_b32 s%d, s%d, 3" % (S_T0, S_T3)); a("s_lshl_b32 s%d, s%d, 2" % (S_T0, S_T0)); a("s_add_u32 s%d, s%d, s3" % (S_T0, S_T0)); a("s_mul_i32 s%d, s%d, %d" % (S_T0, S_T0, c["touch_n"] * 128))
            a("v_min_u32 v6, %d, v0" % (c["touch_n"] - 1)); a("v_lshl_add_u32 v6, v6, 7, s%d" % S_T0)
            a("v_min_u32 v6, L_codeend-L_pc-4, v6")
            a("global_load_dword v%d, v6, s[%d:%d]" % (V_T + 9, S_T1, S_T2), "touch")
        a.add(flat(stage_dma(1, 0, 0)))
        a("s_lshl_b32 s%d, s%d, 5" % (S_T0, S_B)); a("s_add_u32 s%d, s%d, s%d" % (S_T0, S_T0, S_H))
        a("s_lshl_b32 s%d, s%d, 17" % (S_KVB, S_T0)); a("s_add_u32 s%d, s%d, s%d" % (S_KVB, S_KVB, S_L4))
        a("s_lshl_b32 s%d, s%d, 2" % (S_T0, S_T0)); a("s_add_u32 s%d, s%d, s3" % (S_T0, S_T0))
        a("s_lshl_b32 s%d, s%d, 3" % (S_OB, S_HG)); a("s_add_u32 s%d, s%d, s%d" % (S_OB, S_OB, S_B)); a("s_lshl_b32 s%d, s%d, 2" % (S_OB, S_OB)); a("s_add_u32 s%d, s%d, s3" % (S_OB, S_OB))
        a("s_mul_i32 s%d, s%d, %d" % (S_OB, S_OB, 4 * 14336))
        a("s_lshl_b32 s%d, s%d, 7" % (S_FL, S_T0)); a("s_add_u32 s%d, s%d, 0x%x" % (S_FL, S_FL, FL_OFF))
        a("s_lshl_b32 s%d, s%d, 17" % (S_WOB, S_H)); a("s_lshl_b32 s%d, s3, 14" % S_T0); a("s_add_u32 s%d, s%d, s%d" % (S_WOB, S_WOB, S_T0))
        a("s_lshl_b32 s%d, s%d, 8" % (S_T0, S_CQ)); a("s_add_u32 s%d, s%d, s%d" % (S_WOB, S_WOB, S_T0))
        a("s_lshl_b32 s%d, s%d, 2" % (S_T0, S_B)); a("s_add_u32 s%d, s%d, s%d" % (S_T0, S_T0, S_CQ)); a("s_mul_i32 s%d, s%d, %d" % (S_PB, S_T0, 8 * 57344))
        a("s_lshl_b32 s%d, s3, 11" % S_T0); a("s_add_u32 s%d, s%d, s%d" % (S_PB, S_PB, S_T0)); a("s_add_u32 s%d, s%d, 0x%x" % (S_PB, S_PB, PB_OFF - 8192))
        cc = f2u(math.log2(math.e) / math.sqrt(128.0))
        a("s_mov_b32 s%d, 0x%x" % (S_C0, cc)); a("s_mov_b32 s%d, 0x%x" % (S_C0 + 1, cc))
        a("s_getreg_b32 s%d, hwreg(HW_REG_XCC_ID, 0, 4)" % S_XCC); a("s_mov_b32 s%d, 0" % S_RETRY); a("s_mov_b32 s%d, 0" % S_SPIN)
        a("v_lshlrev_b32 v%d, 4, v0" % V_L16)
        a("v_cmp_eq_u32 vcc, 0, v0"); a("v_bfrev_b32 v6, 1"); a("v_cndmask_b32 v%d, v6, 0, vcc" % V_L0)
        a("v_mov_b32 v6, 0")
        a("buffer_store_dword v6, v%d, %s, s%d offen sc1" % (V_L0, sr(SRD_WS), S_FL), "flagreset")
        a("s_add_u32 s%d, s%d, 0x%x" % (S_T0, S_FL, FL2))
        a("buffer_store_dword v6, v%d, %s, s%d offen sc1" % (V_L0, sr(SRD_WS), S_T0), "flagreset")
        a("v_and_b32 v6, 3, v0"); a("v_lshlrev_b32 v%d, 9, v6" % V_POLL); a("v_xor_b32 v%d, s%d, v%d" % (V_POLL, S_FL, V_POLL))
        a("v_xor_b32 v7, v2, v1"); a("v_lshlrev_b32 v7, 4, v7"); a("v_lshl_add_u32 v%d, v1, 8, v7" % V_OK)
        for j in (1, 2, 3): a("v_xor_b32 v%d, %d, v%d" % (V_OK + j, j << 6, V_OK))
        a("v_lshl_add_u32 v%d, v1, 8, v5" % V_OV); a("v_xor_b32 v%d, 0x80, v%d" % (V_OV + 1, V_OV))
        a("v_lshl_add_u32 v%d, v1, 10, v5" % V_OO); a("v_xor_b32 v7, 0x80, v%d" % V_OO)
        a("v_add_u32 v%d, 3072, v7" % (V_OO + 1)); a("v_add_u32 v%d, 6144, v%d" % (V_OO + 2, V_OO)); a("v_add_u32 v%d, 9216, v7" % (V_OO + 3))
        a("v_lshrrev_b32 v7, 1, v2"); a("v_xor_b32 v7, v7, v1"); a("v_lshlrev_b32 v7, 4, v7"); a("v_lshl_add_u32 v7, v2, 7, v7")
        a("s_lshr_b32 s%d, s3, 1" % S_T0); a("s_mul_i32 s%d, s%d, %d" % (S_T0, S_T0, 7 * 2048))
        a("s_lshl_b32 s%d, s%d, 13" % (S_T1, S_E)); a("s_add_u32 s%d, s%d, s%d" % (S_T2, S_T0, S_T1)); a("s_add_u32 s%d, s%d, %d" % (S_T0, S_T0, 3 * 2048))
        a("v_add_u32 v%d, s%d, v7" % (V_AX, S_T2)); a("v_xor_b32 v%d, 64, v%d" % (V_AX + 1, V_AX))
        a("v_add_u32 v%d, s%d, v7" % (V_AX + 2, S_T0)); a("v_xor_b32 v%d, 64, v%d" % (V_AX + 3, V_AX + 2))
        a("v_lshrrev_b32 v3, 2, v2"); a("v_and_b32 v4, 1, v1"); a("v_lshl_or_b32 v4, v4, 2, v3")
        a("s_lshl_b32 s%d, s%d, 1" % (S_T0, S_E)); a("v_xor_b32 v4, s%d, v4" % S_T0); a("v_lshlrev_b32 v4, 5, v4"); a("v_lshl_add_u32 v4, v6, 3, v4")
        a("v_lshl_add_u32 v7, v1, 3, v3"); a("v_lshl_add_u32 v7, v7, 8, v4"); a("v_add_u32 v%d, 0x%x, v7" % (V_AW, WQ_WIN))
        for j in range(1, 8): a("v_xor_b32 v%d, %d, v%d" % (V_AW + j, j << 5, V_AW))
        a("v_lshl_add_u32 v7, v1, 2, v3"); a("v_lshl_add_u32 v7, v7, 8, v4")
        a("s_add_u32 s%d, s%d, 0x%x" % (S_T2, S_T1, V_WIN)); a("v_add_u32 v%d, s%d, v7" % (V_AVX, S_T2))
        for j in range(1, 8): a("v_xor_b32 v%d, %d, v%d" % (V_AVX + j, j << 5, V_AVX))
        for j in range(8): a("v_xor_b32 v%d, 0x2000, v%d" % (V_AVY + j, V_AVX + j))
        a("v_and_b32 v7, 1, v1"); a("v_lshlrev_b32 v7, 1, v7"); a("v_lshrrev_b32 v3, 1, v1"); a("v_or_b32 v7, v7, v3")
        a("s_lshl_b32 s%d, s%d, 2" % (S_T0, S_E)); a("v_xor_b32 v7, s%d, v7" % S_T0); a("v_xor_b32 v7, v7, v2"); a("v_lshlrev_b32 v7, 4, v7"); a("v_lshl_add_u32 v7, v2, 8, v7")
        a("s_add_u32 s%d, s%d, 0x%x" % (S_T2, S_T1, K_WIN)); a("v_add_u32 v%d, s%d, v7" % (V_AKX, S_T2))
        for s in range(1, 4): a("v_xor_b32 v%d, %d, v%d" % (V_AKX + s, s << 6, V_AKX))
        for s in range(4): a("v_xor_b32 v%d, 0x2000, v%d" % (V_AKY + s, V_AKX + s))
        a("v_mov_b32 v7, 0x3f803f80")
        for k in range(4): a("v_accvgpr_write_b32 a%d, v7" % (A_ONE + k))
        a("v_add_u32 v%d, s%d, v%d" % (V_SCR, S_L4, V_L16))

    def acc(self, u, j): return V_O + (u * 8 + j) * 4 if u < 3 else V_O + 96 + 4 * ACT.index(j)
    def phaseA(self):
        c = self.c
        G = Gaps(); ring = Ring(); L = []; D = []
        LEAD = c.get("leadA", 10); BOFF = c.get("boffA", 16); BUB = c.get("bubA", 5)
        xf = lambda ch, u, ks: A_XF + 32 * (ch & 1) + 8 * u + 4 * ks
        bar = {ch: 56 * ch - BOFF for ch in range(1, 8)}; bar[0] = -1; bar[8] = 10 ** 6
        xlast = {}
        for ch in range(8):
            Lx = []; Lw = []
            firstx = {}
            for j in range(8):
                us = [0, 1, 2] + ([3] if j in ACT else [])
                m0 = G.n(); last = m0 + 2 * len(us) - 1
                fr = []
                for ks in range(2):
                    reg, lo = ring.alloc(last - 1 + ks); fr.append(reg)
                    for eh in range(2):
                        Lw.append((m0 + ks, Op(I("ds_read_b64_tr_b16 %s, v%d offset:%d" % (ar(reg + 2 * eh, 2), V_AW + j, WS_(ch) - WQ_WIN + ks * 8192 + eh * 1024)),
                                               max(lo, bar[ch]), min(m0 + ks - LEAD, bar[ch + 1] - BUB), hard=min(m0 + ks - 1, bar[ch + 1] - 1))))
                for u in us:
                    for ks in range(2):
                        A = self.acc(u, j)
                        m = G.mfma("%s %s, %s, %s, %s" % (MF, vr(A), ar(fr[ks]), ar(xf(ch, u, ks)), "0" if ch == 0 and ks == 0 else vr(A)))
                        firstx.setdefault((u, ks), m); xlast[(ch, u, ks)] = m
            for (u, ks), m in firstx.items():
                lo = max(bar[ch], xlast.get((ch - 2, u, ks), -1))
                Lx.append((m, Op(I("ds_read_b128 %s, v%d offset:%d" % (ar(xf(ch, u, ks)), V_AX + (2 if u == 3 else 0) + ks, XS(ch) + (u * 2048 if u < 3 else 0))), lo, m - LEAD, hard=m - 1)))
            L += [o for m, o in sorted(Lx + Lw, key=lambda t: t[0])]
        n = G.n()
        for ch in range(8):
            lo = max(bar[ch], 0); hi = min(bar[ch + 1] - 1, n - 1)
            extra = c["kvA"].get(ch, [])
            if ch + 2 < 8:
                mid = hi if not extra else lo + (hi - lo) * 11 // (11 + 4 * len(extra))
                D += stage_dma(ch + 2, lo, mid); lo = mid
            for k, (kind, i) in enumerate(extra):
                l0 = lo + (hi - lo) * k // len(extra); h0 = lo + (hi - lo) * (k + 1) // len(extra)
                D += tile_dma(kind, i, KSL(i) if kind == "K" else VSL(i), max(bar[ch], 0), h0, c.get("nt", True))
        for ch in range(1, 8): G.pre[bar[ch]] += [W(vm="A%d" % ch, lgkm0=True), I("s_barrier")]
        self.add([W(vm="A0"), I("s_barrier")])
        self.stamp("A0")
        schedule(G, L, D, [], [], "phaseA"); self.gstamps(G, "a")
        self.add(G.flatten())

    def transAB(self):
        a = self
        fr = [(u, s) for u in (3, 0, 1, 2) for s in range(4) if u < 3 or s % 2 == 0]
        base = lambda u, s: self.acc(u, 2 * s)
        def conv(lst):
            for u, s in lst:
                A = base(u, s)
                for k in range(4): a("v_pk_mul_f32 %s, %s, %s" % (vr(A + 2 * k, 2), vr(A + 2 * k, 2), sr(S_C0, 2)))
                for k in range(4): a("v_cvt_pk_bf16_f32 v%d, v%d, v%d" % (A + k, A + 2 * k, A + 2 * k + 1))
            for u, s in lst:
                A = base(u, s)
                a("v_permlane16_swap_b32 v%d, v%d" % (A, A + 2)); a("v_permlane16_swap_b32 v%d, v%d" % (A + 1, A + 3))
        conv(fr[:2])
        for k, (u, s) in enumerate(fr[:2]): a("ds_write_b128 v%d, %s offset:%d" % (V_SCR, vr(base(u, s)), QSCR + k * 1024))
        conv(fr[2:])
        for u, s in fr:
            for k in range(4): a("v_accvgpr_write_b32 a%d, v%d" % (A_Q + 16 * u + 4 * s + k, base(u, s) + k))
        a("v_xor_b32 v%d, 0x1000, v%d" % (V_T, V_SCR))
        a.add([W(vm="K0", lgkm0=True), I("s_barrier")])
        for k in range(2): a("ds_read_b128 %s, v%d offset:%d" % (ar(A_Q + 48 + 4 * (2 * k + 1)), V_T, QSCR + k * 1024))
        a("s_add_u32 s%d, s%d, 1" % (S_T0, S_XCC)); a("s_lshl_b32 s%d, s%d, 3" % (S_T1, S_CQ)); a("s_lshl_b32 s%d, s%d, s%d" % (S_T0, S_T0, S_T1))
        a("s_lshl_b32 s%d, s%d, 3" % (S_T1, S_B)); a("s_add_u32 s%d, s%d, s%d" % (S_T1, S_T1, S_HG)); a("s_lshl_b32 s%d, s%d, 2" % (S_T1, S_T1))
        a("s_lshl_b32 s%d, s3, 8" % S_T2); a("s_add_u32 s%d, s%d, s%d" % (S_T2, S_T2, S_T1))
        a("v_mov_b32 v%d, s%d" % (V_T + 1, S_T0))
        a("buffer_atomic_add v%d, v%d, %s, s%d offen" % (V_T + 1, V_L0, sr(SRD_DBG), S_T2), "hello")

    def rowmax_finish(self, M):
        a = self; T = V_T
        for u in range(4): a("v_mov_b32 v%d, v%d" % (T + u, M[u]))
        for u in range(4): a("v_permlane16_swap_b32 v%d, v%d" % (M[u], T + u))
        for u in range(4): a("v_max_f32 v%d, v%d, v%d" % (M[u], M[u], T + u))
        for u in range(4): a("v_mov_b32 v%d, v%d" % (T + u, M[u]))
        for u in range(4): a("v_permlane32_swap_b32 v%d, v%d" % (M[u], T + u))
        for u in range(4): a("v_max_f32 v%d, v%d, v%d" % (M[u], M[u], T + u))
        for u in range(4):
            for k in range(4): a("v_sub_f32 v%d, 0, v%d" % (V_NEGM + 4 * u + k, M[u]))

    def premax(self):
        a = self; T = V_T
        for s in range(4): a("v_and_b32 v%d, 0xffffdfff, v%d" % (T + 4 + s, V_AKX + s))
        for s in range(4): a("ds_read_b128 %s, v%d offset:%d" % (ar(A_XF + 4 * s), T + 4 + s, KSL(0) - K_WIN))
        for u in range(4):
            for s in range(4):
                D = V_SY + 4 * u
                a("%s %s, %s, %s, %s" % (MF, vr(D), ar(A_XF + 4 * s), ar(A_Q + 16 * u + 4 * s), "0" if s == 0 else vr(D)))
        for u in range(4):
            D = V_SY + 4 * u
            a("v_max3_f32 v%d, v%d, v%d, v%d" % (D, D, D + 1, D + 2))
        for u in range(4):
            D = V_SY + 4 * u
            a("v_max_f32 v%d, v%d, v%d" % (D, D, D + 3))
        self.rowmax_finish([V_SY + 4 * u for u in range(4)])

    def attention(self):
        c = self.c
        G = Gaps(); ring = Ring(); L = []; D = []; X = []; C = []
        LEAD = c.get("leadB", 10); BOFF = c.get("boffB", 13); BUB = c.get("bubB", 5); SLAT = 5
        pend = {}
        segs = [("QK", "X", 0), ("QK", "Y", 0)]
        for i in range(8):
            segs += [("PV", "X", i)] + ([("QK", "X", i + 1)] if i < 7 else []) + [("PV", "Y", i)] + ([("QK", "Y", i + 1)] if i < 7 else [])
        pos = {}; p = 0
        for sg in segs:
            pos[sg] = p; nu = 4 if sg[1] == "X" else 3
            p += 8 * nu + (nu if sg[0] == "PV" else 0)
        bar = {i: pos[("PV", "X", i)] - BOFF for i in range(8)}; bar[-1] = -1; bar[8] = 10 ** 6
        sm = []
        for op, un, i in segs:
            nu = 4 if un == "X" else 3; S = V_SX if un == "X" else V_SY
            if op == "QK":
                st = i - 1; ad = V_AKX if un == "X" else V_AKY
                pv0 = pos[("PV", un, i)]
                for kt in range(2):
                    m0 = G.n(); fr = []
                    for s in range(4):
                        reg, lo = ring.alloc(m0 + 4 * (nu - 1) + s); fr.append(reg)
                        L.append(Op(I("ds_read_b128 %s, v%d offset:%d" % (ar(reg), ad + s, KSL(i) - K_WIN + kt * 4096)),
                                    max(lo, bar[st]), min(m0 + s - LEAD, bar[st + 1] - BUB), hard=min(m0 + s - 1, bar[st + 1] - 1)))
                    for u in range(nu):
                        Dd = S + 8 * u + 4 * kt
                        for s in range(4):
                            m = G.mfma("%s %s, %s, %s, %s" % (MF, vr(Dd), ar(fr[s]), ar(A_Q + 16 * u + 4 * s), vr(V_NEGM + 4 * u) if s == 0 else vr(Dd)))
                        dl = pv0 + u - 2
                        ex = [Op(I("v_exp_f32 v%d, v%d" % (Dd + k, Dd + k)), m + SLAT, dl - 1) for k in range(4)]
                        cv = [Op(I("v_cvt_pk_bf16_f32 v%d, v%d, v%d" % (S + 8 * u + 2 * kt + k, Dd + 2 * k, Dd + 2 * k + 1)), m + SLAT, dl, dep=ex[2 * k:2 * k + 2]) for k in range(2)]
                        X += ex; C += cv
            else:
                ad = V_AVX if un == "X" else V_AVY
                first = (un == "X" and i == 0)
                for j in range(8):
                    m0 = G.n()
                    reg, lo = ring.alloc(m0 + nu - 1)
                    for t in range(2):
                        L.append(Op(I("ds_read_b64_tr_b16 %s, v%d offset:%d" % (ar(reg + 2 * t, 2), ad + j, VSL(i) - V_WIN + t * 4096)),
                                    max(lo, bar[i]), min(m0 - LEAD, bar[i + 1] - BUB), hard=min(m0 - 1, bar[i + 1] - 1)))
                    for u in range(nu):
                        O = V_O + (u * 8 + j) * 4
                        G.mfma("%s %s, %s, %s, %s" % (MF, vr(O), ar(reg), vr(S + 8 * u), "0" if first else vr(O)))
                    if j == 0:
                        for u in range(nu):
                            G.mfma("%s %s, %s, %s, %s" % (MF, ar(A_L + 4 * u), ar(A_ONE), vr(S + 8 * u), "0" if first else ar(A_L + 4 * u)))
        n = G.n()
        for i in range(-1, 8):
            lo = max(bar[i], 0); hi = min(bar[i + 1] - 1, n - 1); lst = c["kvB"].get(i, [])
            for k, (kind, ix) in enumerate(lst):
                h0 = lo + (hi - lo) * (k + 1) // len(lst)
                D += tile_dma(kind, ix, KSL(ix) if kind == "K" else VSL(ix) if kind == "V" else WOSL[ix], lo + 1, h0, c.get("nt", True))
        for i in range(8): G.pre[bar[i]] += [W(vm=["V%d" % i, "K%d" % (i + 1)], lgkm0=True), I("s_barrier")]
        schedule(G, L, D, X, C, "attention"); self.gstamps(G, "b")
        self.add(G.flatten())

    def ofrag(self, u, s): return V_SX + 4 * (4 * u + s if u < 3 else 12 + s // 2)
    def transBC(self):
        a = self; T = V_T; c = self.c
        sc = " sc1" if c.get("osc1", 1) else ""
        for k, j in enumerate((2, 3, 6, 7)): a("ds_write_b128 v%d, %s offset:%d" % (V_SCR, vr(V_O + (24 + j) * 4), OSCR - SL(2) + k * 1024), None)
        for u in range(4): a("v_accvgpr_read_b32 v%d, a%d" % (T + u, A_L + 4 * u))
        a("v_max3_f32 v%d, v%d, v%d, v%d" % (T + 4, T, T + 1, T + 2)); a("v_max_f32 v%d, v%d, v%d" % (T + 4, T + 4, T + 3))
        a("v_cmp_lt_f32 vcc, 0x%x, v%d" % (f2u(2.0 ** 40), T + 4))
        a("s_cmp_lg_u64 vcc, 0"); a("s_cselect_b32 s%d, 1, 0" % S_T0)
        a("v_mov_b32 v%d, s%d" % (T + 4, S_T0))
        a("v_lshlrev_b32 v%d, 2, v0" % (T + 5)); a("s_lshl_b32 s%d, s3, 8" % S_T1); a("s_add_u32 s%d, s%d, 0x%x" % (S_T1, S_T1, LSCR)); a("v_add_u32 v%d, s%d, v%d" % (T + 5, S_T1, T + 5))
        a("s_lshl_b32 s%d, s3, 2" % S_T1); a("s_add_u32 s%d, s%d, 0x%x" % (S_T1, S_T1, LSCR + 1024)); a("v_mov_b32 v%d, s%d" % (T + 6, S_T1))
        a("ds_write_b32 v%d, v%d" % (T + 5, T + 3)); a("ds_write_b32 v%d, v%d" % (T + 6, T + 4))
        a("v_xor_b32 v%d, 0x100, v%d" % (T + 5, T + 5)); a("v_mov_b32 v%d, 0x%x" % (T + 6, LSCR + 1024)); a("v_xor_b32 v%d, 0x1000, v%d" % (T + 7, V_SCR))
        for u in range(3): a("v_rcp_f32 v%d, v%d" % (T + u, T + u))
        a.add([W(vm=["WO(0, 0)", "WO(0, 1)"], lgkm0=True), I("s_barrier")])
        a.stamp("M")
        a("ds_read_b128 %s, v%d" % (vr(4), T + 6))
        a("ds_read_b32 v%d, v%d" % (T + 4, T + 5))
        for k, j in enumerate((2, 3, 6, 7)): a("ds_read_b128 %s, v%d offset:%d" % (vr(V_O + (24 + j) * 4), T + 7, OSCR - SL(2) + k * 1024))
        a("s_lshl_b32 s%d, s%d, 5" % (S_T3, S_B)); a("v_and_b32 v1, 7, v0"); a("v_lshlrev_b32 v1, 2, v1")
        a("buffer_load_dword v%d, v1, %s, s%d offen sc1" % (T + 8, sr(SRD_DBG), S_T3), "hl")
        a("v_or_b32 v4, v4, v5"); a("v_or3_b32 v4, v4, v6, v7"); a("v_readfirstlane_b32 s%d, v4" % S_T0)
        a("s_andn2_b32 s%d, s%d, s%d" % (S_T0, S_T0, S_RETRY)); a("s_cbranch_scc1 L_fallback")
        def norm(u, s, rl):
            O = V_O + (u * 8 + 2 * s) * 4; F = self.ofrag(u, s)
            for k in range(4): a("v_pk_mul_f32 %s, %s, %s op_sel_hi:[1,0]" % (vr(O + 2 * k, 2), vr(O + 2 * k, 2), vr(rl, 2)))
            for k in range(4): a("v_cvt_pk_bf16_f32 v%d, v%d, v%d" % (F + k, O + 2 * k, O + 2 * k + 1))
        def store(f):
            if f == 0: a("s_mul_i32 s%d, s%d, 14336" % (S_SO, S_CQ)); a("s_add_u32 s%d, s%d, s%d" % (S_SO, S_SO, S_OB))
            elif f % 4 == 0: a("s_add_u32 s%d, s%d, 4096" % (S_SO, S_SO))
            a("buffer_store_dwordx4 %s, v%d, %s, s%d offen offset:%d%s" % (vr(V_SX + 4 * f), V_L16, sr(SRD_WS), S_SO, (f % 4) * 1024, sc), "ost")
        a("v_mov_b32 v2, v%d" % T); a("v_mov_b32 v4, v%d" % (T + 1)); a("v_mov_b32 v6, v%d" % (T + 2))
        for u in range(3):
            for s in range(4): norm(u, s, 2 + 2 * u)
            for s in range(4): store(4 * u + s)
        a("v_add_f32 v%d, v%d, v%d" % (T + 3, T + 3, T + 4)); a("v_rcp_f32 v2, v%d" % (T + 3))
        for j in ACT:
            O = V_O + (24 + j) * 4
            for k in range(2): a("v_pk_add_f32 %s, %s, %s" % (vr(O + 2 * k, 2), vr(O + 2 * k, 2), vr(O + 8 + 2 * k, 2)))
        for s in (0, 2): norm(3, s, 2)
        store(12); store(13)
        a("s_lshl_b32 s%d, s%d, 1" % (S_T0, S_E)); a("s_xor_b32 s%d, s%d, s%d" % (S_T0, S_T0, S_HG)); a("s_lshl_b32 s%d, s%d, 5" % (S_T0, S_T0))
        a("s_or_b32 s%d, s%d, 0x%x" % (S_T0, S_T0, V_WIN))
        for k in range(16): a("v_xor_b32 v%d, s%d, v%d" % (V_AVX + k, S_T0, V_AVX + k))
        for k in range(16): a("v_add_u32 v%d, 0x%x, v%d" % (V_NEGM + k, SL(6), V_AVX + k))
        a("L_hello:")
        a("v_subrev_u32 v2, 0x01010101, v%d" % (T + 8)); a("v_not_b32 v3, v%d" % (T + 8)); a("v_and_b32 v2, v2, v3"); a("v_and_b32 v2, 0x80808080, v2")
        a("v_cmp_ne_u32 vcc, 0, v2"); a("s_cbranch_vccnz L_hello_spin")
        a("L_hello_ok:")
        a("s_barrier")
        self.tail = []
        t = self.tail.append
        for s in ["L_hello_spin:", "s_add_u32 s%d, s%d, 1" % (S_SPIN, S_SPIN), "s_cmp_ge_u32 s%d, 0x%x" % (S_SPIN, SPIN_MAX), "s_cbranch_scc1 L_hello_ok", "s_sleep 4", "buffer_load_dword v%d, v1, %s, s%d offen sc1" % (T + 8, sr(SRD_DBG), S_T3), "s_waitcnt vmcnt(0)", "s_branch L_hello"]: t(I(s))

    def spin(self, name, load):
        for s in ["L_%s_spin:" % name, "s_add_u32 s%d, s%d, 1" % (S_SPIN, S_SPIN), "s_cmp_ge_u32 s%d, 0x%x" % (S_SPIN, SPIN_MAX), "s_cbranch_scc1 L_%s_ok" % name,
                  "s_sleep 1", load, "s_waitcnt vmcnt(0)", "s_branch L_%s" % name]: self.tail.append(I(s))

    def phaseC(self):
        a = self; c = self.c; T = V_T
        sc = " sc1" if c.get("osc1", 1) else ""
        G = Gaps(); ring = Ring(); L = []; D = []; X = []; C = []
        LEAD = c.get("leadC", 10)
        acc = lambda u, j: V_O + (j * 4 + u) * 4
        fidx = lambda u, s: 4 * u + s if u < 3 else 12 + s // 2
        def bfrag(hh, u, s):
            return vr(V_SX + 4 * fidx(u, s)) if hh == 0 else ar(56 * (hh - 1) + 4 * fidx(u, s))
        JO = [1, 2, 3, 4, 5, 6, 7, 0]
        groups = [[(0, j, s) for s in range(4)] for j in JO]
        nP0 = 14 * 8
        groups += [[(hh, j, 0)] for hh in (1, 2, 3) for j in JO]
        groups += [[(hh, j, 1) for hh in (1, 2, 3)] for j in JO]
        fill = c.get("fillC", [0, 7])
        groups += [[(hh, j, 2) for hh in (1, 2, 3)] for j in fill]
        for j in JO:
            if j not in fill: groups.append([(hh, j, 2) for hh in (1, 2, 3)])
            groups.append([(hh, j, 3) for hh in (1, 2, 3)])
        barW = nP0 - c.get("boffC", 12)
        started = set(); done = {}; firstuse = {}
        for grp in groups:
            m0 = G.n(); fr = []
            seq = [(u, k) for u in range(4) for k, (hh, j, s) in enumerate(grp) if not (u == 3 and s & 1)]
            for k, (hh, j, s) in enumerate(grp):
                us = [i for i, (u, kk) in enumerate(seq) if kk == k]
                reg, lo = ring.alloc(m0 + us[-1]); fr.append(reg)
                slot = WOSL[(hh, s >> 1)]
                ad = (V_AVX if hh < 2 else V_NEGM) + (8 if s & 1 else 0) + j
                off = slot - (0 if hh < 2 else SL(6))
                for t in range(2):
                    L.append(Op(I("ds_read_b64_tr_b16 %s, v%d offset:%d" % (ar(reg + 2 * t, 2), ad, off + t * 4096)), max(lo, barW if hh else -1), m0 + us[0] - LEAD, hard=m0 + us[0] - 1))
            for u, k in seq:
                hh, j, s = grp[k]; A = acc(u, j)
                m = G.mfma("%s %s, %s, %s, %s" % (MF, vr(A), ar(fr[k]), bfrag(hh, u, s), vr(A) if (u, j) in started else "0"))
                started.add((u, j)); done[(u, j)] = m; firstuse.setdefault((hh, u, s), m)
        n = G.n()
        D += tile_dma("WO", (3, 1), WOSL[(3, 1)], 0, 8)
        g1 = c.get("gflag", 90); g2 = c.get("gpoll", 92); g3 = c.get("gchk", 96)
        a("v_mov_b32 v%d, 1" % (T + 9))
        D.append(Op(I("buffer_store_dword v%d, v%d, %s, s%d offen%s" % (T + 9, V_L0, sr(SRD_WS), S_FL, sc), "flag"), g1, g1, pre=[W(vm="ost")]))
        pl = "buffer_load_dword v%d, v%d, %s, 0 offen sc1" % (T + 8, V_POLL, sr(SRD_WS))
        D.append(Op(I(pl, "poll"), g2, g2))
        G.val[g3] += [I("L_poll:"), I("v_cmp_ne_u32 vcc, 1, v%d" % (T + 8)), I("s_cbranch_vccnz L_poll_spin"), I("L_poll_ok:")]
        self.spin("poll", pl)
        for hh in (1, 2, 3):
            a("s_xor_b32 s%d, s%d, %d" % (S_T0, S_CQ, hh)); a("s_mul_i32 s%d, s%d, 14336" % (S_T0, S_T0)); a("s_add_u32 s%d, s%d, s%d" % (S_XB + hh - 1, S_T0, S_OB))
        for u in range(1, 4): a("v_add_u32 v%d, %d, v%d" % (V_OK + u, 4096 * u, V_L16))
        a("v_mov_b32 v%d, v%d" % (V_OK, V_L16))
        k = 0; sp = c.get("ospace", 2)
        for s in range(4):
            for hh in (1, 2, 3):
                for u in range(4):
                    if u == 3 and s & 1: continue
                    f = fidx(u, s)
                    D.append(Op(I("buffer_load_dwordx4 %s, v%d, %s, s%d offen offset:%d sc1" % (ar(56 * (hh - 1) + 4 * f), V_OK + u, sr(SRD_WS), S_XB + hh - 1, (f % 4) * 1024), "of"),
                                g3 + 1 + (k if k < 12 else 12 + sp * (k - 12)), g3 + 1 + (k if k < 12 else 12 + sp * (k - 12)), hard=firstuse[(hh, u, s)] - 1)); k += 1
        G.pre[barW] += [W(vm=["WO(%d, %d)" % (hh, hf) for hh in (1, 2, 3) for hf in (0, 1)]), I("s_barrier")]
        NA = c.get("nA", 4)
        for idx, j in enumerate(range(1, 8)):
            B = (V_AKX if idx & 1 else V_T)
            last = max(done[(u, j)] for u in range(4))
            prev = max(done[(u, j - 1)] for u in range(4)) if j > 1 else 0
            cv = {}
            for u in (3, 0, 1, 2):
                for k in range(2):
                    cv[(u, k)] = Op(I("v_cvt_pk_bf16_f32 v%d, v%d, v%d" % (B + 2 * u + k, acc(u, j) + 2 * k, acc(u, j) + 2 * k + 1)), max(done[(u, j)] + 5, prev), min(last + 9, n - 3))
                    C.append(cv[(u, k)])
            st = [I("buffer_store_dwordx4 %s, v%d, %s, s%d offen offset:%d sc1" % (vr(B + 4 * hf), V_L16, sr(SRD_WS), S_SO, hf * 1024), "pst%d" % j) for hf in range(2)]
            pre = [I("s_xor_b32 s%d, s%d, %d" % (S_SO, S_HG, j)), I("s_mul_i32 s%d, s%d, 57344" % (S_SO, S_SO)), I("s_add_u32 s%d, s%d, s%d" % (S_SO, S_SO, S_PB)), I("s_add_u32 s%d, s%d, %d" % (S_SO, S_SO, j * 8192))]
            D.append(Op(st[0], min(done[(1, j)] + 6, n - 2), last + 5, hard=min(last + 10, n - 2), pre=pre, dep=[cv[(u, k)] for u in (0, 1) for k in range(2)]))
            D.append(Op(st[1], min(last + 6, n - 1), last + 7, hard=min(last + 11, n - 1), dep=[cv[(u, k)] for u in (2, 3) for k in range(2)]))
        schedule(G, L, D, X, C, "phaseC"); self.gstamps(G, "c")
        self.add(G.flatten())
        a.stamp("C1")
        a("s_add_u32 s%d, s%d, 0x%x" % (S_FL, S_FL, FL2))
        a.add([W(vm="pst%d" % NA)])
        a("buffer_store_dword v%d, v%d, %s, s%d offen sc1" % (T + 9, V_L0, sr(SRD_WS), S_FL), "flagA")
        a("v_and_b32 v1, 7, v0"); a("v_lshlrev_b32 v2, 11, v1"); a("v_xor_b32 v%d, s%d, v2" % (V_POLL, S_FL))
        a("v_cmp_ge_u32 vcc, %d, v1" % NA); a("v_mov_b32 v%d, 2" % (T + 9)); a("v_cndmask_b32 v3, 0, 1, vcc")
        a("s_mul_i32 s%d, s%d, 57344" % (S_T0, S_HG)); a("s_add_u32 s%d, s%d, s%d" % (S_PB, S_PB, S_T0))
        a("s_mul_i32 s%d, s%d, 224" % (S_T0, S_B)); a("s_lshr_b32 s%d, s3, 1" % S_T1); a("s_mul_i32 s%d, s%d, 112" % (S_T1, S_T1)); a("s_add_u32 s%d, s%d, s%d" % (S_T0, S_T0, S_T1))
        a("s_lshl_b32 s%d, s%d, 10" % (S_T0, S_T0)); a("s_lshl_b32 s%d, s%d, 8" % (S_T1, S_CQ)); a("s_add_u32 s%d, s%d, s%d" % (S_T0, S_T0, S_T1))
        a("s_lshl_b32 s%d, s%d, 5" % (S_T1, S_HG)); a("s_add_u32 s%d, s%d, s%d" % (S_T0, S_T0, S_T1))
        a("s_lshl_b32 s%d, s%d, 16" % (S_T1, S_E)); a("s_add_u32 s%d, s%d, s%d" % (S_T1, S_T1, S_T0)); a("s_add_u32 s%d, s%d, %d" % (S_T2, S_T0, 48 * 1024))
        a("v_and_b32 v4, 15, v0"); a("v_lshlrev_b32 v4, 10, v4"); a("v_lshrrev_b32 v5, 4, v0"); a("v_lshl_add_u32 v%d, v5, 3, v4" % V_OK)
        a("v_xor_b32 v%d, 0x1000, v%d" % (V_OK + 1, V_SCR))
        a.add([W(vm="pst7")])
        a("buffer_store_dword v%d, v%d, %s, s%d offen sc1" % (T + 9, V_L0, sr(SRD_WS), S_FL), "flagB")
        a(pl, "poll")
        a.stamp("T0")
        a("L_pa:"); a("v_cmp_lt_u32 vcc, v%d, v3" % (T + 8)); a("s_cbranch_vccnz L_pa_spin"); a("L_pa_ok:")
        self.spin("pa", pl)
        a.stamp("T1")
        def ld(j):
            a("s_add_u32 s%d, s%d, %d" % (S_SO, S_PB, j * 8192))
            for hf in range(2): a("buffer_load_dwordx4 %s, v%d, %s, s%d offen offset:%d sc1" % (vr(acc(hf, j)), V_L16, sr(SRD_WS), S_SO, hf * 1024), "in%d" % j)
        def red(j):
            for d in range(8):
                x = acc(0, j) + d; t = acc(2, j) + 2 * (d & 3)
                a("v_lshlrev_b32 v%d, 16, v%d" % (t, x)); a("v_and_b32 v%d, 0xffff0000, v%d" % (t + 1, x))
                a("v_pk_add_f32 %s, %s, %s" % (vr(V_O + 2 * d, 2), vr(V_O + 2 * d, 2), vr(t, 2)))
        NP = c.get("nP", 2)
        for j in range(1, NP + 1): ld(j)
        a(pl, "poll")
        for j in range(NP + 1, NA + 1): ld(j)
        for j in range(1, NP + 1): red(j)
        a("L_pb:"); a("v_cmp_gt_u32 vcc, 2, v%d" % (T + 8)); a("s_cbranch_vccnz L_pb_spin"); a("L_pb_ok:")
        self.spin("pb", pl)
        a.stamp("T2")
        for j in range(NA + 1, 8): ld(j)
        for j in range(NP + 1, 8): red(j)
        a.stamp("T3")
        a("ds_write_b128 v%d, %s offset:%d" % (V_SCR, vr(acc(3, 0)), OSCR - SL(2)))
        osc = c.get("outsc", "")
        for u in range(3):
            for k in range(2): a("v_cvt_pk_bf16_f32 v%d, v%d, v%d" % (T + 2 * u + k, acc(u, 0) + 2 * k, acc(u, 0) + 2 * k + 1))
        a.add([W(lgkm0=True), I("s_barrier")])
        a("ds_read_b128 %s, v%d offset:%d" % (vr(4), V_OK + 1, OSCR - SL(2)))
        for u in range(3):
            a("buffer_store_dwordx2 %s, v%d, %s, s%d offen%s" % (vr(T + 2 * u, 2), V_OK, sr(SRD_OUT), S_T1, osc))
            if u < 2: a("s_add_u32 s%d, s%d, 16384" % (S_T1, S_T1))
        a("s_cmp_eq_u32 s%d, 1" % S_E); a("s_cbranch_scc1 L_fin")
        for k in range(2): a("v_pk_add_f32 %s, %s, %s" % (vr(4 + 2 * k, 2), vr(4 + 2 * k, 2), vr(acc(3, 0) + 2 * k, 2)))
        for k in range(2): a("v_cvt_pk_bf16_f32 v%d, v%d, v%d" % (2 + k, 4 + 2 * k, 5 + 2 * k))
        a("buffer_store_dwordx2 %s, v%d, %s, s%d offen%s" % (vr(2, 2), V_OK, sr(SRD_OUT), S_T2, osc))
        a("L_fin:")

    def fallback(self):
        t = lambda s: self.tail.append(I(s)); T = V_T
        t("L_fallback:")
        t("s_waitcnt vmcnt(0) lgkmcnt(0)"); t("s_barrier")
        t("s_mov_b32 s%d, 1" % S_RETRY); t("s_mov_b32 s%d, 0" % S_KC)
        M = [V_NEGM + 4 * u for u in range(4)]
        for u in range(4): t("v_mov_b32 v%d, 0xff800000" % M[u])
        t("L_fb_loop:")
        t("s_add_u32 m0, s%d, 0x%x" % (S_L4, KSL(0))); t("s_add_u32 s%d, s%d, s%d" % (S_SO, S_KVB, S_KC))
        for j in range(4): t("buffer_load_dwordx4 v%d, %s, s%d offen offset:%d lds" % (V_OK + j, sr(SRD_K), S_SO, j * 1024))
        t("s_waitcnt vmcnt(0)"); t("s_barrier")
        for ad in (V_AKX, V_AKY):
            for kt in range(2):
                for s in range(4): t("ds_read_b128 %s, v%d offset:%d" % (ar(A_XF + 4 * s), ad + s, KSL(0) - K_WIN + kt * 4096))
                t("s_waitcnt lgkmcnt(0)")
                for u in range(4):
                    for s in range(4):
                        Dd = V_SY + 4 * u
                        t("%s %s, %s, %s, %s" % (MF, vr(Dd), ar(A_XF + 4 * s), ar(A_Q + 16 * u + 4 * s), "0" if s == 0 else vr(Dd)))
                t("s_nop 7")
                for u in range(4):
                    Dd = V_SY + 4 * u
                    t("v_max3_f32 v%d, v%d, v%d, v%d" % (M[u], M[u], Dd, Dd + 1)); t("v_max3_f32 v%d, v%d, v%d, v%d" % (M[u], M[u], Dd + 2, Dd + 3))
                t("s_nop 1")
        t("s_barrier")
        t("s_add_u32 s%d, s%d, 0x4000" % (S_KC, S_KC)); t("s_cmp_lt_u32 s%d, 0x20000" % S_KC); t("s_cbranch_scc1 L_fb_loop")
        for u in range(4): t("v_mov_b32 v%d, v%d" % (V_SY + u, M[u]))
        save = self.ins; self.ins = self.tail
        self.rowmax_finish([V_SY + u for u in range(4)])
        for ch in sorted(self.c["kvA"]):
            for kind, i in self.c["kvA"][ch]: self.add(flat(tile_dma(kind, i, KSL(i) if kind == "K" else VSL(i), 0, 0)))
        self.ins = save
        t("s_waitcnt vmcnt(0)"); t("s_barrier"); t("s_branch L_attn")

    def build(self):
        a = self
        self.prologue(); self.phaseA(); self.stamp("A1"); self.transAB(); self.stamp("Q")
        a("v_add_u32 v%d, 0x%x, v%d" % (V_SCR, SL(2), V_SCR))
        self.premax(); self.stamp("B0")
        a("s_waitcnt lgkmcnt(0)")
        a("L_attn:")
        self.attention(); self.stamp("B1"); self.transBC(); self.stamp("C0"); self.phaseC()
        self.fallback()
        main = insert_waits(self.ins)
        main, n1 = fix_hazards(main, self.c.get("verbose"))
        tail, n2 = fix_hazards(self.tail)
        sys.stderr.write("hazard pads %d, instructions %d\n" % (n1, len(main) + len(tail)))
        A = Asm()
        for i in main:
            if i.kind == "label": A.raw(i.t)
            else: A(i.t)
        if self.c.get("stamps"):
            A("s_waitcnt vmcnt(0)")
            self.nst = 1 + len(self.c["stamps"].split(","))
            b = STAMP0 + 4 * self.nst; self.nst += 1
            A("s_memrealtime s[%d:%d]" % (b, b + 1)); A("s_memtime s[%d:%d]" % (b + 2, b + 3))
            A.stamps_init(STAMP0, self.nst); A.stamps_flush(18, 2, 3, S_T0, v0=2)
            sys.stderr.write("stamps: %d\n" % (2 * self.nst))
        A.label("L_end"); A("s_endpgm")
        for i in tail:
            if i.kind == "label": A.raw(i.t)
            else: A(i.t)
        A.label("L_codeend")
        return A.text()

def reduce_kernel():
    a = Asm()
    a("s_cmp_ge_u32 s2, 256"); a("s_cbranch_scc1 R_end")
    a("s_load_dwordx2 s[4:5], s[0:1], 40"); a("s_load_dwordx2 s[6:7], s[0:1], 56")
    a("v_lshrrev_b32 v1, 6, v0"); a("v_and_b32 v0, 63, v0"); a("v_readfirstlane_b32 s3, v1"); a("v_lshlrev_b32 v2, 4, v0")
    a("s_waitcnt lgkmcnt(0)")
    a("s_mov_b32 s8, s4"); a("s_and_b32 s9, s5, 0xffff"); a("s_mov_b32 s10, %d" % (8 * 224 * 512 * 2)); a("s_mov_b32 s11, 0x20000")
    a("s_mov_b32 s12, s6"); a("s_and_b32 s13, s7, 0xffff"); a("s_mov_b32 s14, 0x%x" % WS_BYTES); a("s_mov_b32 s15, 0x20000")
    a("s_lshl_b32 s16, s2, 16"); a("s_lshl_b32 s17, s3, 11"); a("s_add_u32 s16, s16, s17"); a("s_add_u32 s16, s16, 0x%x" % PB_OFF)
    for hg in range(8):
        a("s_add_u32 s17, s16, %d" % (hg * 8192)); a("s_xor_b32 s18, s17, 2048")
        a("buffer_load_dwordx4 %s, v2, s[12:15], s17 offen" % vr(32 + 12 * hg))
        a("buffer_load_dwordx4 %s, v2, s[12:15], s17 offen offset:1024" % vr(36 + 12 * hg))
        a("buffer_load_dwordx2 %s, v2, s[12:15], s18 offen offset:1032" % vr(40 + 12 * hg, 2))
    a("s_lshr_b32 s19, s2, 5"); a("s_mul_i32 s19, s19, 224"); a("s_lshr_b32 s20, s3, 1"); a("s_mul_i32 s20, s20, 112"); a("s_add_u32 s19, s19, s20")
    a("s_lshl_b32 s19, s19, 10"); a("s_and_b32 s20, s2, 31"); a("s_lshl_b32 s20, s20, 5"); a("s_add_u32 s19, s19, s20")
    a("s_and_b32 s20, s3, 1"); a("s_lshl_b32 s21, s20, 16"); a("s_add_u32 s21, s21, s19"); a("s_add_u32 s22, s19, %d" % (48 * 1024))
    a("v_and_b32 v3, 15, v0"); a("v_lshlrev_b32 v3, 10, v3"); a("v_lshrrev_b32 v4, 4, v0"); a("v_lshl_add_u32 v3, v4, 3, v3")
    for k in range(16): a("v_mov_b32 v%d, 0" % (8 + k))
    for hg in range(8):
        a("s_waitcnt vmcnt(%d)" % (21 - 3 * hg))
        for d in range(10):
            src = 32 + 12 * hg + d; dd = d if d < 8 else d - 2
            a("v_lshlrev_b32 v4, 16, v%d" % src); a("v_and_b32 v5, 0xffff0000, v%d" % src)
            a("v_add_f32 v%d, v%d, v4" % (8 + 2 * dd, 8 + 2 * dd)); a("v_add_f32 v%d, v%d, v5" % (9 + 2 * dd, 9 + 2 * dd))
    for d in range(8): a("v_cvt_pk_bf16_f32 v%d, v%d, v%d" % (24 + d, 8 + 2 * d, 9 + 2 * d))
    for u in range(3):
        a("buffer_store_dwordx2 %s, v3, s[8:11], s21 offen" % vr(24 + 2 * u, 2)); a("s_add_u32 s21, s21, 16384")
    a("s_cmp_eq_u32 s20, 1"); a("s_cbranch_scc1 R_end")
    a("buffer_store_dwordx2 %s, v3, s[8:11], s22 offen" % vr(30, 2))
    a.label("R_end"); a("s_endpgm")
    return a.text()

DEFAULT = dict(
    kvA={5: [("K", 0)], 6: [("V", 0), ("K", 1)], 7: [("V", 1)]},
    kvB={-1: [("K", 2)], 0: [("V", 2), ("K", 3)], 1: [("V", 3), ("K", 4)], 2: [("V", 4), ("K", 5)], 3: [("V", 5), ("K", 6)], 4: [("V", 6), ("K", 7)],
         5: [("V", 7), ("WO", (0, 0))], 6: [("WO", (0, 1)), ("WO", (1, 0)), ("WO", (2, 0))], 7: [("WO", (3, 0)), ("WO", (1, 1)), ("WO", (2, 1))]},
    touch_n=21,
)
HEADER = open("standalone__gqa_block_cached__near_ridge.s.ref").read().split("; Override")[0]

def generate(fn, **kw):
    cfg = dict(DEFAULT); cfg.update(kw)
    body = K(cfg).build()
    ks = [(KN, body, 256, 256, 163840, 512, 256)]
    open(fn, "w").write(wrap(ks, HEADER))

if __name__ == "__main__":
    import ast
    kw = {}
    for x in sys.argv[2:]:
        k, v = x.split("=", 1)
        try: v = ast.literal_eval(v)
        except Exception: pass
        kw[k] = v
    generate(sys.argv[1], **kw)
```

```python
import sys, math, struct
from asmlib import Asm, wrap, KN, STAMP_OFF
from stream import *

MF = "v_mfma_f32_16x16x32_bf16"
def vr(b, n=4): return "v[%d:%d]" % (b, b + n - 1)
def ar(b, n=4): return "a[%d:%d]" % (b, b + n - 1)
def sr(b, n=4): return "s[%d:%d]" % (b, b + n - 1)
def f2u(x): return struct.unpack("<I", struct.pack("<f", x))[0]

S_WG, S_W = 2, 3
SRD_X, SRD_WQ, SRD_K, SRD_V, SRD_WO, SRD_WS, SRD_OUT, SRD_DBG = 20, 24, 28, 32, 36, 40, 44, 48
S_B, S_H, S_HG, S_CQ, S_E, S_ROT = 4, 5, 6, 7, 8, 9
S_XB, S_WB, S_KVB, S_WOB, S_LX, S_L4 = 10, 11, 12, 13, 14, 15
S_OB, S_PB = 16, 17
S_C0 = 52
S_SO = 54
S_T0, S_T1, S_T2, S_T3 = 55, 56, 57, 58
S_XCC, S_RETRY, S_FL = 59, 60, 61
S_KC = 62
S_SPIN = 63
S_OS = 98
SPIN_MAX = 1 << 20
STAMP0 = 64
V_OK, V_OV, V_OO = 8, 12, 14
V_L16, V_L0, V_POLL, V_SCR = 18, 19, 20, 21
V_AKX, V_AKY, V_AVX, V_AVY = 22, 26, 30, 38
V_T = 46
V_SX, V_SY = 56, 88
V_NEGM = 112
V_O = 128
V_OX, V_OW, V_AX, V_AW = 56, 60, 64, 68
A_Q, A_L, A_ONE, A_XF, A_RING = 0, 64, 80, 96, 192
NRING = 16
SL = lambda i: i * 16384
XS = lambda c: ((7 - c) % 3) * 28672
WS_ = lambda c: SL(6 + (7 - c) % 3)
KSL = lambda i: SL([9, 8, 7][i % 3])
VSL = lambda i: SL([5, 4, 6][i % 3])
WOSL = {(0, 0): SL(0), (0, 1): SL(1), (1, 0): SL(2), (1, 1): SL(3), (2, 0): SL(7), (2, 1): SL(6), (3, 0): SL(9), (3, 1): SL(8)}
K_WIN, V_WIN, WQ_WIN = SL(6), SL(4), SL(6)
QSCR = SL(2); OSCR = SL(5); LSCR = SL(8)
OB_OFF, FL_OFF, PB_OFF = 0, 16 << 20, 32 << 20
FL2 = 1 << 17
WS_BYTES = 256 << 20
ACT = (0, 1, 4, 5)

class Op:
    def __init__(self, ins, lo, hi, hard=None, pre=(), dep=None):
        self.i = ins; self.lo = lo; self.hi = hi; self.hard = hi if hard is None else hard; self.pre = list(pre); self.dep = dep; self.g = None; self.use = self.hard + 1

def schedule(G, L, D, X, C, name=""):
    n = G.n()
    for q in (L, D, X, C):
        for k in range(len(q) - 2, -1, -1):
            q[k].hi = min(q[k].hi, q[k + 1].hi - 1); q[k].hard = min(q[k].hard, q[k + 1].hard)
    ptr = {"L": 0, "D": 0, "X": 0, "C": 0}; Q = {"L": L, "D": D, "X": X, "C": C}
    lastD = [-5]
    def head(k):
        return Q[k][ptr[k]] if ptr[k] < len(Q[k]) else None
    def avail(o, g, strict=True):
        if o is None or o.lo > g: return False
        if o.dep is not None:
            for d in o.dep:
                if d.g is None or (strict and d.g >= g): return False
        return True
    def put(k, g):
        o = head(k); o.g = g; ptr[k] += 1
        if g < 0:
            G.head += o.pre + [o.i]; return
        if k in "LD":
            pre = list(o.pre)
            if k == "D":
                if len(pre) >= 2 and lastD[0] < g - 1 and g - 1 >= 0 and o.lo <= g - 1 and not G.pre[g - 1]:
                    G.pre[g - 1].append(pre.pop(0))
                lastD[0] = g
            if G.mem[g] and pre: G.mem[g] += pre + [o.i]
            else: G.pre[g] += pre; G.mem[g].append(o.i)
        else: G.val[g].append(o.i)
    over = 0
    for g in range(-1, n):
        if g >= 0:
            cands = [(head(k).hi, k) for k in "LDX" if avail(head(k), g)]
            if cands and G.cost(g) <= 0:
                put(min(cands)[1], g)
            while G.cost(g) <= 4:
                if avail(head("C"), g): put("C", g)
                elif avail(head("X"), g) and head("X").i.op not in TRANS: put("X", g)
                else: break
        if g < 0:
            while head("L") is not None and head("L").hi < 0 and head("L").lo < 0: put("L", g)
        ch = True
        while ch:
            ch = False
            for k in "LDXC":
                o = head(k)
                if o is not None and o.hard <= g:
                    assert avail(o, g, False), "%s: cannot meet hard deadline g=%d lo=%d %s" % (name, g, o.lo, o.i.t)
                    put(k, g); ch = True; over += g >= 0
    for k in "LDXC": assert head(k) is None, (name, k, head(k).i.t, head(k).lo, n)
    leads = sorted(o.use - o.g for o in L if o.g >= 0)
    sys.stderr.write("%s: mfma %d est %d cycles (floor %d), forced %d, lds leads min %s\n" % (name, n, G.est(), 16 * n, over, leads[:24]))

class Ring:
    def __init__(self): self.k = 0; self.free_at = [-1] * NRING
    def alloc(self, last_use):
        s = self.k % NRING; self.k += 1; lo = self.free_at[s]; self.free_at[s] = last_use
        return A_RING + 4 * s, lo
    def peek(self, ahead=0): return A_RING + 4 * ((self.k + ahead) % NRING)

def tile_dma(kind, idx, lds, lo, hi, nt=True):
    ops = []
    if kind == "K": srd, vo, base, off, fl = SRD_K, lambda j: V_OK + j, S_KVB, idx * 16384, " nt" if nt else ""
    elif kind == "V": srd, vo, base, off, fl = SRD_V, lambda j: V_OV + (j & 1), S_KVB, idx * 16384, " nt" if nt else ""
    elif kind == "WO": srd, vo, fl = SRD_WO, lambda j: V_OO + j, ""
    tag = "%s%s" % (kind, idx)
    for j in range(4):
        pre = []
        if j == 0:
            pre = [I("s_add_u32 m0, s%d, 0x%x" % (S_L4, lds))]
            if kind == "WO":
                hh, half = idx
                pre += [I("s_xor_b32 s%d, s%d, 0x%x" % (S_SO, S_WOB, (hh << 17) | (half << 16)))]
            else: pre += [I("s_add_u32 s%d, s%d, 0x%x" % (S_SO, base, off))]
        h = lo + (hi - lo) * (j + 1) // 4
        ops.append(Op(I("buffer_load_dwordx4 v%d, %s, s%d offen offset:%d%s lds" % (vo(j), sr(srd), S_SO, j * 1024, fl), tag), lo, h, hard=hi, pre=pre))
    return ops

def stage_dma(c, lo, hi):
    ops = []; tag = "A%d" % c
    seq = []
    pre = [I("s_add_u32 s%d, s%d, %d" % (S_KC, S_ROT, c)), I("s_and_b32 s%d, s%d, 7" % (S_KC, S_KC)),
           I("s_lshl_b32 s%d, s%d, 19" % (S_SO, S_KC)), I("s_add_u32 m0, s%d, 0x%x" % (S_L4, WS_(c))), I("s_add_u32 s%d, s%d, s%d" % (S_SO, S_SO, S_WB))]
    for j in range(4):
        seq.append((I("buffer_load_dwordx4 v%d, %s, s%d offen offset:%d lds" % (V_OW + j, sr(SRD_WQ), S_SO, j * 1024), tag), pre if j == 0 else []))
    for j in range(7):
        p = []
        if j == 0: p = [I("s_add_u32 m0, s%d, 0x%x" % (S_LX, XS(c))), I("s_lshl_b32 s%d, s%d, 7" % (S_SO, S_KC)), I("s_add_u32 s%d, s%d, s%d" % (S_SO, S_SO, S_XB))]
        if j == 4: p = [I("s_add_u32 m0, s%d, 0x%x" % (S_LX, XS(c) + 4096)), I("s_add_u32 s%d, s%d, 0x8000" % (S_SO, S_SO))]
        seq.append((I("buffer_load_dwordx4 v%d, %s, s%d offen offset:%d lds" % (V_OX + (j & 3), sr(SRD_X), S_SO, (j & 3) * 1024), tag), p))
    for k, (ins, p) in enumerate(seq):
        ops.append(Op(ins, lo, lo + (hi - lo) * (k + 1) // len(seq), hard=hi, pre=p))
    return ops

def flat(ops):
    out = []
    for o in ops: out += o.pre + [o.i]
    return out

class K:
    def __init__(self, cfg):
        self.c = cfg; self.ins = []; self.nst = 0
    def __call__(self, s, tag=None):
        for l in s.split("\n"):
            l = l.strip()
            if l: self.ins.append(I(l, tag))
    def add(self, lst): self.ins += lst
    def stamp_ins(self, name):
        st = self.c.get("stamps")
        if not st or name not in st.split(","): return []
        b = STAMP0 + 4 * (1 + st.split(",").index(name))
        assert b + 7 <= 97
        return [I("s_waitcnt lgkmcnt(0)"), I("s_memrealtime s[%d:%d]" % (b, b + 1)), I("s_memtime s[%d:%d]" % (b + 2, b + 3)), I("s_waitcnt lgkmcnt(0)")]
    def stamp(self, name): self.add(self.stamp_ins(name))
    def gstamps(self, G, prefix):
        for nm in (self.c.get("stamps") or "").split(","):
            if nm.startswith(prefix) and nm[len(prefix):].isdigit(): G.val[int(nm[len(prefix):])] += self.stamp_ins(nm)

    def prologue(self):
        a = self; c = self.c
        a("s_cmp_ge_u32 s2, 256"); a("s_cbranch_scc1 L_end")
        a("s_load_dwordx16 s[4:19], s[0:1], 0")
        if c.get("stamps"):
            a("s_memrealtime s[%d:%d]" % (STAMP0, STAMP0 + 1)); a("s_memtime s[%d:%d]" % (STAMP0 + 2, STAMP0 + 3)); self.nst = 1
        a("v_lshrrev_b32 v1, 6, v0"); a("v_and_b32 v0, 63, v0"); a("v_readfirstlane_b32 s3, v1")
        T = V_T
        a("v_lshrrev_b32 v1, 4, v0"); a("v_and_b32 v2, 15, v0"); a("v_lshrrev_b32 v3, 3, v0"); a("v_and_b32 v4, 7, v0")
        a("v_lshlrev_b32 v5, 1, v1"); a("v_xor_b32 v5, v5, v2"); a("v_lshlrev_b32 v5, 4, v5")
        a("v_lshl_add_u32 v%d, v1, 13, v5" % V_OW)
        a("v_add_u32 v%d, %d, v%d" % (V_OW + 1, 31744, V_OW))
        a("v_xor_b32 v6, 0x80, v%d" % V_OW)
        a("v_add_u32 v%d, %d, v6" % (V_OW + 2, 2 * 31744)); a("v_add_u32 v%d, %d, v6" % (V_OW + 3, 3 * 31744))
        a("s_and_b32 s%d, s3, 1" % S_T0); a("s_lshl_b32 s%d, s%d, 6" % (S_T1, S_T0))
        a("v_xor_b32 v6, v4, v1"); a("v_lshlrev_b32 v6, 4, v6"); a("v_lshl_add_u32 v6, v3, 10, v6")
        a("v_xor_b32 v%d, s%d, v6" % (V_OX, S_T1))
        a("v_xor_b32 v7, 64, v%d" % V_OX)
        a("v_add_u32 v%d, %d, v7" % (V_OX + 1, 7168)); a("v_add_u32 v%d, %d, v%d" % (V_OX + 2, 2 * 7168, V_OX)); a("v_add_u32 v%d, %d, v7" % (V_OX + 3, 3 * 7168))
        a("s_and_b32 s%d, s2, 7" % S_T2); a("s_lshr_b32 s%d, s2, 3" % S_T3)
        a("s_waitcnt lgkmcnt(0)")
        def srd(d, base, nb):
            a("s_mov_b32 s%d, s%d" % (d, base)); a("s_and_b32 s%d, s%d, 0xffff" % (d + 1, base + 1)); a("s_mov_b32 s%d, 0x%x" % (d + 2, nb)); a("s_mov_b32 s%d, 0x20000" % (d + 3))
        srd(SRD_X, 4, 8 * 224 * 512 * 2); srd(SRD_WQ, 10, 512 * 4096 * 2)
        srd(SRD_K, 6, 8 * 32 * 512 * 128 * 2); srd(SRD_V, 8, 8 * 32 * 512 * 128 * 2); srd(SRD_WO, 12, 4096 * 512 * 2)
        srd(SRD_OUT, 14, 8 * 224 * 512 * 2); srd(SRD_DBG, 16, 256); srd(SRD_WS, 18, 48 << 20)
        if c.get("wsoff"):
            a("s_add_u32 s%d, s%d, 0x%x" % (SRD_WS, SRD_WS, c["wsoff"] << 20)); a("s_addc_u32 s%d, s%d, 0" % (SRD_WS + 1, SRD_WS + 1))
        a("s_mov_b32 s%d, s%d" % (S_E, S_T0))
        if c.get("map", 2) == 2:
            a("s_and_b32 s%d, s%d, 7" % (S_B, S_T3)); a("s_lshr_b32 s%d, s%d, 3" % (S_CQ, S_T3)); a("s_mov_b32 s%d, s%d" % (S_HG, S_T2))
            a("s_lshl_b32 s%d, s%d, 2" % (S_H, S_HG)); a("s_add_u32 s%d, s%d, s%d" % (S_H, S_H, S_CQ))
        else:
            a("s_and_b32 s%d, s%d, 1" % (S_B, S_T2)); a("s_lshl_b32 s%d, s%d, 2" % (S_B, S_B)); a("s_and_b32 s%d, s%d, 3" % (S_T0, S_T3)); a("s_add_u32 s%d, s%d, s%d" % (S_B, S_B, S_T0))
            a("s_lshr_b32 s%d, s%d, 1" % (S_H, S_T2)); a("s_lshl_b32 s%d, s%d, 3" % (S_H, S_H)); a("s_lshr_b32 s%d, s%d, 2" % (S_T0, S_T3)); a("s_add_u32 s%d, s%d, s%d" % (S_H, S_H, S_T0))
            a("s_lshr_b32 s%d, s%d, 2" % (S_HG, S_H)); a("s_and_b32 s%d, s%d, 3" % (S_CQ, S_H))
        a("s_mov_b32 s%d, s%d" % (S_ROT, S_T2))
        a("s_mul_i32 s%d, s%d, %d" % (S_XB, S_B, 229376)); a("s_mul_i32 s%d, s3, %d" % (S_T0, 57344)); a("s_add_u32 s%d, s%d, s%d" % (S_XB, S_XB, S_T0))
        a("s_lshl_b32 s%d, s%d, 8" % (S_WB, S_H)); a("s_lshl_b32 s%d, s3, 17" % S_T0); a("s_add_u32 s%d, s%d, s%d" % (S_WB, S_WB, S_T0))
        a("s_mul_i32 s%d, s3, 7168" % S_LX); a("s_lshl_b32 s%d, s3, 12" % S_L4)
        a.add(flat(stage_dma(0, 0, 0)))
        if c.get("touch", 1):
            a("s_getpc_b64 s[%d:%d]" % (S_T1, S_T2)); a("L_pc:")
            a("s_and_b32 s%d, s%d, 3" % (S_T0, S_T3)); a("s_lshl_b32 s%d, s%d, 2" % (S_T0, S_T0)); a("s_add_u32 s%d, s%d, s3" % (S_T0, S_T0)); a("s_mul_i32 s%d, s%d, %d" % (S_T0, S_T0, c["touch_n"] * 128))
            a("v_min_u32 v6, %d, v0" % (c["touch_n"] - 1)); a("v_lshl_add_u32 v6, v6, 7, s%d" % S_T0)
            a("v_min_u32 v6, L_codeend-L_pc-4, v6")
            a("global_load_dword v%d, v6, s[%d:%d]" % (V_T + 9, S_T1, S_T2), "touch")
        a.add(flat(stage_dma(1, 0, 0)))
        a("s_lshl_b32 s%d, s%d, 5" % (S_T0, S_B)); a("s_add_u32 s%d, s%d, s%d" % (S_T0, S_T0, S_H))
        a("s_lshl_b32 s%d, s%d, 17" % (S_KVB, S_T0)); a("s_add_u32 s%d, s%d, s%d" % (S_KVB, S_KVB, S_L4))
        a("s_lshl_b32 s%d, s%d, 2" % (S_T0, S_T0)); a("s_add_u32 s%d, s%d, s3" % (S_T0, S_T0))
        a("s_lshl_b32 s%d, s%d, 3" % (S_OB, S_HG)); a("s_add_u32 s%d, s%d, s%d" % (S_OB, S_OB, S_B)); a("s_lshl_b32 s%d, s%d, 2" % (S_OB, S_OB)); a("s_add_u32 s%d, s%d, s3" % (S_OB, S_OB))
        a("s_mul_i32 s%d, s%d, %d" % (S_OB, S_OB, 4 * 14336))
        a("s_mul_i32 s%d, s%d, 14336" % (S_OS, S_CQ)); a("s_add_u32 s%d, s%d, s%d" % (S_OS, S_OS, S_OB))
        for u in range(1, 4): a("s_add_u32 s%d, s%d, %d" % (S_OS + u, S_OS, 4096 * u))
        a("s_lshl_b32 s%d, s%d, 7" % (S_FL, S_T0)); a("s_add_u32 s%d, s%d, 0x%x" % (S_FL, S_FL, FL_OFF))
        a("s_lshl_b32 s%d, s%d, 17" % (S_WOB, S_H)); a("s_lshl_b32 s%d, s3, 14" % S_T0); a("s_add_u32 s%d, s%d, s%d" % (S_WOB, S_WOB, S_T0))
        a("s_lshl_b32 s%d, s%d, 8" % (S_T0, S_CQ)); a("s_add_u32 s%d, s%d, s%d" % (S_WOB, S_WOB, S_T0))
        a("s_lshl_b32 s%d, s%d, 2" % (S_T0, S_B)); a("s_add_u32 s%d, s%d, s%d" % (S_T0, S_T0, S_CQ)); a("s_mul_i32 s%d, s%d, %d" % (S_PB, S_T0, 8 * 57344))
        a("s_lshl_b32 s%d, s3, 11" % S_T0); a("s_add_u32 s%d, s%d, s%d" % (S_PB, S_PB, S_T0)); a("s_add_u32 s%d, s%d, 0x%x" % (S_PB, S_PB, PB_OFF - 8192))
        cc = f2u(math.log2(math.e) / math.sqrt(128.0))
        a("s_mov_b32 s%d, 0x%x" % (S_C0, cc)); a("s_mov_b32 s%d, 0x%x" % (S_C0 + 1, cc))
        a("s_getreg_b32 s%d, hwreg(HW_REG_XCC_ID, 0, 4)" % S_XCC); a("s_mov_b32 s%d, 0x%x" % (S_RETRY, f2u(2.0 ** 40))); a("s_mov_b32 s%d, 0" % S_SPIN)
        a("v_lshlrev_b32 v%d, 4, v0" % V_L16)
        a("v_cmp_eq_u32 vcc, 0, v0"); a("v_bfrev_b32 v6, 1"); a("v_cndmask_b32 v%d, v6, 0, vcc" % V_L0)
        a("v_mov_b32 v6, 0")
        a("buffer_store_dword v6, v%d, %s, s%d offen sc1" % (V_L0, sr(SRD_WS), S_FL), "flagreset")
        a("s_add_u32 s%d, s%d, 0x%x" % (S_T0, S_FL, FL2))
        a("buffer_store_dword v6, v%d, %s, s%d offen sc1" % (V_L0, sr(SRD_WS), S_T0), "flagreset")
        a("v_and_b32 v6, 3, v0"); a("v_lshlrev_b32 v%d, 9, v6" % V_POLL); a("v_xor_b32 v%d, s%d, v%d" % (V_POLL, S_FL, V_POLL))
        a("v_xor_b32 v7, v2, v1"); a("v_lshlrev_b32 v7, 4, v7"); a("v_lshl_add_u32 v%d, v1, 8, v7" % V_OK)
        for j in (1, 2, 3): a("v_xor_b32 v%d, %d, v%d" % (V_OK + j, j << 6, V_OK))
        a("v_lshl_add_u32 v%d, v1, 8, v5" % V_OV); a("v_xor_b32 v%d, 0x80, v%d" % (V_OV + 1, V_OV))
        a("v_lshl_add_u32 v%d, v1, 10, v5" % V_OO); a("v_xor_b32 v7, 0x80, v%d" % V_OO)
        a("v_add_u32 v%d, 3072, v7" % (V_OO + 1)); a("v_add_u32 v%d, 6144, v%d" % (V_OO + 2, V_OO)); a("v_add_u32 v%d, 9216, v7" % (V_OO + 3))
        a("v_lshrrev_b32 v7, 1, v2"); a("v_xor_b32 v7, v7, v1"); a("v_lshlrev_b32 v7, 4, v7"); a("v_lshl_add_u32 v7, v2, 7, v7")
        a("s_lshr_b32 s%d, s3, 1" % S_T0); a("s_mul_i32 s%d, s%d, %d" % (S_T0, S_T0, 7 * 2048))
        a("s_lshl_b32 s%d, s%d, 13" % (S_T1, S_E)); a("s_add_u32 s%d, s%d, s%d" % (S_T2, S_T0, S_T1)); a("s_add_u32 s%d, s%d, %d" % (S_T0, S_T0, 3 * 2048))
        a("v_add_u32 v%d, s%d, v7" % (V_AX, S_T2)); a("v_xor_b32 v%d, 64, v%d" % (V_AX + 1, V_AX))
        a("v_add_u32 v%d, s%d, v7" % (V_AX + 2, S_T0)); a("v_xor_b32 v%d, 64, v%d" % (V_AX + 3, V_AX + 2))
        a("v_lshrrev_b32 v3, 2, v2"); a("v_and_b32 v4, 1, v1"); a("v_lshl_or_b32 v4, v4, 2, v3")
        a("s_lshl_b32 s%d, s%d, 1" % (S_T0, S_E)); a("v_xor_b32 v4, s%d, v4" % S_T0); a("v_lshlrev_b32 v4, 5, v4"); a("v_lshl_add_u32 v4, v6, 3, v4")
        a("v_lshl_add_u32 v7, v1, 3, v3"); a("v_lshl_add_u32 v7, v7, 8, v4"); a("v_add_u32 v%d, 0x%x, v7" % (V_AW, WQ_WIN))
        for j in range(1, 8): a("v_xor_b32 v%d, %d, v%d" % (V_AW + j, j << 5, V_AW))
        a("v_lshl_add_u32 v7, v1, 2, v3"); a("v_lshl_add_u32 v7, v7, 8, v4")
        a("s_add_u32 s%d, s%d, 0x%x" % (S_T2, S_T1, V_WIN)); a("v_add_u32 v%d, s%d, v7" % (V_AVX, S_T2))
        for j in range(1, 8): a("v_xor_b32 v%d, %d, v%d" % (V_AVX + j, j << 5, V_AVX))
        for j in range(8): a("v_xor_b32 v%d, 0x2000, v%d" % (V_AVY + j, V_AVX + j))
        a("v_and_b32 v7, 1, v1"); a("v_lshlrev_b32 v7, 1, v7"); a("v_lshrrev_b32 v3, 1, v1"); a("v_or_b32 v7, v7, v3")
        a("s_lshl_b32 s%d, s%d, 2" % (S_T0, S_E)); a("v_xor_b32 v7, s%d, v7" % S_T0); a("v_xor_b32 v7, v7, v2"); a("v_lshlrev_b32 v7, 4, v7"); a("v_lshl_add_u32 v7, v2, 8, v7")
        a("s_add_u32 s%d, s%d, 0x%x" % (S_T2, S_T1, K_WIN)); a("v_add_u32 v%d, s%d, v7" % (V_AKX, S_T2))
        for s in range(1, 4): a("v_xor_b32 v%d, %d, v%d" % (V_AKX + s, s << 6, V_AKX))
        for s in range(4): a("v_xor_b32 v%d, 0x2000, v%d" % (V_AKY + s, V_AKX + s))
        a("v_mov_b32 v7, 0x3f803f80")
        for k in range(4): a("v_accvgpr_write_b32 a%d, v7" % (A_ONE + k))
        a("v_add_u32 v%d, s%d, v%d" % (V_SCR, S_L4, V_L16))

    def acc(self, u, j): return V_O + (u * 8 + j) * 4 if u < 3 else V_O + 96 + 4 * ACT.index(j)
    def phaseA(self):
        c = self.c
        G = Gaps(); ring = Ring(); L = []; D = []
        LEAD = c.get("leadA", 10); BOFF = c.get("boffA", 16); BUB = c.get("bubA", 5)
        xf = lambda ch, u, ks: A_XF + 32 * (ch & 1) + 8 * u + 4 * ks
        bar = {ch: 56 * ch - BOFF for ch in range(1, 8)}; bar[0] = -1; bar[8] = 10 ** 6
        xlast = {}
        for ch in range(8):
            Lx = []; Lw = []
            firstx = {}
            for j in range(8):
                us = [0, 1, 2] + ([3] if j in ACT else [])
                m0 = G.n(); last = m0 + 2 * len(us) - 1
                fr = []
                for ks in range(2):
                    reg, lo = ring.alloc(last - 1 + ks); fr.append(reg)
                    for eh in range(2):
                        Lw.append((m0 + ks, Op(I("ds_read_b64_tr_b16 %s, v%d offset:%d" % (ar(reg + 2 * eh, 2), V_AW + j, WS_(ch) - WQ_WIN + ks * 8192 + eh * 1024)),
                                               max(lo, bar[ch]), min(m0 + ks - LEAD, bar[ch + 1] - BUB), hard=min(m0 + ks - 1, bar[ch + 1] - 1))))
                for u in us:
                    for ks in range(2):
                        A = self.acc(u, j)
                        m = G.mfma("%s %s, %s, %s, %s" % (MF, vr(A), ar(fr[ks]), ar(xf(ch, u, ks)), "0" if ch == 0 and ks == 0 else vr(A)))
                        firstx.setdefault((u, ks), m); xlast[(ch, u, ks)] = m
            for (u, ks), m in firstx.items():
                lo = max(bar[ch], xlast.get((ch - 2, u, ks), -1))
                Lx.append((m, Op(I("ds_read_b128 %s, v%d offset:%d" % (ar(xf(ch, u, ks)), V_AX + (2 if u == 3 else 0) + ks, XS(ch) + (u * 2048 if u < 3 else 0))), lo, m - LEAD, hard=m - 1)))
            L += [o for m, o in sorted(Lx + Lw, key=lambda t: t[0])]
        n = G.n()
        for ch in range(8):
            lo = max(bar[ch], 0); hi = min(bar[ch + 1] - 1, n - 1)
            extra = c["kvA"].get(ch, [])
            if ch + 2 < 8:
                mid = hi if not extra else lo + (hi - lo) * 11 // (11 + 4 * len(extra))
                D += stage_dma(ch + 2, lo, mid); lo = mid
            for k, (kind, i) in enumerate(extra):
                l0 = lo + (hi - lo) * k // len(extra); h0 = lo + (hi - lo) * (k + 1) // len(extra)
                D += tile_dma(kind, i, KSL(i) if kind == "K" else VSL(i), max(bar[ch], 0), h0, c.get("nt", True))
        for ch in range(1, 8): G.pre[bar[ch]] += [W(vm="A%d" % ch, lgkm0=True), I("s_barrier")]
        self.add([W(vm="A0"), I("s_barrier")])
        self.stamp("A0")
        schedule(G, L, D, [], [], "phaseA"); self.gstamps(G, "a")
        self.add(G.flatten())

    def transAB(self):
        a = self
        fr = [(u, s) for u in (3, 0, 1, 2) for s in range(4) if u < 3 or s % 2 == 0]
        base = lambda u, s: self.acc(u, 2 * s)
        def conv(lst):
            for u, s in lst:
                A = base(u, s)
                for k in range(4): a("v_pk_mul_f32 %s, %s, %s" % (vr(A + 2 * k, 2), vr(A + 2 * k, 2), sr(S_C0, 2)))
                for k in range(4): a("v_cvt_pk_bf16_f32 v%d, v%d, v%d" % (A + k, A + 2 * k, A + 2 * k + 1))
            for u, s in lst:
                A = base(u, s)
                a("v_permlane16_swap_b32 v%d, v%d" % (A, A + 2)); a("v_permlane16_swap_b32 v%d, v%d" % (A + 1, A + 3))
        conv(fr[:2])
        for k, (u, s) in enumerate(fr[:2]): a("ds_write_b128 v%d, %s offset:%d" % (V_SCR, vr(base(u, s)), QSCR + k * 1024))
        conv(fr[2:])
        for u, s in fr:
            for k in range(4): a("v_accvgpr_write_b32 a%d, v%d" % (A_Q + 16 * u + 4 * s + k, base(u, s) + k))
        a("v_xor_b32 v%d, 0x1000, v%d" % (V_T, V_SCR))
        a.add([W(vm="K0", lgkm0=True), I("s_barrier")])
        for k in range(2): a("ds_read_b128 %s, v%d offset:%d" % (ar(A_Q + 48 + 4 * (2 * k + 1)), V_T, QSCR + k * 1024))
        a("s_add_u32 s%d, s%d, 1" % (S_T0, S_XCC)); a("s_lshl_b32 s%d, s%d, 3" % (S_T1, S_CQ)); a("s_lshl_b32 s%d, s%d, s%d" % (S_T0, S_T0, S_T1))
        a("s_lshl_b32 s%d, s%d, 3" % (S_T1, S_B)); a("s_add_u32 s%d, s%d, s%d" % (S_T1, S_T1, S_HG)); a("s_lshl_b32 s%d, s%d, 2" % (S_T1, S_T1))
        a("s_lshl_b32 s%d, s3, 8" % S_T2); a("s_add_u32 s%d, s%d, s%d" % (S_T2, S_T2, S_T1))
        a("v_mov_b32 v%d, s%d" % (V_T + 1, S_T0))
        a("buffer_atomic_add v%d, v%d, %s, s%d offen" % (V_T + 1, V_L0, sr(SRD_DBG), S_T2), "hello")

    def rowmax_finish(self, M):
        a = self; T = V_T
        for u in range(4): a("v_mov_b32 v%d, v%d" % (T + u, M[u]))
        for u in range(4): a("v_permlane16_swap_b32 v%d, v%d" % (M[u], T + u))
        for u in range(4): a("v_max_f32 v%d, v%d, v%d" % (M[u], M[u], T + u))
        for u in range(4): a("v_mov_b32 v%d, v%d" % (T + u, M[u]))
        for u in range(4): a("v_permlane32_swap_b32 v%d, v%d" % (M[u], T + u))
        for u in range(4): a("v_max_f32 v%d, v%d, v%d" % (M[u], M[u], T + u))
        for u in range(4):
            for k in range(4): a("v_sub_f32 v%d, 0, v%d" % (V_NEGM + 4 * u + k, M[u]))

    def premax(self):
        a = self; T = V_T
        for s in range(4): a("v_and_b32 v%d, 0xffffdfff, v%d" % (T + 4 + s, V_AKX + s))
        for s in range(4): a("ds_read_b128 %s, v%d offset:%d" % (ar(A_XF + 4 * s), T + 4 + s, KSL(0) - K_WIN))
        for u in range(4):
            for s in range(4):
                D = V_SY + 4 * u
                a("%s %s, %s, %s, %s" % (MF, vr(D), ar(A_XF + 4 * s), ar(A_Q + 16 * u + 4 * s), "0" if s == 0 else vr(D)))
        for u in range(4):
            D = V_SY + 4 * u
            a("v_max3_f32 v%d, v%d, v%d, v%d" % (D, D, D + 1, D + 2))
        for u in range(4):
            D = V_SY + 4 * u
            a("v_max_f32 v%d, v%d, v%d" % (D, D, D + 3))
        self.rowmax_finish([V_SY + 4 * u for u in range(4)])

    def attention(self):
        c = self.c
        G = Gaps(); ring = Ring(); L = []; D = []; X = []; C = []
        LEAD = c.get("leadB", 10); BOFF = c.get("boffB", 13); BUB = c.get("bubB", 5); SLAT = 5
        pend = {}
        segs = [("QK", "X", 0), ("QK", "Y", 0)]
        for i in range(8):
            segs += [("PV", "X", i)] + ([("QK", "X", i + 1)] if i < 7 else []) + [("PV", "Y", i)] + ([("QK", "Y", i + 1)] if i < 7 else [])
        pos = {}; p = 0
        for sg in segs:
            pos[sg] = p; nu = 4 if sg[1] == "X" else 3
            p += 8 * nu + (nu if sg[0] == "PV" else 0)
        bar = {i: pos[("PV", "X", i)] - BOFF for i in range(8)}; bar[-1] = -1; bar[8] = 10 ** 6
        sm = []
        for op, un, i in segs:
            nu = 4 if un == "X" else 3; S = V_SX if un == "X" else V_SY
            if op == "QK":
                st = i - 1; ad = V_AKX if un == "X" else V_AKY
                pv0 = pos[("PV", un, i)]
                for kt in range(2):
                    m0 = G.n(); fr = []
                    for s in range(4):
                        reg, lo = ring.alloc(m0 + 4 * (nu - 1) + s); fr.append(reg)
                        L.append(Op(I("ds_read_b128 %s, v%d offset:%d" % (ar(reg), ad + s, KSL(i) - K_WIN + kt * 4096)),
                                    max(lo, bar[st]), min(m0 + s - LEAD, bar[st + 1] - BUB), hard=min(m0 + s - 1, bar[st + 1] - 1)))
                    for u in range(nu):
                        Dd = S + 8 * u + 4 * kt
                        for s in range(4):
                            m = G.mfma("%s %s, %s, %s, %s" % (MF, vr(Dd), ar(fr[s]), ar(A_Q + 16 * u + 4 * s), vr(V_NEGM + 4 * u) if s == 0 else vr(Dd)))
                        dl = pv0 + u - 2
                        ex = [Op(I("v_exp_f32 v%d, v%d" % (Dd + k, Dd + k)), m + SLAT, dl - 1) for k in range(4)]
                        cv = [Op(I("v_cvt_pk_bf16_f32 v%d, v%d, v%d" % (S + 8 * u + 2 * kt + k, Dd + 2 * k, Dd + 2 * k + 1)), m + SLAT, dl, dep=ex[2 * k:2 * k + 2]) for k in range(2)]
                        X += ex; C += cv
            else:
                ad = V_AVX if un == "X" else V_AVY
                first = (un == "X" and i == 0)
                for j in range(8):
                    m0 = G.n()
                    reg, lo = ring.alloc(m0 + nu - 1)
                    for t in range(2):
                        L.append(Op(I("ds_read_b64_tr_b16 %s, v%d offset:%d" % (ar(reg + 2 * t, 2), ad + j, VSL(i) - V_WIN + t * 4096)),
                                    max(lo, bar[i]), min(m0 - LEAD, bar[i + 1] - BUB), hard=min(m0 - 1, bar[i + 1] - 1)))
                    for u in range(nu):
                        O = V_O + (u * 8 + j) * 4
                        G.mfma("%s %s, %s, %s, %s" % (MF, vr(O), ar(reg), vr(S + 8 * u), "0" if first else vr(O)))
                    if j == 0:
                        for u in range(nu):
                            G.mfma("%s %s, %s, %s, %s" % (MF, ar(A_L + 4 * u), ar(A_ONE), vr(S + 8 * u), "0" if first else ar(A_L + 4 * u)))
        n = G.n()
        T = V_T
        for i in range(-1, 8):
            lo = max(bar[i], 0); hi = min(bar[i + 1] - 1, n - 1 - c.get("dtail", 8)); lst = c["kvB"].get(i, [])
            if i == 6:
                D.append(Op(I("buffer_load_dword v%d, v%d, %s, s%d offen sc1" % (T + 8, T + 9, sr(SRD_DBG), S_T3), "hl"), lo + 1, lo + 3, hard=hi, pre=[I("s_lshl_b32 s%d, s%d, 5" % (S_T3, S_B))]))
            for k, (kind, ix) in enumerate(lst):
                h0 = lo + (hi - lo) * (k + 1) // len(lst)
                D += tile_dma(kind, ix, KSL(ix) if kind == "K" else VSL(ix) if kind == "V" else WOSL[ix], lo + 1, h0, c.get("nt", True))
        for i in range(8): G.pre[bar[i]] += [W(vm=["V%d" % i, "K%d" % (i + 1)], lgkm0=True), I("s_barrier")]
        px = pos[("PV", "X", 7)]; py = pos[("PV", "Y", 7)]
        G.head += [I("s_lshl_b32 s%d, s3, 2" % S_T0), I("s_add_u32 s%d, s%d, 0x%x" % (S_T0, S_T0, LSCR)), I("v_add_u32 v%d, s%d, v%d" % (T + 5, S_T0, V_L16)),
                   I("v_xor_b32 v%d, 4, v%d" % (T + 6, T + 5)), I("v_xor_b32 v%d, 0x1000, v%d" % (T + 7, V_SCR)), I("v_add_u32 v1, 0x%x, v%d" % (LSCR, V_L16)),
                   I("v_and_b32 v%d, 7, v0" % (T + 9)), I("v_lshlrev_b32 v%d, 2, v%d" % (T + 9, T + 9))]
        rl3 = Op(I("v_accvgpr_read_b32 v%d, a%d" % (T + 3, A_L + 12)), py - 1, n - 1); C.append(rl3)
        rl = [Op(I("v_accvgpr_read_b32 v%d, a%d" % (T + u, A_L + 4 * u)), py + 3 + u + SLAT, n - 1) for u in range(3)]; C += rl
        m1 = Op(I("v_max3_f32 v%d, v%d, v%d, v%d" % (T + 4, T, T + 1, T + 2)), py, n - 1); m2 = Op(I("v_max_f32 v%d, v%d, v%d" % (T + 4, T + 4, T + 3)), py, n - 1); C += [m1, m2]
        X += [Op(I("v_rcp_f32 v%d, v%d" % (2 + 2 * u, T + u)), py, n - 1, dep=[rl[u]]) for u in range(3)]
        for k, j in enumerate((2, 3, 6, 7)):
            L.append(Op(I("ds_write_b128 v%d, %s offset:%d" % (V_SCR, vr(V_O + (24 + j) * 4), OSCR - SL(2) + k * 1024)), px + 4 + 4 * j + 3 + SLAT, n - 1))
        L.append(Op(I("ds_write_b32 v%d, v%d" % (T + 5, T + 3)), py, n - 1, dep=[rl3]))
        L.append(Op(I("ds_write_b32 v%d, v%d offset:1024" % (T + 5, T + 4)), py, n - 1, dep=[m2]))
        schedule(G, L, D, X, C, "attention"); self.gstamps(G, "b")
        self.add(G.flatten())

    def ofrag(self, u, s): return V_SX + 4 * (4 * u + s if u < 3 else 12 + s // 2)
    def ostore(self, u, s):
        f = 4 * u + s if u < 3 else 12 + s // 2
        return I("buffer_store_dwordx4 %s, v%d, %s, s%d offen offset:%d sc1" % (vr(V_SX + 4 * f), V_L16, sr(SRD_WS), S_OS + u, (f % 4) * 1024), "ost%d" % (s // 2))
    def transBC(self):
        a = self; T = V_T; c = self.c
        self.tail = []
        a.add([W(vm=["WO(0, 0)", "WO(0, 1)"], lgkm0=True), I("s_barrier")])
        a.stamp("M")
        a("ds_read_b128 %s, v1 offset:1024" % vr(V_NEGM))
        a("ds_read_b32 v%d, v%d" % (T + 4, T + 6))
        for k, j in enumerate((2, 3, 6, 7)): a("ds_read_b128 %s, v%d offset:%d" % (vr(V_O + (24 + j) * 4), T + 7, OSCR - SL(2) + k * 1024))
        def norm(u, s, rl):
            O = V_O + (u * 8 + 2 * s) * 4; F = self.ofrag(u, s)
            for k in range(4): a("v_pk_mul_f32 %s, %s, %s op_sel_hi:[1,0]" % (vr(O + 2 * k, 2), vr(O + 2 * k, 2), vr(rl, 2)))
            for k in range(4): a("v_cvt_pk_bf16_f32 v%d, v%d, v%d" % (F + k, O + 2 * k, O + 2 * k + 1))
        for s in range(2):
            for u in range(3): norm(u, s, 2 + 2 * u); a.add([self.ostore(u, s)])
        a("v_max3_f32 v%d, v%d, v%d, v%d" % (V_NEGM, V_NEGM, V_NEGM + 1, V_NEGM + 2)); a("v_max_f32 v%d, v%d, v%d" % (V_NEGM, V_NEGM, V_NEGM + 3))
        a("v_add_f32 v%d, v%d, v%d" % (T + 3, T + 3, T + 4))
        a("v_cmp_lt_f32 vcc, s%d, v%d" % (S_RETRY, V_NEGM))
        a("v_rcp_f32 v%d, v%d" % (T, T + 3))
        a("s_cbranch_vccnz L_fallback")
        for j in ACT:
            O = V_O + (24 + j) * 4
            for k in range(2): a("v_pk_add_f32 %s, %s, %s" % (vr(O + 2 * k, 2), vr(O + 2 * k, 2), vr(O + 8 + 2 * k, 2)))
        a("s_barrier")
        norm(3, 0, T); a.add([self.ostore(3, 0)])
        a("s_lshl_b32 s%d, s%d, 1" % (S_T0, S_E)); a("s_xor_b32 s%d, s%d, s%d" % (S_T0, S_T0, S_HG)); a("s_lshl_b32 s%d, s%d, 5" % (S_T0, S_T0))
        a("s_or_b32 s%d, s%d, 0x%x" % (S_T0, S_T0, V_WIN))
        for k in range(16): a("v_xor_b32 v%d, s%d, v%d" % (V_AVX + k, S_T0, V_AVX + k))
        self.normB = lambda: [norm(u, s, T if u == 3 else 2 + 2 * u) for s in (2, 3) for u in range(4) if not (u == 3 and s & 1)]

    def spin(self, name, load):
        for s in ["L_%s_spin:" % name, "s_add_u32 s%d, s%d, 1" % (S_SPIN, S_SPIN), "s_cmp_ge_u32 s%d, 0x%x" % (S_SPIN, SPIN_MAX), "s_cbranch_scc1 L_%s_ok" % name,
                  "s_sleep 1", load, "s_waitcnt vmcnt(0)", "s_branch L_%s" % name]: self.tail.append(I(s))

    def phaseC(self):
        a = self; c = self.c; T = V_T
        LEAD = c.get("leadC", 10)
        acc = lambda u, j: V_O + (j * 4 + u) * 4
        fidx = lambda u, s: 4 * u + s if u < 3 else 12 + s // 2
        def bfrag(hh, u, s):
            return vr(V_SX + 4 * fidx(u, s)) if hh == 0 else ar(56 * (hh - 1) + 4 * fidx(u, s))
        JO = [1, 2, 3, 4, 5, 6, 7, 0]
        started = set(); done = {}; firstuse = {}
        def build(groups):
            G = Gaps(); ring = Ring(); L = []
            for grp in groups:
                m0 = G.n(); fr = []
                seq = [(u, k) for u in range(4) for k, (hh, j, s) in enumerate(grp) if not (u == 3 and s & 1)]
                for k, (hh, j, s) in enumerate(grp):
                    us = [i for i, (u, kk) in enumerate(seq) if kk == k]
                    reg, lo = ring.alloc(m0 + us[-1]); fr.append(reg)
                    slot = WOSL[(hh, s >> 1)]
                    ad = (V_AVX if hh < 2 else V_NEGM) + (8 if s & 1 else 0) + j
                    off = slot - (0 if hh < 2 else SL(6))
                    for t in range(2):
                        L.append(Op(I("ds_read_b64_tr_b16 %s, v%d offset:%d" % (ar(reg + 2 * t, 2), ad, off + t * 4096)), lo, m0 + us[0] - LEAD, hard=m0 + us[0] - 1))
                for u, k in seq:
                    hh, j, s = grp[k]; A = acc(u, j)
                    m = G.mfma("%s %s, %s, %s, %s" % (MF, vr(A), ar(fr[k]), bfrag(hh, u, s), vr(A) if (u, j) in started else "0"))
                    started.add((u, j)); done[(u, j)] = m; firstuse.setdefault((hh, u, s), m)
            return G, L
        G, L = build([[(0, j, s) for s in range(4)] for j in JO]); D = []; C = []
        sp = c.get("bspace", 12); k = 0; fa = c.get("flagAat", 4)
        for s in (2, 3):
            for u in range(4):
                if u == 3 and s & 1: continue
                if k == fa: D.append(Op(I("buffer_store_dword v7, v%d, %s, s%d offen sc1" % (V_L0, sr(SRD_WS), S_FL), "flag"), sp * k - 2, sp * k - 1, hard=G.n() - 1, pre=[W(vm="ost0")]))
                D.append(Op(self.ostore(u, s), sp * k, sp * k + 1, hard=G.n() - 1)); k += 1
        D += tile_dma("WO", (3, 1), WOSL[(3, 1)], sp * k, min(sp * k + 8, G.n() - 1))
        for k in range(16): C.append(Op(I("v_add_u32 v%d, 0x%x, v%d" % (V_NEGM + k, SL(6), V_AVX + k)), 0, G.n() - 1))
        for u in range(4): C.append(Op(I("v_add_u32 v%d, %d, v%d" % (V_OK + u, 4096 * u, V_L16)), 0, G.n() - 1))
        for t in ["v_subrev_u32 v2, 0x01010101, v%d" % (T + 8), "v_not_b32 v3, v%d" % (T + 8), "v_and_b32 v2, v2, v3", "v_and_b32 v2, 0x80808080, v2", "v_mov_b32 v5, 2"]:
            C.append(Op(I(t), 0, G.n() - 1))
        schedule(G, L, D, [], C, "P0"); self.gstamps(G, "p")
        a.add(G.head); G.head = []
        self.normB()
        a("v_mov_b32 v7, 1")
        a.stamp("C0")
        a.add(G.flatten())
        a.stamp("P1")
        for hh in (1, 2, 3):
            a("s_xor_b32 s%d, s%d, %d" % (S_T0, S_CQ, hh)); a("s_mul_i32 s%d, s%d, 14336" % (S_T0, S_T0)); a("s_add_u32 s%d, s%d, s%d" % (S_XB + hh - 1, S_T0, S_OB))
        a("v_cmp_ne_u32 vcc, 0, v2"); a("s_cbranch_vccnz L_hello_spin"); a("L_hello_ok:")
        for t in ["L_hello_spin:", "s_add_u32 s%d, s%d, 1" % (S_SPIN, S_SPIN), "s_cmp_ge_u32 s%d, 0x%x" % (S_SPIN, SPIN_MAX), "s_cbranch_scc1 L_hello_ok", "s_sleep 4",
                  "buffer_load_dword v%d, v%d, %s, s%d offen sc1" % (T + 8, T + 9, sr(SRD_DBG), S_T3), "s_waitcnt vmcnt(0)",
                  "v_subrev_u32 v2, 0x01010101, v%d" % (T + 8), "v_not_b32 v3, v%d" % (T + 8), "v_and_b32 v2, v2, v3", "v_and_b32 v2, 0x80808080, v2",
                  "v_cmp_ne_u32 vcc, 0, v2", "s_cbranch_vccnz L_hello_spin", "s_branch L_hello_ok"]: self.tail.append(I(t))
        pl = "buffer_load_dword v%d, v%d, %s, 0 offen sc1" % (T + 8, V_POLL, sr(SRD_WS))
        a("s_waitcnt vmcnt(%d)" % (4 + c.get("pollat", 2)))
        a(pl, "poll")
        a.add([W(vm=["ost1", "WO(3, 1)"])])
        a("buffer_store_dword v5, v%d, %s, s%d offen sc1" % (V_L0, sr(SRD_WS), S_FL), "flag")
        a("s_barrier")
        a.stamp("P2")
        s0 = c.get("s0", [1, 2, 3, 4, 5, 6, 7]); s1 = c.get("s1", [1, 2, 3, 4, 5]); s2 = c.get("s2", [])
        groups = [[(hh, j, 0)] for hh in (1, 2, 3) for j in s0]
        groups += [[(hh, j, 1) for hh in (1, 2, 3)] for j in s1]
        groups += [[(hh, j, 2) for hh in (1, 2, 3)] for j in s2]
        for j in JO:
            for s, early in enumerate((s0, s1, s2, [])):
                if j not in early: groups.append([(hh, j, s) for hh in (1, 2, 3)])
        G, L = build(groups); D = []; X = []; C = []
        n = G.n()
        lds = []
        for s in range(4):
            for hh in (1, 2, 3):
                for u in range(4):
                    if u == 3 and s & 1: continue
                    f = fidx(u, s)
                    lds.append((I("buffer_load_dwordx4 %s, v%d, %s, s%d offen offset:%d sc1" % (ar(56 * (hh - 1) + 4 * f), V_OK + u, sr(SRD_WS), S_XB + hh - 1, (f % 4) * 1024), "of"), firstuse[(hh, u, s)]))
        n0 = c.get("n0", 14); sp = c.get("ospace", 3); gB = c.get("gB", 30)
        D.append(Op(I(pl, "poll"), 0, 0))
        for k in range(n0, 21): D.append(Op(lds[k][0], 1 + sp * (k - n0), 1 + sp * (k - n0), hard=min(gB - 1, lds[k][1] - 1)))
        G.val[gB] += [I("L_pollb:"), I("v_cmp_ne_u32 vcc, 2, v%d" % (T + 8)), I("s_cbranch_vccnz L_pollb_spin"), I("L_pollb_ok:")]
        self.spin("pollb", pl)
        for k in range(21, 42): D.append(Op(lds[k][0], gB + 1 + sp * (k - 21), gB + 1 + sp * (k - 21), hard=lds[k][1] - 1))
        self.pre_loads = [I("L_poll:"), I("v_cmp_eq_u32 vcc, 0, v%d" % (T + 8)), I("s_cbranch_vccnz L_poll_spin"), I("L_poll_ok:")] + self.stamp_ins("P3") + [x[0] for x in lds[:n0]]
        self.spin("poll", pl)
        F1 = c.get("f1", 3); F2 = c.get("f2", 5)
        pl2 = "buffer_load_dword v%d, v%d, %s, 0 offen sc1" % (T + 8, V_OV, sr(SRD_WS))
        fl2 = lambda v: I("buffer_store_dword v%d, v%d, %s, s%d offen sc1" % (v, V_L0, sr(SRD_WS), S_WOB), "flag2")
        def ld(j):
            return [(I("buffer_load_dwordx4 %s, v%d, %s, s%d offen offset:%d sc1" % (vr(acc(hf, j)), V_L16, sr(SRD_WS), S_SO, hf * 1024), "in%d" % j),
                     [I("s_add_u32 s%d, s%d, %d" % (S_SO, S_LX, j * 8192))] if hf == 0 else []) for hf in range(2)]
        a("s_add_u32 s%d, s%d, 0x%x" % (S_WOB, S_FL, FL2))
        a("s_mul_i32 s%d, s%d, 57344" % (S_LX, S_HG)); a("s_add_u32 s%d, s%d, s%d" % (S_LX, S_LX, S_PB))
        a("s_mul_i32 s%d, s%d, 224" % (S_T0, S_B)); a("s_lshr_b32 s%d, s3, 1" % S_T1); a("s_mul_i32 s%d, s%d, 112" % (S_T1, S_T1)); a("s_add_u32 s%d, s%d, s%d" % (S_T0, S_T0, S_T1))
        a("s_lshl_b32 s%d, s%d, 10" % (S_T0, S_T0)); a("s_lshl_b32 s%d, s%d, 8" % (S_T1, S_CQ)); a("s_add_u32 s%d, s%d, s%d" % (S_T0, S_T0, S_T1))
        a("s_lshl_b32 s%d, s%d, 5" % (S_T1, S_HG)); a("s_add_u32 s%d, s%d, s%d" % (S_T0, S_T0, S_T1))
        a("s_lshl_b32 s%d, s%d, 16" % (S_T1, S_E)); a("s_add_u32 s%d, s%d, s%d" % (S_T1, S_T1, S_T0)); a("s_add_u32 s%d, s%d, %d" % (S_T2, S_T0, 48 * 1024))
        a("v_and_b32 v2, 7, v0"); a("v_lshlrev_b32 v3, 11, v2"); a("v_xor_b32 v%d, s%d, v3" % (V_OV, S_WOB))
        thr = lambda lo, hi, val: sum(val << (2 * k) for k in range(8) if lo <= k <= hi)
        a("v_lshlrev_b32 v2, 1, v2")
        for r, word in ((1, thr(1, F1, 1)), (3, thr(F1 + 1, F2, 2)), (4, thr(F2 + 1, 7, 3))):
            a("s_mov_b32 s%d, 0x%x" % (S_T0, word)); a("v_bfe_u32 v%d, s%d, v2, 2" % (r, S_T0))
        a("v_mov_b32 v6, 3")
        a("v_and_b32 v%d, 15, v0" % V_OO); a("v_lshlrev_b32 v%d, 10, v%d" % (V_OO, V_OO)); a("v_lshrrev_b32 v2, 4, v0"); a("v_lshl_add_u32 v%d, v2, 3, v%d" % (V_OO, V_OO))
        a("v_xor_b32 v%d, 0x1000, v%d" % (V_OO + 1, V_SCR))
        for idx, j in enumerate(range(1, 8)):
            B = (V_AKX if idx & 1 else V_T)
            last = max(done[(u, j)] for u in range(4))
            prev = max(done[(u, j - 2)] for u in range(4)) + 13 if j > 2 else 0
            cv = {}
            for u in (3, 0, 1, 2):
                for k in range(2):
                    cv[(u, k)] = Op(I("v_cvt_pk_bf16_f32 v%d, v%d, v%d" % (B + 2 * u + k, acc(u, j) + 2 * k, acc(u, j) + 2 * k + 1)), max(done[(u, j)] + 5, prev), min(last + 9, n - 3))
                    C.append(cv[(u, k)])
            st = [I("buffer_store_dwordx4 %s, v%d, %s, s%d offen offset:%d sc1" % (vr(B + 4 * hf), V_L16, sr(SRD_WS), S_SO, hf * 1024), "pst%d" % j) for hf in range(2)]
            pre = [I("s_xor_b32 s%d, s%d, %d" % (S_SO, S_HG, j)), I("s_mul_i32 s%d, s%d, 57344" % (S_SO, S_SO)), I("s_add_u32 s%d, s%d, s%d" % (S_SO, S_SO, S_PB)), I("s_add_u32 s%d, s%d, %d" % (S_SO, S_SO, j * 8192))]
            if j == c.get("f1at", 6): D.append(Op(fl2(7), last - c.get("f1off", 12), last - c.get("f1off", 12) + 1, hard=last, pre=[W(vm="pst%d" % F1)]))
            if j == 7: D.append(Op(I(pl2, "poll"), last - c.get("p1off", 2), last - c.get("p1off", 2) + 1, hard=last + 4))
            D.append(Op(st[0], min(done[(1, j)] + 6, n - 2), last + 5, hard=min(last + 10, n - 2), pre=pre, dep=[cv[(u, k)] for u in (0, 1) for k in range(2)]))
            D.append(Op(st[1], min(last + 6, n - 1), last + 7, hard=min(last + 11, n - 1), dep=[cv[(u, k)] for u in (2, 3) for k in range(2)]))
        D.append(Op(fl2(5), last + 8, last + 12, hard=n - 1, pre=[W(vm="pst%d" % F2)]))
        schedule(G, L, D, X, C, "phaseC"); self.gstamps(G, "c")
        G.head += self.pre_loads
        self.add(G.flatten())
        a.stamp("C1")
        def lds_(j):
            for ins, pre in ld(j): a.add(pre + [ins])
        def red(j):
            for d in range(8):
                x = acc(0, j) + d; t = acc(2, j) + 2 * (d & 3)
                a("v_lshlrev_b32 v%d, 16, v%d" % (t, x)); a("v_and_b32 v%d, 0xffff0000, v%d" % (t + 1, x))
                a("v_pk_add_f32 %s, %s, %s" % (vr(V_O + 2 * d, 2), vr(V_O + 2 * d, 2), vr(t, 2)))
        def check(name, r):
            a("L_%s:" % name); a("v_cmp_lt_u32 vcc, v%d, v%d" % (T + 8, r)); a("s_cbranch_vccnz L_%s_spin" % name); a("L_%s_ok:" % name)
        check("pa", 1)
        for t in ["L_pa_spin:", "s_waitcnt vmcnt(0)", fl2(6).t, "s_add_u32 s%d, s%d, 1" % (S_SPIN, S_SPIN), "s_cmp_ge_u32 s%d, 0x%x" % (S_SPIN, SPIN_MAX), "s_cbranch_scc1 L_pa_ok",
                  "s_sleep 1", pl2, "s_waitcnt vmcnt(0)", "s_branch L_pa"]: self.tail.append(I(t))
        a.stamp("T0")
        for j in range(1, F1): lds_(j)
        a.add([W(vm="pst7"), fl2(6)])
        a(pl2, "poll"); lds_(F1)
        for j in range(1, F1): red(j)
        check("pb", 3); self.spin("pb", pl2)
        a.stamp("T1")
        for j in range(F1 + 1, F2): lds_(j)
        a(pl2, "poll"); lds_(F2)
        for j in range(F1, F2): red(j)
        check("pd", 4); self.spin("pd", pl2)
        a.stamp("T2")
        for j in range(F2 + 1, 8): lds_(j)
        for j in range(F2, 8): red(j)
        a.stamp("T3")
        a("ds_write_b128 v%d, %s offset:%d" % (V_SCR, vr(acc(3, 0)), OSCR - SL(2)))
        osc = c.get("outsc", "")
        for u in range(3):
            for k in range(2): a("v_cvt_pk_bf16_f32 v%d, v%d, v%d" % (T + 2 * u + k, acc(u, 0) + 2 * k, acc(u, 0) + 2 * k + 1))
        a.add([W(lgkm0=True), I("s_barrier")])
        a("ds_read_b128 %s, v%d offset:%d" % (vr(4), V_OO + 1, OSCR - SL(2)))
        for u in range(3):
            a("buffer_store_dwordx2 %s, v%d, %s, s%d offen%s" % (vr(T + 2 * u, 2), V_OO, sr(SRD_OUT), S_T1, osc))
            if u < 2: a("s_add_u32 s%d, s%d, 16384" % (S_T1, S_T1))
        a("s_cmp_eq_u32 s%d, 1" % S_E); a("s_cbranch_scc1 L_fin")
        for k in range(2): a("v_pk_add_f32 %s, %s, %s" % (vr(4 + 2 * k, 2), vr(4 + 2 * k, 2), vr(acc(3, 0) + 2 * k, 2)))
        for k in range(2): a("v_cvt_pk_bf16_f32 v%d, v%d, v%d" % (2 + k, 4 + 2 * k, 5 + 2 * k))
        a("buffer_store_dwordx2 %s, v%d, %s, s%d offen%s" % (vr(2, 2), V_OO, sr(SRD_OUT), S_T2, osc))
        a("L_fin:")

    def fallback(self):
        t = lambda s: self.tail.append(I(s)); T = V_T
        t("L_fallback:")
        t("s_waitcnt vmcnt(0) lgkmcnt(0)"); t("s_barrier")
        t("s_mov_b32 s%d, 0x7f800000" % S_RETRY); t("s_mov_b32 s%d, 0" % S_KC)
        M = [V_NEGM + 4 * u for u in range(4)]
        for u in range(4): t("v_mov_b32 v%d, 0xff800000" % M[u])
        t("L_fb_loop:")
        t("s_add_u32 m0, s%d, 0x%x" % (S_L4, KSL(0))); t("s_add_u32 s%d, s%d, s%d" % (S_SO, S_KVB, S_KC))
        for j in range(4): t("buffer_load_dwordx4 v%d, %s, s%d offen offset:%d lds" % (V_OK + j, sr(SRD_K), S_SO, j * 1024))
        t("s_waitcnt vmcnt(0)"); t("s_barrier")
        for ad in (V_AKX, V_AKY):
            for kt in range(2):
                for s in range(4): t("ds_read_b128 %s, v%d offset:%d" % (ar(A_XF + 4 * s), ad + s, KSL(0) - K_WIN + kt * 4096))
                t("s_waitcnt lgkmcnt(0)")
                for u in range(4):
                    for s in range(4):
                        Dd = V_SY + 4 * u
                        t("%s %s, %s, %s, %s" % (MF, vr(Dd), ar(A_XF + 4 * s), ar(A_Q + 16 * u + 4 * s), "0" if s == 0 else vr(Dd)))
                t("s_nop 7")
                for u in range(4):
                    Dd = V_SY + 4 * u
                    t("v_max3_f32 v%d, v%d, v%d, v%d" % (M[u], M[u], Dd, Dd + 1)); t("v_max3_f32 v%d, v%d, v%d, v%d" % (M[u], M[u], Dd + 2, Dd + 3))
                t("s_nop 1")
        t("s_barrier")
        t("s_add_u32 s%d, s%d, 0x4000" % (S_KC, S_KC)); t("s_cmp_lt_u32 s%d, 0x20000" % S_KC); t("s_cbranch_scc1 L_fb_loop")
        for u in range(4): t("v_mov_b32 v%d, v%d" % (V_SY + u, M[u]))
        save = self.ins; self.ins = self.tail
        self.rowmax_finish([V_SY + u for u in range(4)])
        for ch in sorted(self.c["kvA"]):
            for kind, i in self.c["kvA"][ch]: self.add(flat(tile_dma(kind, i, KSL(i) if kind == "K" else VSL(i), 0, 0)))
        self.ins = save
        t("s_waitcnt vmcnt(0)"); t("s_barrier"); t("s_branch L_attn")

    def build(self):
        a = self
        self.prologue(); self.phaseA(); self.stamp("A1"); self.transAB(); self.stamp("Q")
        a("v_add_u32 v%d, 0x%x, v%d" % (V_SCR, SL(2), V_SCR))
        self.premax(); self.stamp("B0")
        a("s_waitcnt lgkmcnt(0)")
        a("L_attn:")
        self.attention(); self.stamp("B1"); self.transBC(); self.phaseC()
        self.fallback()
        main = insert_waits(self.ins)
        main, n1 = fix_hazards(main, self.c.get("verbose"))
        tail, n2 = fix_hazards(self.tail)
        sys.stderr.write("hazard pads %d, instructions %d\n" % (n1, len(main) + len(tail)))
        A = Asm()
        for i in main:
            if i.kind == "label": A.raw(i.t)
            else: A(i.t)
        if self.c.get("stamps"):
            A("s_waitcnt vmcnt(0)")
            self.nst = 1 + len(self.c["stamps"].split(","))
            b = STAMP0 + 4 * self.nst; self.nst += 1
            A("s_memrealtime s[%d:%d]" % (b, b + 1)); A("s_memtime s[%d:%d]" % (b + 2, b + 3))
            A.stamps_init(STAMP0, self.nst); A.stamps_flush(18, 2, 3, S_T0, v0=2)
            sys.stderr.write("stamps: %d\n" % (2 * self.nst))
        A.label("L_end"); A("s_endpgm")
        for i in tail:
            if i.kind == "label": A.raw(i.t)
            else: A(i.t)
        A.label("L_codeend")
        return A.text()

def reduce_kernel():
    a = Asm()
    a("s_cmp_ge_u32 s2, 256"); a("s_cbranch_scc1 R_end")
    a("s_load_dwordx2 s[4:5], s[0:1], 40"); a("s_load_dwordx2 s[6:7], s[0:1], 56")
    a("v_lshrrev_b32 v1, 6, v0"); a("v_and_b32 v0, 63, v0"); a("v_readfirstlane_b32 s3, v1"); a("v_lshlrev_b32 v2, 4, v0")
    a("s_waitcnt lgkmcnt(0)")
    a("s_mov_b32 s8, s4"); a("s_and_b32 s9, s5, 0xffff"); a("s_mov_b32 s10, %d" % (8 * 224 * 512 * 2)); a("s_mov_b32 s11, 0x20000")
    a("s_mov_b32 s12, s6"); a("s_and_b32 s13, s7, 0xffff"); a("s_mov_b32 s14, 0x%x" % WS_BYTES); a("s_mov_b32 s15, 0x20000")
    a("s_lshl_b32 s16, s2, 16"); a("s_lshl_b32 s17, s3, 11"); a("s_add_u32 s16, s16, s17"); a("s_add_u32 s16, s16, 0x%x" % PB_OFF)
    for hg in range(8):
        a("s_add_u32 s17, s16, %d" % (hg * 8192)); a("s_xor_b32 s18, s17, 2048")
        a("buffer_load_dwordx4 %s, v2, s[12:15], s17 offen" % vr(32 + 12 * hg))
        a("buffer_load_dwordx4 %s, v2, s[12:15], s17 offen offset:1024" % vr(36 + 12 * hg))
        a("buffer_load_dwordx2 %s, v2, s[12:15], s18 offen offset:1032" % vr(40 + 12 * hg, 2))
    a("s_lshr_b32 s19, s2, 5"); a("s_mul_i32 s19, s19, 224"); a("s_lshr_b32 s20, s3, 1"); a("s_mul_i32 s20, s20, 112"); a("s_add_u32 s19, s19, s20")
    a("s_lshl_b32 s19, s19, 10"); a("s_and_b32 s20, s2, 31"); a("s_lshl_b32 s20, s20, 5"); a("s_add_u32 s19, s19, s20")
    a("s_and_b32 s20, s3, 1"); a("s_lshl_b32 s21, s20, 16"); a("s_add_u32 s21, s21, s19"); a("s_add_u32 s22, s19, %d" % (48 * 1024))
    a("v_and_b32 v3, 15, v0"); a("v_lshlrev_b32 v3, 10, v3"); a("v_lshrrev_b32 v4, 4, v0"); a("v_lshl_add_u32 v3, v4, 3, v3")
    for k in range(16): a("v_mov_b32 v%d, 0" % (8 + k))
    for hg in range(8):
        a("s_waitcnt vmcnt(%d)" % (21 - 3 * hg))
        for d in range(10):
            src = 32 + 12 * hg + d; dd = d if d < 8 else d - 2
            a("v_lshlrev_b32 v4, 16, v%d" % src); a("v_and_b32 v5, 0xffff0000, v%d" % src)
            a("v_add_f32 v%d, v%d, v4" % (8 + 2 * dd, 8 + 2 * dd)); a("v_add_f32 v%d, v%d, v5" % (9 + 2 * dd, 9 + 2 * dd))
    for d in range(8): a("v_cvt_pk_bf16_f32 v%d, v%d, v%d" % (24 + d, 8 + 2 * d, 9 + 2 * d))
    for u in range(3):
        a("buffer_store_dwordx2 %s, v3, s[8:11], s21 offen" % vr(24 + 2 * u, 2)); a("s_add_u32 s21, s21, 16384")
    a("s_cmp_eq_u32 s20, 1"); a("s_cbranch_scc1 R_end")
    a("buffer_store_dwordx2 %s, v3, s[8:11], s22 offen" % vr(30, 2))
    a.label("R_end"); a("s_endpgm")
    return a.text()

DEFAULT = dict(
    kvA={5: [("K", 0)], 6: [("V", 0), ("K", 1)], 7: [("V", 1)]},
    kvB={-1: [("K", 2)], 0: [("V", 2), ("K", 3)], 1: [("V", 3), ("K", 4)], 2: [("V", 4), ("K", 5)], 3: [("V", 5), ("K", 6)], 4: [("V", 6), ("K", 7)],
         5: [("V", 7), ("WO", (0, 0))], 6: [("WO", (0, 1)), ("WO", (1, 0)), ("WO", (2, 0))], 7: [("WO", (3, 0)), ("WO", (1, 1)), ("WO", (2, 1))]},
    touch_n=21, map=1,
)
HEADER = open("standalone__gqa_block_cached__near_ridge.s.ref").read().split("; Override")[0]

def generate(fn, **kw):
    cfg = dict(DEFAULT); cfg.update(kw)
    body = K(cfg).build()
    ks = [(KN, body, 256, 256, 163840, 512, 256)]
    open(fn, "w").write(wrap(ks, HEADER))

if __name__ == "__main__":
    import ast
    kw = {}
    for x in sys.argv[2:]:
        k, v = x.split("=", 1)
        try: v = ast.literal_eval(v)
        except Exception: pass
        kw[k] = v
    generate(sys.argv[1], **kw)
```

```python
import re

def regs(tok):
    tok = tok.strip()
    tok = tok.lstrip("-")
    if tok.startswith("abs("): tok = tok[4:-1]
    if tok.startswith("|"): tok = tok.strip("|")
    m = re.fullmatch(r"([vas])\[(\d+):(\d+)\]", tok)
    if m: return {(m.group(1), i) for i in range(int(m.group(2)), int(m.group(3)) + 1)}
    m = re.fullmatch(r"([vas])(\d+)", tok)
    if m: return {(m.group(1), int(m.group(2)))}
    if tok == "vcc": return {("s", "vcc")}
    if tok == "m0": return {("s", "m0")}
    if tok == "exec": return {("s", "exec")}
    return set()

TRANS = ("v_exp_f32", "v_log_f32", "v_rcp_f32", "v_rsq_f32", "v_sqrt_f32")

class I:
    __slots__ = ("t", "op", "ops", "kind", "w", "r", "A", "B", "C", "tag", "need", "lds")
    def __init__(self, text, tag=None):
        self.t = text; self.tag = tag; self.need = None
        s = text.split(";")[0].strip()
        if s.endswith(":") or s.startswith("."):
            self.op = "label"; self.kind = "label"; self.w = set(); self.r = set(); self.ops = []; return
        p = s.split(None, 1); self.op = p[0]
        rest = p[1] if len(p) > 1 else ""
        rest = re.sub(r"\b(op_sel|op_sel_hi|neg_lo|neg_hi|quad_perm):\[[^\]]*\]", "", rest)
        rest = re.sub(r"hwreg\([^)]*\)", "hwreg", rest)
        ops = [o.strip() for o in rest.split(",")] if rest else []
        mods = []
        if ops:
            last = ops[-1].split(); ops[-1] = last[0] if last else ""; mods = last[1:]
        self.ops = ops; op = self.op
        R = lambda xs: set().union(*[regs(x) for x in xs]) if xs else set()
        self.A = self.B = self.C = set(); self.lds = False
        if op.startswith("v_mfma"):
            self.kind = "mfma"; self.w = regs(ops[0]); self.A = regs(ops[1]); self.B = regs(ops[2]); self.C = regs(ops[3]); self.r = self.A | self.B | self.C
        elif op.startswith("ds_read"):
            self.kind = "ds"; self.w = regs(ops[0]); self.r = R(ops[1:])
        elif op.startswith("ds_write"):
            self.kind = "ds"; self.w = set(); self.r = R(ops)
        elif op.startswith("buffer_load"):
            self.kind = "vm"
            if "lds" in mods: self.w = set(); self.r = R(ops) | {("s", "m0")}; self.lds = True
            else: self.w = regs(ops[0]); self.r = R(ops[1:])
        elif op.startswith("global_load"):
            self.kind = "vm"; self.w = regs(ops[0]); self.r = R(ops[1:])
        elif op.startswith("buffer_store") or op.startswith("global_store") or op.startswith("global_atomic") or op.startswith("buffer_atomic"):
            self.kind = "vm"; self.w = set(); self.r = R(ops)
        elif op.startswith("buffer_"):
            self.kind = "vm"; self.w = set(); self.r = set()
        elif op.startswith("v_"):
            self.kind = "valu"
            if op.startswith("v_permlane"): self.w = R(ops[:2]); self.r = R(ops[:2])
            elif op.startswith("v_cmp"): self.w = regs(ops[0]); self.r = R(ops[1:])
            elif op.startswith("v_fmac") or op.startswith("v_dot2c") or op.startswith("v_writelane"): self.w = regs(ops[0]); self.r = R(ops)
            elif op.startswith("v_cndmask") and len(ops) == 4: self.w = regs(ops[0]); self.r = R(ops[1:])
            else: self.w = regs(ops[0]); self.r = R(ops[1:])
        elif op in ("s_waitcnt", "s_nop", "s_barrier", "s_endpgm", "s_sleep", "s_setprio") or op.startswith("s_cbranch") or op == "s_branch":
            self.kind = "ctl"; self.w = set(); self.r = set()
        elif op.startswith("s_load") or op.startswith("s_mem") or op.startswith("s_buffer_load"):
            self.kind = "smem"; self.w = regs(ops[0]); self.r = R(ops[1:])
        elif op.startswith("s_cmp") or op.startswith("s_bitcmp"):
            self.kind = "salu"; self.w = set(); self.r = R(ops)
        elif op == "WAIT":
            self.kind = "pseudo"; self.w = set(); self.r = set()
        else:
            assert op.startswith("s_"), text
            self.kind = "salu"; self.w = regs(ops[0]); self.r = R(ops[1:])
    def states(self):
        if self.kind in ("label", "pseudo"): return 0
        if self.op == "s_nop": return int(self.ops[0]) + 1
        return 1

def W(vm=None, lgkm0=False):
    i = I("WAIT"); i.need = (vm, lgkm0); return i

def parse_wait(i):
    vm = lg = None
    m = re.search(r"vmcnt\((\d+)\)", i.t); vm = int(m.group(1)) if m else None
    m = re.search(r"lgkmcnt\((\d+)\)", i.t); lg = int(m.group(1)) if m else None
    return vm, lg

def insert_waits(ins, hoist=True, AGE=8, MINAGE=6, BACK=4):
    out = []
    ds = []; vm = []
    mf = []
    def shift(pos):
        for lst in (ds, vm):
            for n in range(len(lst)):
                if lst[n][0] >= pos: lst[n] = (lst[n][0] + 1,) + lst[n][1:]
        for n in range(len(mf) - 1, -1, -1):
            if mf[n] >= pos: mf[n] += 1
            else: break
    def mk(v, l): return I("s_waitcnt" + (" vmcnt(%d)" % v if v is not None else "") + (" lgkmcnt(%d)" % l if l is not None else ""), "auto")
    def blocked(x): return x.kind == "label" or (x.kind == "ctl" and x.op not in ("s_waitcnt", "s_nop")) or x.kind == "smem"
    def add_wait(lst, k, name, mx, can_hoist):
        pos = len(out); gap = len(mf)
        if can_hoist and hoist and mf and lst[k][0] < mf[-1] and not any(blocked(x) for x in out[mf[-1] + 1:]) and len(out) - mf[-1] <= 5:
            pos = mf[-1] + 1
            for back in range(BACK + 1):
                mi = len(mf) - 1 - back
                if mi < 0: break
                p = mf[mi] + 1; end = mf[mi + 1] if back else len(out)
                body = out[p:end]
                if any(blocked(x) for x in body) or len(body) > 4: break
                if back and (name != "lgkmcnt" or mi + 1 - lst[k][2] < MINAGE): break
                free = not any(x.kind == "vm" for x in body) and all(x.tag == "auto" for x in body if x.kind in ("salu", "ctl"))
                if free: pos = p; gap = mi + 1; break
        if name == "lgkmcnt" and can_hoist:
            for j in range(k + 1, len(lst)):
                if lst[j][0] < pos and gap - lst[j][2] >= AGE: k = j
        n = min(sum(1 for x in lst[k + 1:] if x[0] < pos), mx)
        at = pos if pos < len(out) else pos - 1
        if at >= 0 and out[at].op == "s_waitcnt" and out[at].tag == "auto":
            v, l = parse_wait(out[at])
            if name == "vmcnt": v = n if v is None else min(v, n)
            else: l = n if l is None else min(l, n)
            out[at] = mk(v, l)
        else:
            shift(pos)
            out.insert(pos, mk(n, None) if name == "vmcnt" else mk(None, n))
        before = sum(1 for x in lst if x[0] < pos + 1)
        del lst[:max(before - n, k + 1)]
    for i in ins:
        if i.kind == "pseudo":
            tags, l0 = i.need
            if tags is not None:
                if not isinstance(tags, (list, tuple)): tags = [tags]
                ks = [k for k, x in enumerate(vm) if x[1].tag in tags or "all" in tags]
                if ks: add_wait(vm, max(ks), "vmcnt", 63, False)
            if l0 and ds: add_wait(ds, len(ds) - 1, "lgkmcnt", 15, False)
            continue
        touch = i.r | i.w
        if touch:
            ks = [k for k, x in enumerate(ds) if x[1].w & touch]
            if ks: add_wait(ds, max(ks), "lgkmcnt", 15, True)
            ks = [k for k, x in enumerate(vm) if x[1].w & touch]
            if ks: add_wait(vm, max(ks), "vmcnt", 63, True)
        if i.op == "s_waitcnt":
            v, l = parse_wait(i)
            if v is not None and len(vm) > v: del vm[:len(vm) - v]
            if l is not None and len(ds) > l: del ds[:len(ds) - l]
        out.append(i)
        if i.kind == "mfma": mf.append(len(out) - 1)
        if i.kind == "ds": ds.append((len(out) - 1, i, len(mf)))
        if i.kind == "vm":
            vm.append((len(out) - 1, i, len(mf)))
            assert len(vm) <= 63, "vmcnt overflow"
    return out

def verify_waits(ins):
    ds = []; vm = []
    for i in ins:
        t = i.r | i.w
        for lst in (ds, vm):
            for x in lst: assert not (x.w & t), "unwaited load: %s -> %s" % (x.t, i.t)
        if i.op == "s_waitcnt":
            v, l = parse_wait(i)
            if v is not None and len(vm) > v: del vm[:len(vm) - v]
            if l is not None and len(ds) > l: del ds[:len(ds) - l]
        if i.kind == "ds": ds.append(i)
        if i.kind == "vm": vm.append(i)

def estimate(ins):
    res = []; cur = None
    def close(b):
        c = 8; sal = 0; prevv = False
        for k, x in enumerate(b):
            if x.kind == "label": continue
            if x.kind in ("salu", "ctl", "smem"):
                sal += 1; c += 0 if (sal == 1 and k == 0 and not any(y.kind == "vm" for y in b)) else 4 * x.states()
            elif x.kind == "vm": c += (23 if "store" in x.op else 8) + (8 if prevv else 0)
            elif x.kind == "ds": c += 4 + (8 if prevv else 0)
            else: c += 8 if (x.op in TRANS or x.op.startswith("v_permlane")) else 4
            prevv = x.kind == "valu"
        return max(16, c)
    for i in ins:
        if i.kind == "mfma":
            if cur is not None: res.append(close(cur))
            cur = []
        elif cur is not None: cur.append(i)
    return res

def passes(i):
    return 8 if "32x32" in i.op else 4

def need_states(p, c):
    n = 0
    vg = lambda s: {x for x in s if x[0] in "va"}
    sg = lambda s: {x for x in s if x[0] == "s"}
    if p.kind == "valu":
        if c.kind == "mfma" and vg(p.w) & c.r: n = max(n, 2)
        if p.op.replace("_e32", "").replace("_e64", "") in TRANS and c.kind == "valu" and vg(p.w) & c.r: n = max(n, 1)
        if c.op.startswith("v_permlane") and vg(p.w) & c.r: n = max(n, 2)
        if (c.op.startswith("v_readfirstlane") or c.op.startswith("v_readlane")) and vg(p.w) & c.r: n = max(n, 1)
        if c.kind == "valu" and "dpp" in c.t or "row_" in c.t or "quad_perm" in c.t:
            if vg(p.w) & c.r: n = max(n, 2)
        if sg(p.w):
            if c.kind == "vm" and sg(p.w) & c.r: n = max(n, 5)
            if c.kind == "valu" and sg(p.w) & c.r: n = max(n, 2)
            if c.kind == "valu" and c.op.startswith("v_cndmask") and ("s", "vcc") in p.w: n = max(n, 2)
            if c.kind in ("salu",) and sg(p.w) & c.r: n = max(n, 1)
    if p.kind == "mfma":
        k = passes(p)
        d = p.w
        if c.kind == "mfma":
            if d & (c.A | c.B): n = max(n, k + 4)
            if d & c.C and c.C != d: n = max(n, k + 2)
            if d & c.w and c.w != d: n = max(n, k + 2)
        elif c.kind in ("valu", "vm", "ds"):
            if d & (c.r | c.w): n = max(n, k + 4)
            if c.kind == "valu" and p.C & c.w: n = max(n, k - 1)
    if p.kind == "salu" and ("s", "m0") in p.w and c.kind == "vm" and c.lds: n = max(n, 1)
    if p.kind == "vm" and ("dwordx4" in p.op or "dwordx3" in p.op) and "store" in p.op:
        if vg(p.r) & c.w: n = max(n, 2)
    return n

def fix_hazards(ins, verbose=False):
    out = []; added = 0
    for c in ins:
        if c.kind not in ("label", "pseudo"):
            dist = 0; worst = 0; who = None
            for p in reversed(out[-24:]):
                if dist >= 12: break
                if p.kind != "label":
                    n = need_states(p, c) - dist
                    if n > worst: worst = n; who = p
                dist += p.states()
            if worst > 0:
                if verbose: print("hazard pad %d: [%s] -> [%s]" % (worst, who.t, c.t))
                out.append(I("s_nop %d" % (worst - 1), "haz")); added += worst
        out.append(c)
    return out, added

class Gaps:
    def __init__(self):
        self.m = []; self.pre = []; self.mem = []; self.val = []; self.head = []; self.blocked = set()
    def mfma(self, text):
        self.m.append(I(text)); self.pre.append([]); self.mem.append([]); self.val.append([]); return len(self.m) - 1
    def n(self): return len(self.m)
    def cost(self, g):
        c = sum(8 if x.kind == "vm" else 4 for x in self.mem[g])
        for v in self.val[g]: c += 0 if v.kind == "label" else 8 if (v.op in TRANS or v.op.startswith("v_permlane")) else 4
        return c
    def flatten(self):
        out = list(self.head)
        for k in range(len(self.m)):
            out.append(self.m[k]); out += self.pre[k]; out += self.mem[k]; out += self.val[k]
        return out
    def est(self):
        return sum(max(16, 8 + self.cost(g) + 4 * max(0, len(self.pre[g]) - 1)) for g in range(len(self.m)))
```

```python
import sys, math, struct
from asmlib import Asm, wrap, KN, STAMP_OFF
from stream import *

MF = "v_mfma_f32_16x16x32_bf16"
def vr(b, n=4): return "v[%d:%d]" % (b, b + n - 1)
def ar(b, n=4): return "a[%d:%d]" % (b, b + n - 1)
def sr(b, n=4): return "s[%d:%d]" % (b, b + n - 1)
def f2u(x): return struct.unpack("<I", struct.pack("<f", x))[0]

S_WG, S_W = 2, 3
SRD_X, SRD_WQ, SRD_K, SRD_V, SRD_WO, SRD_WS, SRD_OUT, SRD_DBG = 20, 24, 28, 32, 36, 40, 44, 48
S_B, S_H, S_HG, S_CQ, S_E, S_ROT = 4, 5, 6, 7, 8, 9
S_XB, S_WB, S_KVB, S_WOB, S_LX, S_L4 = 10, 11, 12, 13, 14, 15
S_OB, S_PB = 16, 17
S_C0 = 52
S_SO = 54
S_T0, S_T1, S_T2, S_T3 = 55, 56, 57, 58
S_XCC, S_RETRY, S_FL = 59, 60, 61
S_KC = 62
S_SPIN = 63
S_OS = 98
SPIN_MAX = 1 << 20
STAMP0 = 68
S_AS = 84
V_OK, V_OV, V_OO = 8, 12, 14
V_L16, V_L0, V_POLL, V_SCR = 18, 19, 20, 21
V_AKX, V_AKY, V_AVX, V_AVY = 22, 26, 30, 38
V_T = 46
V_SX, V_SY = 56, 88
V_NEGM = 112
V_O = 128
V_OX, V_OW, V_AX, V_AW = 76, 60, 64, 68
A_Q, A_L, A_ONE, A_XF, A_RING = 0, 64, 80, 96, 192
NRING = 16
SL = lambda i: i * 16384
XS = lambda c: ((7 - c) % 3) * 28672
WS_ = lambda c: SL(6 + (7 - c) % 3)
KSL = lambda i: SL([9, 8, 7][i % 3])
VSL = lambda i: SL([5, 4, 6][i % 3])
WOSL = {(0, 0): SL(0), (0, 1): SL(1), (1, 0): SL(2), (1, 1): SL(3), (2, 0): SL(7), (2, 1): SL(6), (3, 0): SL(9), (3, 1): SL(8)}
K_WIN, V_WIN, WQ_WIN = SL(6), SL(4), SL(6)
QSCR = SL(2); OSCR = SL(5); LSCR = SL(8)
OB_OFF, FL_OFF, PB_OFF = 0, 16 << 20, 32 << 20
FL2 = 1 << 17
WS_BYTES = 256 << 20
ACT = (0, 1, 4, 5)

class Op:
    def __init__(self, ins, lo, hi, hard=None, pre=(), dep=None):
        self.i = ins; self.lo = lo; self.hi = hi; self.hard = hi if hard is None else hard; self.pre = list(pre); self.dep = dep; self.g = None; self.use = self.hard + 1

def schedule(G, L, D, X, C, name=""):
    n = G.n()
    for q in (L, D, X, C):
        for k in range(len(q) - 2, -1, -1):
            q[k].hi = min(q[k].hi, q[k + 1].hi - 1); q[k].hard = min(q[k].hard, q[k + 1].hard)
    ptr = {"L": 0, "D": 0, "X": 0, "C": 0}; Q = {"L": L, "D": D, "X": X, "C": C}
    lastD = [-5]
    def head(k):
        return Q[k][ptr[k]] if ptr[k] < len(Q[k]) else None
    def slots(o, g):
        return [x for x in range(max(lastD[0] + 1, 0, g - 12), g) if not G.pre[x]]
    def avail(o, g, strict=True):
        if o is None or o.lo > g: return False
        if o.dep is not None:
            for d in o.dep:
                if d.g is None or (strict and d.g >= g): return False
        if strict and o.i.kind == "vm":
            if G.pre[g]: return False
            if len(slots(o, g)) < len(o.pre): return False
        return True
    def put(k, g):
        o = head(k); o.g = g; ptr[k] += 1
        if g < 0:
            G.head += o.pre + [o.i]; return
        if k in "LD":
            pre = list(o.pre)
            if k == "D":
                sl = slots(o, g); sl = sl[max(0, len(sl) - len(pre)):] if pre else []
                for x in sl: G.pre[x].append(pre.pop(0))
                lastD[0] = g
            if G.mem[g] and pre: G.mem[g] += pre + [o.i]
            else: G.pre[g] += pre; G.mem[g].append(o.i)
        else: G.val[g].append(o.i)
    over = 0
    for g in range(-1, n):
        if g >= 0:
            cands = [(head(k).hi, k) for k in "LDX" if avail(head(k), g)]
            if cands and G.cost(g) <= 0:
                put(min(cands)[1], g)
            while G.cost(g) <= 4 and g not in G.blocked:
                if avail(head("C"), g): put("C", g)
                elif avail(head("X"), g) and head("X").i.op not in TRANS: put("X", g)
                else: break
        if g < 0:
            while head("L") is not None and head("L").hi < 0 and head("L").lo < 0: put("L", g)
        ch = True
        while ch:
            ch = False
            for k in "LDXC":
                o = head(k)
                if o is not None and o.hard <= g:
                    assert avail(o, g, False), "%s: cannot meet hard deadline g=%d lo=%d %s" % (name, g, o.lo, o.i.t)
                    put(k, g); ch = True; over += g >= 0
    for k in "LDXC": assert head(k) is None, (name, k, head(k).i.t, head(k).lo, n)
    leads = sorted(o.use - o.g for o in L if o.g >= 0)
    sys.stderr.write("%s: mfma %d est %d cycles (floor %d), forced %d, lds leads min %s\n" % (name, n, G.est(), 16 * n, over, leads[:24]))

class Ring:
    def __init__(self): self.k = 0; self.free_at = [-1] * NRING
    def alloc(self, last_use):
        s = self.k % NRING; self.k += 1; lo = self.free_at[s]; self.free_at[s] = last_use
        return A_RING + 4 * s, lo
    def peek(self, ahead=0): return A_RING + 4 * ((self.k + ahead) % NRING)

def tile_dma(kind, idx, lds, lo, hi, nt=True):
    ops = []
    if kind == "K": srd, vo, base, off, fl = SRD_K, lambda j: V_OK + j, S_KVB, idx * 16384, " nt" if nt else ""
    elif kind == "V": srd, vo, base, off, fl = SRD_V, lambda j: V_OV + (j & 1), S_KVB, idx * 16384, " nt" if nt else ""
    elif kind == "WO": srd, vo, fl = SRD_WO, lambda j: V_OO + j, ""
    tag = "%s%s" % (kind, idx)
    for j in range(4):
        pre = []
        if j == 0:
            pre = [I("s_add_u32 m0, s%d, 0x%x" % (S_L4, lds))]
            if kind == "WO":
                hh, half = idx
                pre += [I("s_xor_b32 s%d, s%d, 0x%x" % (S_SO, S_WOB, (hh << 17) | (half << 16)))]
            else: pre += [I("s_add_u32 s%d, s%d, 0x%x" % (S_SO, base, off))]
        h = lo + (hi - lo) * (j + 1) // 4
        ops.append(Op(I("buffer_load_dwordx4 v%d, %s, s%d offen offset:%d%s lds" % (vo(j), sr(srd), S_SO, j * 1024, fl), tag), lo, h, hard=hi, pre=pre))
    return ops

def stage_so(c): return (S_AS + 2 * (c % 7), S_AS + 2 * (c % 7) + 1)
def stage_setup(c):
    sw, sx = stage_so(c)
    return [I("s_add_u32 s%d, s%d, %d" % (S_KC, S_ROT, c)), I("s_and_b32 s%d, s%d, 7" % (S_KC, S_KC)),
            I("s_lshl_b32 s%d, s%d, 19" % (sw, S_KC)), I("s_add_u32 s%d, s%d, s%d" % (sw, sw, S_WB)),
            I("s_lshl_b32 s%d, s%d, 7" % (sx, S_KC)), I("s_add_u32 s%d, s%d, s%d" % (sx, sx, S_XB))]
def stage_dma(c, lo, hi):
    ops = []; tag = "A%d" % c
    seq = []; sw, sx = stage_so(c)
    for j in range(4):
        seq.append((I("buffer_load_dwordx4 v%d, %s, s%d offen offset:%d lds" % (V_OW + j, sr(SRD_WQ), sw, j * 1024), tag), [I("s_add_u32 m0, s%d, 0x%x" % (S_L4, WS_(c)))] if j == 0 else []))
    for j in range(7):
        p = [I("s_add_u32 m0, s%d, 0x%x" % (S_LX, XS(c) + 1024 * j))] if j in (0, 4) else []
        seq.append((I("buffer_load_dwordx4 v%d, %s, s%d offen offset:%d lds" % (V_OX + j, sr(SRD_X), sx, (j & 3) * 1024), tag), p))
    for k, (ins, p) in enumerate(seq):
        ops.append(Op(ins, lo, lo + (hi - lo) * (k + 1) // len(seq), hard=hi, pre=p))
    return ops

def flat(ops):
    out = []
    for o in ops: out += o.pre + [o.i]
    return out

class K:
    def __init__(self, cfg):
        self.c = cfg; self.ins = []; self.nst = 0
    def __call__(self, s, tag=None):
        for l in s.split("\n"):
            l = l.strip()
            if l: self.ins.append(I(l, tag))
    def add(self, lst): self.ins += lst
    def stamp_ins(self, name):
        st = self.c.get("stamps")
        if not st or name not in st.split(","): return []
        return self.stamp_at(1 + st.split(",").index(name), name.startswith("spin"))
    def stamp_at(self, k, spin=False):
        b = STAMP0 + 2 * k
        assert b + 1 < S_AS
        if spin: return [I("s_mov_b32 s%d, s%d" % (b, STAMP0)), I("s_add_u32 s%d, s%d, s%d" % (b + 1, STAMP0 + 1, S_SPIN))]
        return [I("s_waitcnt lgkmcnt(0)"), I("s_memrealtime s[64:65]"), I("s_memtime s[66:67]"), I("s_waitcnt lgkmcnt(0)"), I("s_mov_b32 s%d, s64" % b), I("s_mov_b32 s%d, s66" % (b + 1))]
    def stamp(self, name): self.add(self.stamp_ins(name))
    def gstamps(self, G, prefix):
        for nm in (self.c.get("stamps") or "").split(","):
            if nm.startswith(prefix) and nm[len(prefix):].isdigit(): G.val[int(nm[len(prefix):])] += self.stamp_ins(nm)

    def prologue(self):
        a = self; c = self.c
        a("s_cmp_ge_u32 s2, 256"); a("s_cbranch_scc1 L_end")
        for d, off in ((SRD_WQ, 24), (SRD_X, 0)):
            a("s_load_dwordx2 s[%d:%d], s[0:1], %d" % (d, d + 1, off))
        if c.get("stamps"):
            a("s_memrealtime s[64:65]"); a("s_memtime s[66:67]")
        T = V_T
        if c.get("touch", 1):
            a("s_getpc_b64 s[%d:%d]" % (S_T1, S_T2)); a("L_pc:")
            a("s_bfe_u32 s%d, s2, 0x20003" % S_T0); a("s_mul_i32 s%d, s%d, %d" % (S_T0, S_T0, c["touch_n"] * 512))
            a("v_min_u32 v6, %d, v0" % (4 * c["touch_n"] - 1)); a("v_lshl_add_u32 v6, v6, 7, s%d" % S_T0)
            a("v_min_u32 v6, L_codeend-L_pc-4, v6")
            a("global_load_dword v%d, v6, s[%d:%d]" % (V_T + 9, S_T1, S_T2), "touch")
        a("v_lshrrev_b32 v1, 6, v0"); a("v_and_b32 v0, 63, v0"); a("v_readfirstlane_b32 s3, v1")
        a("v_lshrrev_b32 v1, 4, v0"); a("v_and_b32 v2, 15, v0"); a("v_lshrrev_b32 v3, 3, v0"); a("v_and_b32 v4, 7, v0")
        a("s_and_b32 s%d, s2, 7" % S_ROT); a("s_lshr_b32 s%d, s2, 3" % S_T3)
        if c.get("map", 2) == 2:
            a("s_and_b32 s%d, s%d, 7" % (S_B, S_T3)); a("s_lshr_b32 s%d, s%d, 3" % (S_CQ, S_T3))
            a("s_lshl2_add_u32 s%d, s%d, s%d" % (S_H, S_ROT, S_CQ))
        else:
            a("s_and_b32 s%d, s2, 1" % S_B); a("s_and_b32 s%d, s%d, 3" % (S_T0, S_T3)); a("s_lshl2_add_u32 s%d, s%d, s%d" % (S_B, S_B, S_T0))
            a("s_lshr_b32 s%d, s%d, 1" % (S_H, S_ROT)); a("s_lshr_b32 s%d, s2, 5" % S_T0); a("s_lshl3_add_u32 s%d, s%d, s%d" % (S_H, S_H, S_T0))
        a("v_lshlrev_b32 v5, 1, v1"); a("v_xor_b32 v5, v5, v2"); a("v_lshlrev_b32 v5, 4, v5")
        a("v_lshl_add_u32 v%d, v1, 13, v5" % V_OW)
        a("v_add_u32 v%d, %d, v%d" % (V_OW + 1, 31744, V_OW))
        a("v_xor_b32 v6, 0x80, v%d" % V_OW)
        a("v_add_u32 v%d, %d, v6" % (V_OW + 2, 2 * 31744)); a("v_add_u32 v%d, %d, v6" % (V_OW + 3, 3 * 31744))
        a("s_lshl_b32 s%d, s%d, 8" % (S_WB, S_H)); a("s_lshl_b32 s%d, s3, 17" % S_T0); a("s_add_u32 s%d, s%d, s%d" % (S_WB, S_WB, S_T0))
        a("s_lshl_b32 s%d, s3, 12" % S_L4)
        def srd(d, nb):
            a("s_mov_b32 s%d, 0x%x" % (d + 2, nb)); a("s_mov_b32 s%d, 0x20000" % (d + 3))
        srd(SRD_WQ, 512 * 4096 * 2); srd(SRD_X, 8 * 224 * 512 * 2)
        a("s_and_b32 s%d, s3, 1" % S_E); a("s_lshl_b32 s%d, s%d, 6" % (S_T1, S_E))
        a("v_xor_b32 v6, v4, v1"); a("v_lshlrev_b32 v6, 4, v6"); a("v_lshl_add_u32 v6, v3, 10, v6")
        a("v_xor_b32 v%d, s%d, v6" % (V_OX, S_T1))
        a("v_xor_b32 v7, 64, v%d" % V_OX)
        a("v_add_u32 v%d, %d, v7" % (V_OX + 1, 7168)); a("v_add_u32 v%d, %d, v%d" % (V_OX + 2, 2 * 7168, V_OX)); a("v_add_u32 v%d, %d, v7" % (V_OX + 3, 3 * 7168))
        for j in range(4, 7): a("v_add_u32 v%d, 0x8000, v%d" % (V_OX + j, V_OX + j - 4))
        a("s_mul_i32 s%d, s%d, %d" % (S_XB, S_B, 229376)); a("s_mul_i32 s%d, s3, %d" % (S_T0, 57344)); a("s_add_u32 s%d, s%d, s%d" % (S_XB, S_XB, S_T0))
        a("s_mul_i32 s%d, s3, 7168" % S_LX)
        rot = c.get("rot", "xcd")
        if rot == "two":
            a("s_add_u32 s%d, s%d, s%d" % (S_T0, S_B, S_H)); a("s_and_b32 s%d, s%d, 1" % (S_T0, S_T0)); a("s_lshl2_add_u32 s%d, s%d, s%d" % (S_ROT, S_T0, S_ROT))
        a.add(stage_setup(0) + stage_setup(1))
        a("s_waitcnt lgkmcnt(0)")
        for d, off in ((SRD_K, 8), (SRD_V, 16), (SRD_WO, 32), (SRD_OUT, 40), (SRD_DBG, 48), (SRD_WS, 56)):
            a("s_load_dwordx2 s[%d:%d], s[0:1], %d" % (d, d + 1, off))
        a.add(flat(stage_dma(0, 0, 0)))
        st1 = stage_dma(1, 0, 0); n1 = c.get("n1", 4)
        a.add(flat(st1[:n1]))
        srd(SRD_K, 8 * 32 * 512 * 128 * 2); srd(SRD_V, 8 * 32 * 512 * 128 * 2); srd(SRD_WO, 4096 * 512 * 2)
        srd(SRD_OUT, 8 * 224 * 512 * 2); srd(SRD_DBG, 256); srd(SRD_WS, 48 << 20)
        a("s_waitcnt lgkmcnt(0)")
        if c.get("stamps"): a("s_mov_b64 s[18:19], s[%d:%d]" % (SRD_WS, SRD_WS + 1)); a("s_mov_b32 s%d, s64" % STAMP0); a("s_mov_b32 s%d, s66" % (STAMP0 + 1))
        if c.get("wsoff"):
            a("s_add_u32 s%d, s%d, 0x%x" % (SRD_WS, SRD_WS, c["wsoff"] << 20)); a("s_addc_u32 s%d, s%d, 0" % (SRD_WS + 1, SRD_WS + 1))
        a("s_lshr_b32 s%d, s%d, 2" % (S_HG, S_H)); a("s_and_b32 s%d, s%d, 3" % (S_CQ, S_H))
        for ch in range(2, 8): a.add(stage_setup(ch))
        a("s_lshl_b32 s%d, s%d, 5" % (S_T0, S_B)); a("s_add_u32 s%d, s%d, s%d" % (S_T0, S_T0, S_H))
        a("s_lshl_b32 s%d, s%d, 17" % (S_KVB, S_T0)); a("s_add_u32 s%d, s%d, s%d" % (S_KVB, S_KVB, S_L4))
        a("s_lshl_b32 s%d, s%d, 2" % (S_T0, S_T0)); a("s_add_u32 s%d, s%d, s3" % (S_T0, S_T0))
        a("s_lshl_b32 s%d, s%d, 3" % (S_OB, S_HG)); a("s_add_u32 s%d, s%d, s%d" % (S_OB, S_OB, S_B)); a("s_lshl_b32 s%d, s%d, 2" % (S_OB, S_OB)); a("s_add_u32 s%d, s%d, s3" % (S_OB, S_OB))
        a("s_mul_i32 s%d, s%d, %d" % (S_OB, S_OB, 4 * 14336))
        a("s_mul_i32 s%d, s%d, 14336" % (S_OS, S_CQ)); a("s_add_u32 s%d, s%d, s%d" % (S_OS, S_OS, S_OB))
        for u in range(1, 4): a("s_add_u32 s%d, s%d, %d" % (S_OS + u, S_OS, 4096 * u))
        a("s_lshl_b32 s%d, s%d, 7" % (S_FL, S_T0)); a("s_add_u32 s%d, s%d, 0x%x" % (S_FL, S_FL, FL_OFF))
        a("s_lshl_b32 s%d, s%d, 17" % (S_WOB, S_H)); a("s_lshl_b32 s%d, s3, 14" % S_T0); a("s_add_u32 s%d, s%d, s%d" % (S_WOB, S_WOB, S_T0))
        a("s_lshl_b32 s%d, s%d, 8" % (S_T0, S_CQ)); a("s_add_u32 s%d, s%d, s%d" % (S_WOB, S_WOB, S_T0))
        a("s_lshl_b32 s%d, s%d, 2" % (S_T0, S_B)); a("s_add_u32 s%d, s%d, s%d" % (S_T0, S_T0, S_CQ)); a("s_mul_i32 s%d, s%d, %d" % (S_PB, S_T0, 8 * 57344))
        a("s_lshl_b32 s%d, s3, 11" % S_T0); a("s_add_u32 s%d, s%d, s%d" % (S_PB, S_PB, S_T0)); a("s_add_u32 s%d, s%d, 0x%x" % (S_PB, S_PB, PB_OFF - 8192))
        cc = f2u(math.log2(math.e) / math.sqrt(128.0))
        a("s_mov_b32 s%d, 0x%x" % (S_C0, cc)); a("s_mov_b32 s%d, 0x%x" % (S_C0 + 1, cc))
        a("s_getreg_b32 s%d, hwreg(HW_REG_XCC_ID, 0, 4)" % S_XCC); a("s_mov_b32 s%d, 0x%x" % (S_RETRY, f2u(2.0 ** 40))); a("s_mov_b32 s%d, 0" % S_SPIN)
        a("v_lshlrev_b32 v%d, 4, v0" % V_L16)
        a("v_cmp_eq_u32 vcc, 0, v0"); a("v_bfrev_b32 v6, 1"); a("v_cndmask_b32 v%d, v6, 0, vcc" % V_L0)
        a("v_lshlrev_b32 v7, 9, v0"); a("v_xor_b32 v7, s%d, v7" % S_FL); a("v_lshl_add_u32 v7, v0, 2, v7")
        a("s_mov_b64 vcc, 14"); a("v_cndmask_b32 v%d, v6, v7, vcc" % V_POLL)
        a("v_lshlrev_b32 v7, 2, v0"); a("s_mov_b64 vcc, 0xff"); a("v_cndmask_b32 v%d, v6, v7, vcc" % (V_T + 8))
        a("v_and_b32 v6, 3, v0")
        a("v_xor_b32 v7, v2, v1"); a("v_lshlrev_b32 v7, 4, v7"); a("v_lshl_add_u32 v%d, v1, 8, v7" % V_OK)
        for j in (1, 2, 3): a("v_xor_b32 v%d, %d, v%d" % (V_OK + j, j << 6, V_OK))
        a("v_lshl_add_u32 v%d, v1, 8, v5" % V_OV); a("v_xor_b32 v%d, 0x80, v%d" % (V_OV + 1, V_OV))
        a("v_lshl_add_u32 v%d, v1, 10, v5" % V_OO); a("v_xor_b32 v7, 0x80, v%d" % V_OO)
        a("v_add_u32 v%d, 3072, v7" % (V_OO + 1)); a("v_add_u32 v%d, 6144, v%d" % (V_OO + 2, V_OO)); a("v_add_u32 v%d, 9216, v7" % (V_OO + 3))
        a("v_lshrrev_b32 v7, 1, v2"); a("v_xor_b32 v7, v7, v1"); a("v_lshlrev_b32 v7, 4, v7"); a("v_lshl_add_u32 v7, v2, 7, v7")
        a("s_lshr_b32 s%d, s3, 1" % S_T0); a("s_mul_i32 s%d, s%d, %d" % (S_T0, S_T0, 7 * 2048))
        a("s_lshl_b32 s%d, s%d, 13" % (S_T1, S_E)); a("s_add_u32 s%d, s%d, s%d" % (S_T2, S_T0, S_T1)); a("s_add_u32 s%d, s%d, %d" % (S_T0, S_T0, 3 * 2048))
        a("v_add_u32 v%d, s%d, v7" % (V_AX, S_T2)); a("v_xor_b32 v%d, 64, v%d" % (V_AX + 1, V_AX))
        a("v_add_u32 v%d, s%d, v7" % (V_AX + 2, S_T0)); a("v_xor_b32 v%d, 64, v%d" % (V_AX + 3, V_AX + 2))
        a("v_lshrrev_b32 v3, 2, v2"); a("v_and_b32 v4, 1, v1"); a("v_lshl_or_b32 v4, v4, 2, v3")
        a("s_lshl_b32 s%d, s%d, 1" % (S_T0, S_E)); a("v_xor_b32 v4, s%d, v4" % S_T0); a("v_lshlrev_b32 v4, 5, v4"); a("v_lshl_add_u32 v4, v6, 3, v4")
        a("v_lshl_add_u32 v7, v1, 3, v3"); a("v_lshl_add_u32 v7, v7, 8, v4"); a("v_add_u32 v%d, 0x%x, v7" % (V_AW, WQ_WIN))
        for j in range(1, 8): a("v_xor_b32 v%d, %d, v%d" % (V_AW + j, j << 5, V_AW))
        a("v_lshl_add_u32 v7, v1, 2, v3"); a("v_lshl_add_u32 v7, v7, 8, v4")
        a("s_add_u32 s%d, s%d, 0x%x" % (S_T2, S_T1, V_WIN)); a("v_add_u32 v%d, s%d, v7" % (V_AVX, S_T2))
        for j in range(1, 8): a("v_xor_b32 v%d, %d, v%d" % (V_AVX + j, j << 5, V_AVX))
        for j in range(8): a("v_xor_b32 v%d, 0x2000, v%d" % (V_AVY + j, V_AVX + j))
        a("v_and_b32 v7, 1, v1"); a("v_lshlrev_b32 v7, 1, v7"); a("v_lshrrev_b32 v3, 1, v1"); a("v_or_b32 v7, v7, v3")
        a("s_lshl_b32 s%d, s%d, 2" % (S_T0, S_E)); a("v_xor_b32 v7, s%d, v7" % S_T0); a("v_xor_b32 v7, v7, v2"); a("v_lshlrev_b32 v7, 4, v7"); a("v_lshl_add_u32 v7, v2, 8, v7")
        a("s_add_u32 s%d, s%d, 0x%x" % (S_T2, S_T1, K_WIN)); a("v_add_u32 v%d, s%d, v7" % (V_AKX, S_T2))
        for s in range(1, 4): a("v_xor_b32 v%d, %d, v%d" % (V_AKX + s, s << 6, V_AKX))
        for s in range(4): a("v_xor_b32 v%d, 0x2000, v%d" % (V_AKY + s, V_AKX + s))
        a("v_mov_b32 v7, 0x3f803f80")
        for k in range(4): a("v_accvgpr_write_b32 a%d, v7" % (A_ONE + k))
        a("v_add_u32 v%d, s%d, v%d" % (V_SCR, S_L4, V_L16))
        a("v_mov_b32 v6, 0")
        a.add(flat(st1[n1:]))
        a("buffer_store_dword v6, v%d, %s, s%d offen sc1" % (V_T + 8, sr(SRD_WS), S_FL), "flagreset")
        a("s_add_u32 s%d, s%d, 0x%x" % (S_T0, S_FL, FL2))
        a("buffer_store_dword v6, v%d, %s, s%d offen sc1" % (V_T + 8, sr(SRD_WS), S_T0), "flagreset")

    def acc(self, u, j): return V_O + (u * 8 + j) * 4 if u < 3 else V_O + 96 + 4 * ACT.index(j)
    def phaseA(self):
        c = self.c
        G = Gaps(); ring = Ring(); L = []; D = []
        LEAD = c.get("leadA", 10); BOFF = c.get("boffA", 16); BUB = c.get("bubA", 5)
        xf = lambda ch, u, ks: A_XF + 32 * (ch & 1) + 8 * u + 4 * ks
        bar = {ch: 56 * ch - BOFF for ch in range(1, 8)}; bar[0] = -1; bar[8] = 10 ** 6
        xlast = {}
        for ch in range(8):
            Lx = []; Lw = []
            firstx = {}
            for j in range(8):
                us = [0, 1, 2] + ([3] if j in ACT else [])
                m0 = G.n(); last = m0 + 2 * len(us) - 1
                fr = []
                for ks in range(2):
                    reg, lo = ring.alloc(last - 1 + ks); fr.append(reg)
                    for eh in range(2):
                        Lw.append((m0 + ks, Op(I("ds_read_b64_tr_b16 %s, v%d offset:%d" % (ar(reg + 2 * eh, 2), V_AW + j, WS_(ch) - WQ_WIN + ks * 8192 + eh * 1024)),
                                               max(lo, bar[ch]), min(m0 + ks - LEAD, bar[ch + 1] - BUB), hard=min(m0 + ks - 1, bar[ch + 1] - 2))))
                for u in us:
                    for ks in range(2):
                        A = self.acc(u, j)
                        m = G.mfma("%s %s, %s, %s, %s" % (MF, vr(A), ar(fr[ks]), ar(xf(ch, u, ks)), "0" if ch == 0 and ks == 0 else vr(A)))
                        firstx.setdefault((u, ks), m); xlast[(ch, u, ks)] = m
            for (u, ks), m in firstx.items():
                lo = max(bar[ch], xlast.get((ch - 2, u, ks), -1))
                Lx.append((m, Op(I("ds_read_b128 %s, v%d offset:%d" % (ar(xf(ch, u, ks)), V_AX + (2 if u == 3 else 0) + ks, XS(ch) + (u * 2048 if u < 3 else 0))), lo, m - LEAD, hard=m - 1)))
            L += [o for m, o in sorted(Lx + Lw, key=lambda t: t[0])]
        n = G.n()
        for ch in range(8):
            lo = max(bar[ch], 0); hi = min(bar[ch + 1] - 2, n - 1)
            extra = c["kvA"].get(ch, [])
            if ch + 2 < 8:
                mid = hi if not extra else lo + (hi - lo) * 11 // (11 + 4 * len(extra))
                D += stage_dma(ch + 2, lo, mid); lo = mid
            for k, (kind, i) in enumerate(extra):
                l0 = lo + (hi - lo) * k // len(extra); h0 = lo + (hi - lo) * (k + 1) // len(extra)
                D += tile_dma(kind, i, KSL(i) if kind == "K" else VSL(i), max(bar[ch], 0), h0, c.get("nt", True))
        for ch in range(1, 8): G.pre[bar[ch] - 1] += [W(vm="A%d" % ch, lgkm0=True)]; G.pre[bar[ch]] += [I("s_barrier")]
        self.add([W(vm="A0"), I("s_barrier")])
        self.stamp("A0")
        schedule(G, L, D, [], [], "phaseA"); self.gstamps(G, "a")
        self.add(G.flatten())

    def transAB(self):
        a = self
        fr = [(u, s) for u in (3, 0, 1, 2) for s in range(4) if u < 3 or s % 2 == 0]
        base = lambda u, s: self.acc(u, 2 * s)
        def conv(lst):
            for u, s in lst:
                A = base(u, s)
                for k in range(4): a("v_pk_mul_f32 %s, %s, %s" % (vr(A + 2 * k, 2), vr(A + 2 * k, 2), sr(S_C0, 2)))
                for k in range(4): a("v_cvt_pk_bf16_f32 v%d, v%d, v%d" % (A + k, A + 2 * k, A + 2 * k + 1))
            for u, s in lst:
                A = base(u, s)
                a("v_permlane16_swap_b32 v%d, v%d" % (A, A + 2)); a("v_permlane16_swap_b32 v%d, v%d" % (A + 1, A + 3))
        conv(fr[:2])
        for k, (u, s) in enumerate(fr[:2]): a("ds_write_b128 v%d, %s offset:%d" % (V_SCR, vr(base(u, s)), QSCR + k * 1024))
        conv(fr[2:])
        for u, s in fr:
            for k in range(4): a("v_accvgpr_write_b32 a%d, v%d" % (A_Q + 16 * u + 4 * s + k, base(u, s) + k))
        a("v_xor_b32 v%d, 0x1000, v%d" % (V_T, V_SCR))
        a.add([W(vm="K0", lgkm0=True), I("s_barrier")])
        for k in range(2): a("ds_read_b128 %s, v%d offset:%d" % (ar(A_Q + 48 + 4 * (2 * k + 1)), V_T, QSCR + k * 1024))
        a("s_add_u32 s%d, s%d, 1" % (S_T0, S_XCC)); a("s_lshl_b32 s%d, s%d, 3" % (S_T1, S_CQ)); a("s_lshl_b32 s%d, s%d, s%d" % (S_T0, S_T0, S_T1))
        a("s_lshl_b32 s%d, s%d, 3" % (S_T1, S_B)); a("s_add_u32 s%d, s%d, s%d" % (S_T1, S_T1, S_HG)); a("s_lshl_b32 s%d, s%d, 2" % (S_T1, S_T1))
        a("s_lshl_b32 s%d, s3, 8" % S_T2); a("s_add_u32 s%d, s%d, s%d" % (S_T2, S_T2, S_T1))
        a("v_mov_b32 v%d, s%d" % (V_T + 1, S_T0))
        a("buffer_atomic_add v%d, v%d, %s, s%d offen" % (V_T + 1, V_L0, sr(SRD_DBG), S_T2), "hello")

    def rowmax_finish(self, M):
        a = self; T = V_T
        for u in range(4): a("v_mov_b32 v%d, v%d" % (T + u, M[u]))
        for u in range(4): a("v_permlane16_swap_b32 v%d, v%d" % (M[u], T + u))
        for u in range(4): a("v_max_f32 v%d, v%d, v%d" % (M[u], M[u], T + u))
        for u in range(4): a("v_mov_b32 v%d, v%d" % (T + u, M[u]))
        for u in range(4): a("v_permlane32_swap_b32 v%d, v%d" % (M[u], T + u))
        for u in range(4): a("v_max_f32 v%d, v%d, v%d" % (M[u], M[u], T + u))
        for u in range(4):
            for k in range(4): a("v_sub_f32 v%d, 0, v%d" % (V_NEGM + 4 * u + k, M[u]))

    def premax(self):
        a = self; T = V_T
        for s in range(4): a("v_and_b32 v%d, 0xffffdfff, v%d" % (T + 4 + s, V_AKX + s))
        for s in range(4): a("ds_read_b128 %s, v%d offset:%d" % (ar(A_XF + 4 * s), T + 4 + s, KSL(0) - K_WIN))
        for u in range(4):
            for s in range(4):
                D = V_SY + 4 * u
                a("%s %s, %s, %s, %s" % (MF, vr(D), ar(A_XF + 4 * s), ar(A_Q + 16 * u + 4 * s), "0" if s == 0 else vr(D)))
        for u in range(4):
            D = V_SY + 4 * u
            a("v_max3_f32 v%d, v%d, v%d, v%d" % (D, D, D + 1, D + 2))
        for u in range(4):
            D = V_SY + 4 * u
            a("v_max_f32 v%d, v%d, v%d" % (D, D, D + 3))
        self.rowmax_finish([V_SY + 4 * u for u in range(4)])

    def attention(self):
        c = self.c
        G = Gaps(); ring = Ring(); L = []; D = []; X = []; C = []
        LEAD = c.get("leadB", 10); BOFF = c.get("boffB", 13); BUB = c.get("bubB", 5); SLAT = 5
        pend = {}
        segs = [("QK", "X", 0), ("QK", "Y", 0)]
        for i in range(8):
            segs += [("PV", "X", i)] + ([("QK", "X", i + 1)] if i < 7 else []) + [("PV", "Y", i)] + ([("QK", "Y", i + 1)] if i < 7 else [])
        pos = {}; p = 0
        for sg in segs:
            pos[sg] = p; nu = 4 if sg[1] == "X" else 3
            p += 8 * nu + (nu if sg[0] == "PV" else 0)
        bar = {i: pos[("PV", "X", i)] - BOFF for i in range(8)}; bar[-1] = -1; bar[8] = 10 ** 6
        sm = []
        for op, un, i in segs:
            nu = 4 if un == "X" else 3; S = V_SX if un == "X" else V_SY
            if op == "QK":
                st = i - 1; ad = V_AKX if un == "X" else V_AKY
                pv0 = pos[("PV", un, i)]
                for kt in range(2):
                    m0 = G.n(); fr = []
                    for s in range(4):
                        reg, lo = ring.alloc(m0 + 4 * (nu - 1) + s); fr.append(reg)
                        L.append(Op(I("ds_read_b128 %s, v%d offset:%d" % (ar(reg), ad + s, KSL(i) - K_WIN + kt * 4096)),
                                    max(lo, bar[st]), min(m0 + s - LEAD, bar[st + 1] - BUB), hard=min(m0 + s - 1, bar[st + 1] - 2)))
                    for u in range(nu):
                        Dd = S + 8 * u + 4 * kt
                        for s in range(4):
                            m = G.mfma("%s %s, %s, %s, %s" % (MF, vr(Dd), ar(fr[s]), ar(A_Q + 16 * u + 4 * s), vr(V_NEGM + 4 * u) if s == 0 else vr(Dd)))
                        dl = pv0 + u - 2
                        ex = [Op(I("v_exp_f32 v%d, v%d" % (Dd + k, Dd + k)), m + SLAT, dl - 1) for k in range(4)]
                        cv = [Op(I("v_cvt_pk_bf16_f32 v%d, v%d, v%d" % (S + 8 * u + 2 * kt + k, Dd + 2 * k, Dd + 2 * k + 1)), m + SLAT, dl, dep=ex[2 * k:2 * k + 2]) for k in range(2)]
                        X += ex; C += cv
            else:
                ad = V_AVX if un == "X" else V_AVY
                first = (un == "X" and i == 0)
                for j in range(8):
                    m0 = G.n()
                    reg, lo = ring.alloc(m0 + nu - 1)
                    for t in range(2):
                        L.append(Op(I("ds_read_b64_tr_b16 %s, v%d offset:%d" % (ar(reg + 2 * t, 2), ad + j, VSL(i) - V_WIN + t * 4096)),
                                    max(lo, bar[i]), min(m0 - LEAD, bar[i + 1] - BUB), hard=min(m0 - 1, bar[i + 1] - 2)))
                    for u in range(nu):
                        O = V_O + (u * 8 + j) * 4
                        G.mfma("%s %s, %s, %s, %s" % (MF, vr(O), ar(reg), vr(S + 8 * u), "0" if first else vr(O)))
                    if j == 0:
                        for u in range(nu):
                            G.mfma("%s %s, %s, %s, %s" % (MF, ar(A_L + 4 * u), ar(A_ONE), vr(S + 8 * u), "0" if first else ar(A_L + 4 * u)))
        n = G.n()
        T = V_T
        for i in range(-1, 8):
            lo = max(bar[i], 0); hi = min(bar[i + 1] - 2, n - 1 - c.get("dtail", 8)); lst = c["kvB"].get(i, [])
            if i == c.get("wotouch", 1):
                D.append(Op(I("buffer_load_dword v7, v3, %s, 0 offen" % sr(SRD_WO), "wot"), lo + 1, lo + 3, hard=hi))
            if i == 6:
                D.append(Op(I("buffer_load_dword v%d, v%d, %s, s%d offen sc1" % (T + 8, T + 9, sr(SRD_DBG), S_T3), "hl"), lo + 1, lo + 3, hard=hi, pre=[I("s_lshl_b32 s%d, s%d, 5" % (S_T3, S_B))]))
            for k, (kind, ix) in enumerate(lst):
                h0 = lo + (hi - lo) * (k + 1) // len(lst)
                D += tile_dma(kind, ix, KSL(ix) if kind == "K" else VSL(ix) if kind == "V" else WOSL[ix], lo + 1, h0, c.get("nt", True))
        for i in range(8): G.pre[bar[i] - 1] += [W(vm=["V%d" % i, "K%d" % (i + 1)], lgkm0=True)]; G.pre[bar[i]] += [I("s_barrier")]
        px = pos[("PV", "X", 7)]; py = pos[("PV", "Y", 7)]
        G.head += [I("s_lshl_b32 s%d, s3, 2" % S_T0), I("s_add_u32 s%d, s%d, 0x%x" % (S_T0, S_T0, LSCR)), I("v_add_u32 v%d, s%d, v%d" % (T + 5, S_T0, V_L16)),
                   I("v_xor_b32 v%d, 4, v%d" % (T + 6, T + 5)), I("v_xor_b32 v%d, 0x1000, v%d" % (T + 7, V_SCR)), I("v_add_u32 v1, 0x%x, v%d" % (LSCR, V_L16)),
                   I("v_and_b32 v%d, 7, v0" % (T + 9)), I("v_lshlrev_b32 v%d, 2, v%d" % (T + 9, T + 9))]
        sh = 15 if c.get("map") == 1 else 14
        G.head += [I("s_and_b32 s%d, s%d, %d" % (S_T0, S_B, 3 if sh == 15 else 7)), I("s_lshl_b32 s%d, s%d, %d" % (S_T0, S_T0, sh)), I("s_lshl_b32 s%d, s3, %d" % (S_T1, sh - 2)), I("s_add_u32 s%d, s%d, s%d" % (S_T0, S_T0, S_T1)),
                   I("s_lshl_b32 s%d, s%d, 17" % (S_T1, S_H)), I("s_add_u32 s%d, s%d, s%d" % (S_T0, S_T0, S_T1)), I("v_lshl_add_u32 v3, v0, %d, s%d" % (sh - 8, S_T0))]
        rl3 = Op(I("v_accvgpr_read_b32 v%d, a%d" % (T + 3, A_L + 12)), py - 1, n - 1); C.append(rl3)
        rl = [Op(I("v_accvgpr_read_b32 v%d, a%d" % (T + u, A_L + 4 * u)), py + 3 + u + SLAT, n - 1) for u in range(3)]; C += rl
        m1 = Op(I("v_max3_f32 v%d, v%d, v%d, v%d" % (T + 4, T, T + 1, T + 2)), py, n - 1); m2 = Op(I("v_max_f32 v%d, v%d, v%d" % (T + 4, T + 4, T + 3)), py, n - 1); C += [m1, m2]
        X += [Op(I("v_rcp_f32 v%d, v%d" % (2 + 2 * u, T + u)), py, n - 1, dep=[rl[u]]) for u in range(3)]
        for k, j in enumerate((2, 3, 6, 7)):
            L.append(Op(I("ds_write_b128 v%d, %s offset:%d" % (V_SCR, vr(V_O + (24 + j) * 4), OSCR - SL(2) + k * 1024)), px + 4 + 4 * j + 3 + SLAT, n - 1))
        L.append(Op(I("ds_write_b32 v%d, v%d" % (T + 5, T + 3)), py, n - 1, dep=[rl3]))
        L.append(Op(I("ds_write_b32 v%d, v%d offset:1024" % (T + 5, T + 4)), py, n - 1, dep=[m2]))
        schedule(G, L, D, X, C, "attention"); self.gstamps(G, "b")
        self.add(G.flatten())

    def ofrag(self, u, s): return V_SX + 4 * (4 * u + s if u < 3 else 12 + s // 2)
    def ostore(self, u, s):
        f = 4 * u + s if u < 3 else 12 + s // 2
        return I("buffer_store_dwordx4 %s, v%d, %s, s%d offen offset:%d sc1" % (vr(V_SX + 4 * f), V_L16, sr(SRD_WS), S_OS + u, (f % 4) * 1024), "ost%d" % (s // 2))
    def transBC(self):
        a = self; T = V_T; c = self.c
        self.tail = []
        a.add([W(vm=["WO(0, 0)", "WO(0, 1)"], lgkm0=True), I("s_barrier")])
        a.stamp("M")
        a("ds_read_b128 %s, v1 offset:1024" % vr(V_NEGM))
        a("ds_read_b32 v%d, v%d" % (T + 4, T + 6))
        for k, j in enumerate((2, 3, 6, 7)): a("ds_read_b128 %s, v%d offset:%d" % (vr(V_O + (24 + j) * 4), T + 7, OSCR - SL(2) + k * 1024))
        def norm(u, s, rl):
            O = V_O + (u * 8 + 2 * s) * 4; F = self.ofrag(u, s)
            for k in range(4): a("v_pk_mul_f32 %s, %s, %s op_sel_hi:[1,0]" % (vr(O + 2 * k, 2), vr(O + 2 * k, 2), vr(rl, 2)))
            for k in range(4): a("v_cvt_pk_bf16_f32 v%d, v%d, v%d" % (F + k, O + 2 * k, O + 2 * k + 1))
        for s in range(2):
            for u in range(3): norm(u, s, 2 + 2 * u); a.add([self.ostore(u, s)])
        a("v_max3_f32 v%d, v%d, v%d, v%d" % (V_NEGM, V_NEGM, V_NEGM + 1, V_NEGM + 2)); a("v_max_f32 v%d, v%d, v%d" % (V_NEGM, V_NEGM, V_NEGM + 3))
        a("v_add_f32 v%d, v%d, v%d" % (T + 3, T + 3, T + 4))
        a("v_cmp_lt_f32 vcc, s%d, v%d" % (S_RETRY, V_NEGM))
        a("v_rcp_f32 v%d, v%d" % (T, T + 3))
        a("s_cbranch_vccnz L_fallback")
        for j in ACT:
            O = V_O + (24 + j) * 4
            for k in range(2): a("v_pk_add_f32 %s, %s, %s" % (vr(O + 2 * k, 2), vr(O + 2 * k, 2), vr(O + 8 + 2 * k, 2)))
        a("s_barrier")
        norm(3, 0, T); a.add([self.ostore(3, 0)])
        a("s_lshl_b32 s%d, s%d, 1" % (S_T0, S_E)); a("s_xor_b32 s%d, s%d, s%d" % (S_T0, S_T0, S_HG)); a("s_lshl_b32 s%d, s%d, 5" % (S_T0, S_T0))
        a("s_or_b32 s%d, s%d, 0x%x" % (S_T0, S_T0, V_WIN))
        for k in range(16): a("v_xor_b32 v%d, s%d, v%d" % (V_AVX + k, S_T0, V_AVX + k))
        self.normB = lambda: [norm(u, s, T if u == 3 else 2 + 2 * u) for s in (2, 3) for u in range(4) if not (u == 3 and s & 1)]

    def spin(self, name, load):
        for s in ["L_%s_spin:" % name, "s_add_u32 s%d, s%d, 1" % (S_SPIN, S_SPIN), "s_cmp_ge_u32 s%d, 0x%x" % (S_SPIN, SPIN_MAX), "s_cbranch_scc1 L_%s_ok" % name,
                  "s_sleep 1", load, "s_waitcnt vmcnt(0)", "s_branch L_%s" % name]: self.tail.append(I(s))

    def phaseC(self):
        a = self; c = self.c; T = V_T
        LEAD = c.get("leadC", 10)
        acc = lambda u, j: V_O + (j * 4 + u) * 4
        fidx = lambda u, s: 4 * u + s if u < 3 else 12 + s // 2
        def bfrag(hh, u, s):
            return vr(V_SX + 4 * fidx(u, s)) if hh == 0 else ar(56 * (hh - 1) + 4 * fidx(u, s))
        JO = [1, 2, 3, 4, 5, 6, 7, 0]
        started = set(); done = {}; firstuse = {}
        def build(groups):
            G = Gaps(); ring = Ring(); L = []
            for grp in groups:
                m0 = G.n(); fr = []
                seq = [(u, k) for u in range(4) for k, (hh, j, s) in enumerate(grp) if not (u == 3 and s & 1)]
                for k, (hh, j, s) in enumerate(grp):
                    us = [i for i, (u, kk) in enumerate(seq) if kk == k]
                    reg, lo = ring.alloc(m0 + us[-1]); fr.append(reg)
                    slot = WOSL[(hh, s >> 1)]
                    ad = (V_AVX if hh < 2 else V_NEGM) + (8 if s & 1 else 0) + j
                    off = slot - (0 if hh < 2 else SL(6))
                    for t in range(2):
                        L.append(Op(I("ds_read_b64_tr_b16 %s, v%d offset:%d" % (ar(reg + 2 * t, 2), ad, off + t * 4096)), lo, m0 + us[0] - LEAD, hard=m0 + us[0] - 1))
                for u, k in seq:
                    hh, j, s = grp[k]; A = acc(u, j)
                    m = G.mfma("%s %s, %s, %s, %s" % (MF, vr(A), ar(fr[k]), bfrag(hh, u, s), vr(A) if (u, j) in started else "0"))
                    started.add((u, j)); done[(u, j)] = m; firstuse.setdefault((hh, u, s), m)
            return G, L
        G, L = build([[(0, j, s) for s in range(4)] for j in JO]); D = []; C = []
        sp = c.get("bspace", 12); k = 0; fa = c.get("flagAat", 4)
        for s in (2, 3):
            for u in range(4):
                if u == 3 and s & 1: continue
                if k == fa: D.append(Op(I("buffer_store_dword v7, v%d, %s, 0 offen sc1" % (V_POLL, sr(SRD_WS)), "flag"), sp * k - 2, sp * k - 1, hard=G.n() - 1, pre=[W(vm="ost0")]))
                D.append(Op(self.ostore(u, s), sp * k, sp * k + 1, hard=G.n() - 1)); k += 1
        D += tile_dma("WO", (3, 1), WOSL[(3, 1)], sp * k, min(sp * k + 8, G.n() - 1))
        for k in range(16): C.append(Op(I("v_add_u32 v%d, 0x%x, v%d" % (V_NEGM + k, SL(6), V_AVX + k)), 0, G.n() - 1))
        for u in range(4): C.append(Op(I("v_add_u32 v%d, %d, v%d" % (V_OK + u, 4096 * u, V_L16)), 0, G.n() - 1))
        F = S_WOB
        for t in ["v_mov_b32 v5, 2", "v_and_b32 v3, 3, v0", "v_max_u32 v3, 1, v3", "v_lshlrev_b32 v3, 2, v3",
                  "v_lshlrev_b32 v2, 11, v0", "v_xor_b32 v2, s%d, v2" % S_T3, "v_lshl_add_u32 v%d, v0, 2, v2" % V_OV,
                  "v_and_b32 v4, 15, v0", "v_lshlrev_b32 v4, 10, v4", "v_lshrrev_b32 v2, 4, v0", "v_lshl_add_u32 v%d, v2, 3, v4" % (V_OV + 1), "v_xor_b32 v1, 0x1000, v%d" % V_SCR]:
            C.append(Op(I(t), 0, G.n() - 1))
        schedule(G, L, D, [], C, "P0"); self.gstamps(G, "p")
        sal = []
        for hh in (1, 2, 3):
            sal += ["s_xor_b32 s%d, s%d, %d" % (S_T0, S_CQ, hh), "s_mul_i32 s%d, s%d, 14336" % (S_T0, S_T0), "s_add_u32 s%d, s%d, s%d" % (S_XB + hh - 1, S_T0, S_OB)]
        sal += ["s_mul_i32 s%d, s%d, 57344" % (S_LX, S_HG), "s_add_u32 s%d, s%d, s%d" % (S_LX, S_LX, S_PB),
                "s_mul_i32 s%d, s%d, 224" % (S_T0, S_B), "s_lshr_b32 s%d, s3, 1" % S_T1, "s_mul_i32 s%d, s%d, 112" % (S_T1, S_T1), "s_add_u32 s%d, s%d, s%d" % (S_T0, S_T0, S_T1),
                "s_lshl_b32 s%d, s%d, 10" % (S_T0, S_T0), "s_lshl_b32 s%d, s%d, 8" % (S_T1, S_CQ), "s_add_u32 s%d, s%d, s%d" % (S_T0, S_T0, S_T1),
                "s_lshl_b32 s%d, s%d, 5" % (S_T1, S_HG), "s_add_u32 s%d, s%d, s%d" % (S_T0, S_T0, S_T1),
                "s_lshl_b32 s%d, s%d, 16" % (S_T1, S_E), "s_add_u32 s%d, s%d, s%d" % (S_T1, S_T1, S_T0), "s_add_u32 s%d, s%d, %d" % (S_T2, S_T0, 48 * 1024)]
        g = 1
        for t in sal:
            while G.pre[g] or any(x.kind == "vm" for x in G.mem[g]): g += 1
            G.pre[g].append(I(t)); g += 2
        spA = "s_buffer_load_dwordx4 s[84:87], %s, s%d glc" % (sr(SRD_WS), S_FL)
        G.pre[G.n() - c.get("spoffA", 6)] += [W(lgkm0=True), I(spA)]
        a.add(G.head); G.head = []
        self.normB()
        a("v_mov_b32 v7, 1")
        hz = ["v_subrev_u32 v2, 0x01010101, v%d" % (T + 8), "v_not_b32 v3, v%d" % (T + 8), "v_and_b32 v2, v2, v3", "v_and_b32 v2, 0x80808080, v2", "v_cmp_ne_u32 vcc, 0, v2", "s_cbranch_vccnz L_hello_spin"]
        for t in hz: a(t)
        a("L_hello_ok:")
        a("s_add_u32 s%d, s%d, 0x%x" % (S_T3, S_FL, FL2))
        for t in ["L_hello_spin:", "s_add_u32 s%d, s%d, 1" % (S_SPIN, S_SPIN), "s_cmp_ge_u32 s%d, 0x%x" % (S_SPIN, SPIN_MAX), "s_cbranch_scc1 L_hello_ok", "s_sleep 4",
                  "buffer_load_dword v%d, v%d, %s, s%d offen sc1" % (T + 8, T + 9, sr(SRD_DBG), S_T3), "s_waitcnt vmcnt(0)"] + hz + ["s_branch L_hello_ok"]: self.tail.append(I(t))
        a.stamp("C0")
        a.add(G.flatten())
        a.stamp("P1")
        flB = "buffer_store_dword v5, v%d, %s, 0 offen sc1" % (V_POLL, sr(SRD_WS))
        a("L_poll:"); a("s_waitcnt lgkmcnt(0)"); a("s_min_u32 s84, s85, s86"); a("s_min_u32 s84, s84, s87"); a("s_cmp_eq_u32 s84, 0"); a("s_cbranch_scc1 L_poll_spin"); a("L_poll_ok:")
        for t in ["L_poll_spin:", "s_add_u32 s%d, s%d, 1" % (S_SPIN, S_SPIN), "s_cmp_ge_u32 s%d, 0x%x" % (S_SPIN, SPIN_MAX), "s_cbranch_scc1 L_poll_ok", spA, "s_branch L_poll"]: self.tail.append(I(t))
        a.stamp("P2")
        pl = "buffer_load_dword v%d, v3, %s, s%d offen sc1" % (T + 8, sr(SRD_WS), S_FL)
        s0 = c.get("s0", [1, 2, 3, 4, 5, 6, 7]); s1 = c.get("s1", [1, 2, 3, 4, 5]); s2 = c.get("s2", [])
        groups = [[(hh, j, 0)] for hh in (1, 2, 3) for j in s0]
        groups += [[(hh, j, 1) for hh in (1, 2, 3)] for j in s1]
        groups += [[(hh, j, 2) for hh in (1, 2, 3)] for j in s2]
        for j in JO:
            for s, early in enumerate((s0, s1, s2, [])):
                if j not in early: groups.append([(hh, j, s) for hh in (1, 2, 3)])
        G, L = build(groups); D = []; X = []; C = []
        n = G.n()
        lds = []
        for s in range(4):
            for hh in (1, 2, 3):
                for u in range(4):
                    if u == 3 and s & 1: continue
                    f = fidx(u, s)
                    lds.append((I("buffer_load_dwordx4 %s, v%d, %s, s%d offen offset:%d sc1" % (ar(56 * (hh - 1) + 4 * f), V_OK + u, sr(SRD_WS), S_XB + hh - 1, (f % 4) * 1024), "of"), firstuse[(hh, u, s)]))
        n0 = c.get("n0", 12); n1 = c.get("n1c", 17); sp = c.get("ospace", 3); gP = c.get("gP", 20); gB = c.get("gB", 44)
        a.add([x[0] for x in lds[:n0]])
        a("v_bfrev_b32 v6, 1"); self.pubsetup = len(self.ins)
        a.add([W(vm=["ost1", "WO(3, 1)"])]); a(flB, "flag")
        a("s_barrier")
        a.stamp("P3")
        for k in range(n0, n1): D.append(Op(lds[k][0], sp * (k - n0), sp * (k - n0), hard=min(gP - 1, lds[k][1] - 1)))
        D.append(Op(I(pl, "poll"), gP, gP, hard=gB - 2))
        for k in range(n1, 21): D.append(Op(lds[k][0], gP + 1 + sp * (k - n1), gP + 1 + sp * (k - n1), hard=min(gB - 1, lds[k][1] - 1)))
        G.val[gB] += [I("L_pollb:"), I("v_cmp_ne_u32 vcc, 2, v%d" % (T + 8)), I("s_cbranch_vccnz L_pollb_spin"), I("L_pollb_ok:")]
        self.spin("pollb", pl)
        for k in range(21, 42): D.append(Op(lds[k][0], gB + 1 + sp * (k - 21), gB + 1 + sp * (k - 21), hard=lds[k][1] - 1))
        def pub(lo, hi):
            m = sum(1 << k for k in range(lo, hi + 1))
            return [I("s_mov_b64 exec, 0x%x" % m), I("buffer_store_dword v7, v%d, %s, 0 offen sc1" % (V_OV, sr(SRD_WS)), "flag2"), I("s_mov_b64 exec, -1")]
        sp2 = "s_buffer_load_dwordx8 s[88:95], %s, s%d glc" % (sr(SRD_WS), S_T3)
        pubs = c.get("pubs", {5: 2, 6: 3, 7: 4, 8: 5})
        pubgap = {}
        for idx, j in enumerate(range(1, 8)):
            B = (V_AKX if idx & 1 else V_T)
            last = max(done[(u, j)] for u in range(4))
            prev = max(done[(u, j - 2)] for u in range(4)) + 13 if j > 2 else 0
            cv = {}
            for u in (3, 0, 1, 2):
                for k in range(2):
                    cv[(u, k)] = Op(I("v_cvt_pk_bf16_f32 v%d, v%d, v%d" % (B + 2 * u + k, acc(u, j) + 2 * k, acc(u, j) + 2 * k + 1)), max(done[(u, j)] + 5, prev), min(last + 9, n - 3))
                    C.append(cv[(u, k)])
            st = [I("buffer_store_dwordx4 %s, v%d, %s, s%d offen offset:%d sc1" % (vr(B + 4 * hf), V_L16, sr(SRD_WS), S_SO, hf * 1024), "pst%d" % j) for hf in range(2)]
            pre = [I("s_xor_b32 s%d, s%d, %d" % (S_SO, S_HG, j)), I("s_mul_i32 s%d, s%d, 57344" % (S_SO, S_SO)), I("s_add_u32 s%d, s%d, s%d" % (S_SO, S_SO, S_PB)), I("s_add_u32 s%d, s%d, %d" % (S_SO, S_SO, j * 8192))]
            if j in pubs: pubgap[j] = done[(1, j)] + 3
            D.append(Op(st[0], min(done[(1, j)] + 6, n - 2), last + 5, hard=min(last + 10, n - 2), pre=pre, dep=[cv[(u, k)] for u in (0, 1) for k in range(2)]))
            D.append(Op(st[1], min(last + 6, n - 1), last + 7, hard=min(last + 11, n - 1), dep=[cv[(u, k)] for u in (2, 3) for k in range(2)]))
        if 8 in pubs: pubgap[8] = n - c.get("puboff", 12)
        npub = 0
        for j in sorted(pubs):
            r = V_OO + sorted(pubs).index(j)
            self.ins[self.pubsetup:self.pubsetup] = [I("s_mov_b64 vcc, 0x%x" % sum(1 << k for k in range(npub + 1, pubs[j] + 1))), I("v_cndmask_b32 v%d, v6, v%d, vcc" % (r, V_OV))]
            G.pre[pubgap[j] - 1] += [W(vm="pst%d" % pubs[j])]
            G.mem[pubgap[j]].append(I("buffer_store_dword v7, v%d, %s, 0 offen sc1" % (r, sr(SRD_WS)), "flag2")); G.pre[pubgap[j]].append(I("L_pub%d:" % j)); npub = pubs[j]
        schedule(G, L, D, X, C, "phaseC"); self.gstamps(G, "c")
        G.pre[n - c.get("spoffP", 6)] += [W(lgkm0=True), I(sp2)]
        self.add(G.flatten())
        a.stamp("C1"); a.stamp("spin0")
        def red(j):
            for d in range(8):
                x = acc(0, j) + d; t = acc(2, j) + 2 * (d & 3)
                a("v_lshlrev_b32 v%d, 16, v%d" % (t, x)); a("v_and_b32 v%d, 0xffff0000, v%d" % (t + 1, x))
                a("v_pk_add_f32 %s, %s, %s" % (vr(V_O + 2 * d, 2), vr(V_O + 2 * d, 2), vr(t, 2)))
        NE = c.get("nearly", 3); NB = c.get("nblock", 5)
        a("s_waitcnt lgkmcnt(0)")
        def ldin(j, hidden=False):
            a("s_add_u32 s%d, s%d, %d" % (S_SO, S_LX, j * 8192))
            for hf in range(2):
                a("buffer_load_dwordx4 %s, v%d, %s, s%d offen offset:%d sc1" % (vr(acc(hf, j)), V_L16, sr(SRD_WS), S_SO, hf * 1024), "in%d" % j)
                if hidden: self.ins[-1].kind = "opaque"
        def block(j):
            a("s_cmp_eq_u32 s%d, 0" % (88 + j)); a("s_cbranch_scc1 L_f%d_%s" % (j, "pub" if j <= NE else "spin")); a("L_f%d_ok:" % j)
            t = []
            if j <= NE: t += ["L_f%d_pub:" % j, "s_waitcnt vmcnt(0)"] + [x.t for x in pub(npub + 1, 7)]
            t += ["L_f%d_spin:" % j, "s_add_u32 s%d, s%d, 1" % (S_SPIN, S_SPIN), "s_cmp_ge_u32 s%d, 0x%x" % (S_SPIN, SPIN_MAX), "s_cbranch_scc1 L_f%d_ok" % j,
                  sp2, "s_waitcnt lgkmcnt(0)", "s_cmp_eq_u32 s%d, 0" % (88 + j), "s_cbranch_scc1 L_f%d_spin" % j, "s_branch L_f%d_ok" % j]
            for x in t: self.tail.append(I(x))
        for j in range(1, NB + 1):
            block(j); ldin(j)
            if j == NE:
                a.stamp("T0"); a.stamp("spin1")
                for k in range(npub + 1, 8):
                    if k == 7: a(sp2)
                    a.add([W(vm="pst%d" % k)] + pub(k, k))
                a("s_waitcnt lgkmcnt(0)")
                a.stamp("T1"); a.stamp("spin2")
        a("s_mov_b32 s%d, %d" % (S_T0, NB + 1))
        ntry = [0]
        def tryall():
            ntry[0] += 1
            a("s_waitcnt lgkmcnt(0)")
            for j in range(NB + 1, 8):
                lab = "L_try%d_%d" % (ntry[0], j)
                a("s_cmp_lg_u32 s%d, %d" % (S_T0, j)); a("s_cbranch_scc1 %s" % lab); a("s_cmp_eq_u32 s%d, 0" % (88 + j)); a("s_cbranch_scc1 %s" % lab)
                ldin(j, True); a("s_add_u32 s%d, s%d, 1" % (S_T0, S_T0)); a("%s:" % lab)
        tryall()
        for j in range(1, NB + 1):
            if j in c.get("tryat", (1, 3)): a(sp2)
            red(j)
            if j in c.get("tryat", (1, 3)): tryall()
        a.stamp("T2"); a.stamp("spin3")
        for j in range(NB + 1, 8):
            a("s_cmp_gt_u32 s%d, %d" % (S_T0, j)); a("s_cbranch_scc1 L_have%d" % j)
            block(j); ldin(j, True); a("L_have%d:" % j)
        for j in range(NB + 1, 8):
            a("s_waitcnt vmcnt(%d)" % (2 * (7 - j))); red(j)
        a.stamp("T3")
        a("ds_write_b128 v%d, %s offset:%d" % (V_SCR, vr(acc(3, 0)), OSCR - SL(2)))
        osc = c.get("outsc", "")
        for u in range(3):
            for k in range(2): a("v_cvt_pk_bf16_f32 v%d, v%d, v%d" % (T + 2 * u + k, acc(u, 0) + 2 * k, acc(u, 0) + 2 * k + 1))
        a.add([W(lgkm0=True), I("s_barrier")])
        a("ds_read_b128 %s, v%d offset:%d" % (vr(4), 1, OSCR - SL(2)))
        for u in range(3):
            a("buffer_store_dwordx2 %s, v%d, %s, s%d offen%s" % (vr(T + 2 * u, 2), V_OV + 1, sr(SRD_OUT), S_T1, osc))
            if u < 2: a("s_add_u32 s%d, s%d, 16384" % (S_T1, S_T1))
        a("s_cmp_eq_u32 s%d, 1" % S_E); a("s_cbranch_scc1 L_fin")
        for k in range(2): a("v_pk_add_f32 %s, %s, %s" % (vr(4 + 2 * k, 2), vr(4 + 2 * k, 2), vr(acc(3, 0) + 2 * k, 2)))
        for k in range(2): a("v_cvt_pk_bf16_f32 v%d, v%d, v%d" % (2 + k, 4 + 2 * k, 5 + 2 * k))
        a("buffer_store_dwordx2 %s, v%d, %s, s%d offen%s" % (vr(2, 2), V_OV + 1, sr(SRD_OUT), S_T2, osc))
        a("L_fin:")

    def fallback(self):
        t = lambda s: self.tail.append(I(s)); T = V_T
        t("L_fallback:")
        t("s_waitcnt vmcnt(0) lgkmcnt(0)"); t("s_barrier")
        t("s_mov_b32 s%d, 0x7f800000" % S_RETRY); t("s_mov_b32 s%d, 0" % S_KC)
        M = [V_NEGM + 4 * u for u in range(4)]
        for u in range(4): t("v_mov_b32 v%d, 0xff800000" % M[u])
        t("L_fb_loop:")
        t("s_add_u32 m0, s%d, 0x%x" % (S_L4, KSL(0))); t("s_add_u32 s%d, s%d, s%d" % (S_SO, S_KVB, S_KC))
        for j in range(4): t("buffer_load_dwordx4 v%d, %s, s%d offen offset:%d lds" % (V_OK + j, sr(SRD_K), S_SO, j * 1024))
        t("s_waitcnt vmcnt(0)"); t("s_barrier")
        for ad in (V_AKX, V_AKY):
            for kt in range(2):
                for s in range(4): t("ds_read_b128 %s, v%d offset:%d" % (ar(A_XF + 4 * s), ad + s, KSL(0) - K_WIN + kt * 4096))
                t("s_waitcnt lgkmcnt(0)")
                for u in range(4):
                    for s in range(4):
                        Dd = V_SY + 4 * u
                        t("%s %s, %s, %s, %s" % (MF, vr(Dd), ar(A_XF + 4 * s), ar(A_Q + 16 * u + 4 * s), "0" if s == 0 else vr(Dd)))
                t("s_nop 7")
                for u in range(4):
                    Dd = V_SY + 4 * u
                    t("v_max3_f32 v%d, v%d, v%d, v%d" % (M[u], M[u], Dd, Dd + 1)); t("v_max3_f32 v%d, v%d, v%d, v%d" % (M[u], M[u], Dd + 2, Dd + 3))
                t("s_nop 1")
        t("s_barrier")
        t("s_add_u32 s%d, s%d, 0x4000" % (S_KC, S_KC)); t("s_cmp_lt_u32 s%d, 0x20000" % S_KC); t("s_cbranch_scc1 L_fb_loop")
        for u in range(4): t("v_mov_b32 v%d, v%d" % (V_SY + u, M[u]))
        save = self.ins; self.ins = self.tail
        self.rowmax_finish([V_SY + u for u in range(4)])
        for ch in sorted(self.c["kvA"]):
            for kind, i in self.c["kvA"][ch]: self.add(flat(tile_dma(kind, i, KSL(i) if kind == "K" else VSL(i), 0, 0)))
        self.ins = save
        t("s_waitcnt vmcnt(0)"); t("s_barrier"); t("s_branch L_attn")

    def build(self):
        a = self
        self.prologue(); self.phaseA(); self.stamp("A1"); self.transAB(); self.stamp("Q")
        a("v_add_u32 v%d, 0x%x, v%d" % (V_SCR, SL(2), V_SCR))
        self.premax(); self.stamp("B0")
        a("s_waitcnt lgkmcnt(0)")
        a("L_attn:")
        self.attention(); self.stamp("B1"); self.transBC(); self.phaseC()
        self.fallback()
        ex = self.c.get("exp", "")
        if ex:
            seen = 0; keep = []
            for i in self.ins:
                if i.kind == "mfma": seen += 1
                if 0 < seen < 448 + 16 + 952:
                    if "d" in ex and i.kind == "vm" and i.lds: continue
                    if "b" in ex and i.op == "s_barrier": continue
                    if "v" in ex and i.kind == "pseudo": i.need = (None, i.need[1])
                    if "l" in ex and i.kind == "pseudo": i.need = (i.need[0], False)
                    if "x" in ex and i.op == "v_exp_f32": continue
                if "v" in ex and i.kind == "vm" and i.lds and seen: keep.append(I("s_waitcnt vmcnt(40)"))
                if i.op == "s_cbranch_vccnz" and "fallback" in i.t: continue
                keep.append(i)
            self.ins = keep
        main = insert_waits(self.ins, AGE=self.c.get("age", 8), MINAGE=self.c.get("minage", 6))
        main, n1 = fix_hazards(main, self.c.get("verbose"))
        tail, n2 = fix_hazards(self.tail)
        verify_waits(main)
        est = estimate(main); cuts = [0, 447, 448 + 16, 448 + 16 + 951, 448 + 16 + 952, 448 + 16 + 952 + 111, 448 + 16 + 952 + 112, len(est)]
        sys.stderr.write("issue estimate A %d  B %d  P0 %d  C %d; waits %d\n" % (sum(est[cuts[0]:cuts[1]]), sum(est[cuts[2]:cuts[3]]), sum(est[cuts[4]:cuts[5]]), sum(est[cuts[6]:cuts[7]]), sum(1 for i in main if i.op == "s_waitcnt")))
        sys.stderr.write("hazard pads %d, instructions %d\n" % (n1, len(main) + len(tail)))
        A = Asm()
        for i in main:
            if i.kind == "label": A.raw(i.t)
            else: A(i.t)
        if self.c.get("stamps"):
            A("s_waitcnt vmcnt(0)")
            n = 2 + len(self.c["stamps"].split(","))
            for i in self.stamp_at(n - 1): A(i.t)
            A("s_lshl2_add_u32 s%d, s2, s3" % S_T0); A("s_mul_i32 s%d, s%d, %d" % (S_T0, S_T0, 16 * n)); A("s_add_u32 s%d, s%d, 0x%x" % (S_T0, S_T0, STAMP_OFF))
            A("s_mov_b64 exec, 1"); A("v_mov_b32 v4, s%d" % S_T0); A("v_mov_b32 v3, 0")
            for k in range(n):
                for h in range(2):
                    A("v_mov_b32 v2, s%d" % (STAMP0 + 2 * k + h)); A("global_store_dwordx2 v4, v[2:3], s[18:19] offset:%d" % (8 * (k + h * n))); A("s_nop 1")
            sys.stderr.write("stamps: %d\n" % (2 * n))
        A.label("L_end"); A("s_endpgm")
        for i in tail:
            if i.kind == "label": A.raw(i.t)
            else: A(i.t)
        A.label("L_codeend")
        return A.text()

def reduce_kernel():
    a = Asm()
    a("s_cmp_ge_u32 s2, 256"); a("s_cbranch_scc1 R_end")
    a("s_load_dwordx2 s[4:5], s[0:1], 40"); a("s_load_dwordx2 s[6:7], s[0:1], 56")
    a("v_lshrrev_b32 v1, 6, v0"); a("v_and_b32 v0, 63, v0"); a("v_readfirstlane_b32 s3, v1"); a("v_lshlrev_b32 v2, 4, v0")
    a("s_waitcnt lgkmcnt(0)")
    a("s_mov_b32 s8, s4"); a("s_and_b32 s9, s5, 0xffff"); a("s_mov_b32 s10, %d" % (8 * 224 * 512 * 2)); a("s_mov_b32 s11, 0x20000")
    a("s_mov_b32 s12, s6"); a("s_and_b32 s13, s7, 0xffff"); a("s_mov_b32 s14, 0x%x" % WS_BYTES); a("s_mov_b32 s15, 0x20000")
    a("s_lshl_b32 s16, s2, 16"); a("s_lshl_b32 s17, s3, 11"); a("s_add_u32 s16, s16, s17"); a("s_add_u32 s16, s16, 0x%x" % PB_OFF)
    for hg in range(8):
        a("s_add_u32 s17, s16, %d" % (hg * 8192)); a("s_xor_b32 s18, s17, 2048")
        a("buffer_load_dwordx4 %s, v2, s[12:15], s17 offen" % vr(32 + 12 * hg))
        a("buffer_load_dwordx4 %s, v2, s[12:15], s17 offen offset:1024" % vr(36 + 12 * hg))
        a("buffer_load_dwordx2 %s, v2, s[12:15], s18 offen offset:1032" % vr(40 + 12 * hg, 2))
    a("s_lshr_b32 s19, s2, 5"); a("s_mul_i32 s19, s19, 224"); a("s_lshr_b32 s20, s3, 1"); a("s_mul_i32 s20, s20, 112"); a("s_add_u32 s19, s19, s20")
    a("s_lshl_b32 s19, s19, 10"); a("s_and_b32 s20, s2, 31"); a("s_lshl_b32 s20, s20, 5"); a("s_add_u32 s19, s19, s20")
    a("s_and_b32 s20, s3, 1"); a("s_lshl_b32 s21, s20, 16"); a("s_add_u32 s21, s21, s19"); a("s_add_u32 s22, s19, %d" % (48 * 1024))
    a("v_and_b32 v3, 15, v0"); a("v_lshlrev_b32 v3, 10, v3"); a("v_lshrrev_b32 v4, 4, v0"); a("v_lshl_add_u32 v3, v4, 3, v3")
    for k in range(16): a("v_mov_b32 v%d, 0" % (8 + k))
    for hg in range(8):
        a("s_waitcnt vmcnt(%d)" % (21 - 3 * hg))
        for d in range(10):
            src = 32 + 12 * hg + d; dd = d if d < 8 else d - 2
            a("v_lshlrev_b32 v4, 16, v%d" % src); a("v_and_b32 v5, 0xffff0000, v%d" % src)
            a("v_add_f32 v%d, v%d, v4" % (8 + 2 * dd, 8 + 2 * dd)); a("v_add_f32 v%d, v%d, v5" % (9 + 2 * dd, 9 + 2 * dd))
    for d in range(8): a("v_cvt_pk_bf16_f32 v%d, v%d, v%d" % (24 + d, 8 + 2 * d, 9 + 2 * d))
    for u in range(3):
        a("buffer_store_dwordx2 %s, v3, s[8:11], s21 offen" % vr(24 + 2 * u, 2)); a("s_add_u32 s21, s21, 16384")
    a("s_cmp_eq_u32 s20, 1"); a("s_cbranch_scc1 R_end")
    a("buffer_store_dwordx2 %s, v3, s[8:11], s22 offen" % vr(30, 2))
    a.label("R_end"); a("s_endpgm")
    return a.text()

DEFAULT = dict(
    kvA={5: [("K", 0)], 6: [("V", 0), ("K", 1)], 7: [("V", 1)]},
    kvB={-1: [("K", 2)], 0: [("V", 2), ("K", 3)], 1: [("V", 3), ("K", 4)], 2: [("V", 4), ("K", 5)], 3: [("V", 5), ("K", 6)], 4: [("V", 6), ("K", 7)],
         5: [("V", 7), ("WO", (0, 0))], 6: [("WO", (0, 1)), ("WO", (1, 0)), ("WO", (2, 0))], 7: [("WO", (3, 0)), ("WO", (1, 1)), ("WO", (2, 1))]},
    touch_n=21, map=1, rot='two', wotouch=99,
)
HEADER = open("standalone__gqa_block_cached__near_ridge.s.ref").read().split("; Override")[0]

def generate(fn, **kw):
    cfg = dict(DEFAULT); cfg.update(kw)
    body = K(cfg).build()
    ks = [(KN, body, 256, 256, 163840, 512, 256)]
    open(fn, "w").write(wrap(ks, HEADER))

if __name__ == "__main__":
    import ast
    kw = {}
    for x in sys.argv[2:]:
        k, v = x.split("=", 1)
        try: v = ast.literal_eval(v)
        except Exception: pass
        kw[k] = v
    generate(sys.argv[1], **kw)
```

```python
import sys, math, struct
from asmlib import Asm, wrap, KN, STAMP_OFF
from stream import *

MF = "v_mfma_f32_16x16x32_bf16"
def vr(b, n=4): return "v[%d:%d]" % (b, b + n - 1)
def ar(b, n=4): return "a[%d:%d]" % (b, b + n - 1)
def sr(b, n=4): return "s[%d:%d]" % (b, b + n - 1)
def f2u(x): return struct.unpack("<I", struct.pack("<f", x))[0]

S_WG, S_W = 2, 3
SRD_X, SRD_WQ, SRD_K, SRD_V, SRD_WO, SRD_WS, SRD_OUT, SRD_DBG = 20, 24, 28, 32, 36, 40, 44, 48
S_B, S_H, S_HG, S_CQ, S_E, S_ROT = 4, 5, 6, 7, 8, 9
S_XB, S_WB, S_KVB, S_WOB, S_LX, S_L4 = 10, 11, 12, 13, 14, 15
S_OB, S_PB = 16, 17
S_C0 = 52
S_NEUT = 53
S_SO = 54
S_T0, S_T1, S_T2, S_T3 = 55, 56, 57, 58
S_XCC, S_RETRY, S_FL = 59, 60, 61
S_KC = 62
S_SPIN = 63
S_OS = 98
SPIN_MAX = 1 << 20
STAMP0 = 68
S_AS = 84
V_OK, V_OV, V_OO = 8, 12, 14
V_L16, V_L0, V_POLL, V_SCR = 18, 19, 20, 21
V_AKX, V_AKY, V_AVX, V_AVY = 22, 26, 30, 38
V_T = 46
V_SX, V_SY = 56, 88
V_NEGM = 112
V_O = 128
V_OX, V_OW, V_AX, V_AW = 76, 60, 64, 68
A_Q, A_L, A_ONE, A_XF, A_RING = 0, 64, 80, 96, 192
NRING = 16
SL = lambda i: i * 16384
XS = lambda c: ((7 - c) % 3) * 28672
WS_ = lambda c: SL(6 + (7 - c) % 3)
KSL = lambda i: SL(9 - i % 4)
VSL = lambda i: SL(5 - i % 4)
WOSL = {(0, 0): SL(0), (0, 1): SL(1), (1, 0): SL(9), (2, 0): SL(8), (3, 0): SL(5), (1, 1): SL(7), (2, 1): SL(4), (3, 1): SL(6)}
K_WIN, V_WIN, WQ_WIN = SL(6), SL(2), SL(6)
QSCR = SL(2); OSCR = SL(3); LSCR = SL(6)
OB_OFF, FL_OFF, PB_OFF = 0, 16 << 20, 32 << 20
FL2 = 1 << 17
WS_BYTES = 256 << 20
ACT = (0, 1, 4, 5)

OLAY = [1]
def opos(u, s):
    if OLAY[0] == 0: return 4 * u + s if u < 3 else 12 + s // 2
    return (0, 3, 7, 11)[s] + u if (u, s) != (3, 0) else 6

class Op:
    def __init__(self, ins, lo, hi, hard=None, pre=(), dep=None):
        self.i = ins; self.lo = lo; self.hi = hi; self.hard = hi if hard is None else hard; self.pre = list(pre); self.dep = dep; self.g = None; self.use = self.hard + 1

def schedule(G, L, D, X, C, name=""):
    n = G.n()
    for q in (L, D, X, C):
        for k in range(len(q) - 2, -1, -1):
            q[k].hi = min(q[k].hi, q[k + 1].hi - 1); q[k].hard = min(q[k].hard, q[k + 1].hard)
    ptr = {"L": 0, "D": 0, "X": 0, "C": 0}; Q = {"L": L, "D": D, "X": X, "C": C}
    lastD = [-5]
    def head(k):
        return Q[k][ptr[k]] if ptr[k] < len(Q[k]) else None
    def slots(o, g):
        return [x for x in range(max(lastD[0] + 1, 0, g - 12), g) if not G.pre[x]]
    def avail(o, g, strict=True):
        if o is None or o.lo > g: return False
        if o.dep is not None:
            for d in o.dep:
                if d.g is None or (strict and d.g >= g): return False
        if strict and o.i.kind == "vm":
            if G.pre[g]: return False
            if len(slots(o, g)) < len(o.pre): return False
        return True
    def put(k, g):
        o = head(k); o.g = g; ptr[k] += 1
        if g < 0:
            G.head += o.pre + [o.i]; return
        if k in "LD":
            pre = list(o.pre)
            if k == "D":
                sl = slots(o, g); sl = sl[max(0, len(sl) - len(pre)):] if pre else []
                for x in sl: G.pre[x].append(pre.pop(0))
                lastD[0] = g
            if G.mem[g] and pre: G.mem[g] += pre + [o.i]
            else: G.pre[g] += pre; G.mem[g].append(o.i)
        else: G.val[g].append(o.i)
    over = 0
    for g in range(-1, n):
        if g >= 0:
            cands = [(head(k).hi, k) for k in "LDX" if avail(head(k), g)]
            if cands and G.cost(g) <= 0:
                put(min(cands)[1], g)
            while G.cost(g) <= 4 and g not in G.blocked:
                if avail(head("C"), g): put("C", g)
                elif avail(head("X"), g) and head("X").i.op not in TRANS: put("X", g)
                else: break
        if g < 0:
            while head("L") is not None and head("L").hi < 0 and head("L").lo < 0: put("L", g)
        ch = True
        while ch:
            ch = False
            for k in "LDXC":
                o = head(k)
                if o is not None and o.hard <= g:
                    assert avail(o, g, False), "%s: cannot meet hard deadline g=%d lo=%d %s" % (name, g, o.lo, o.i.t)
                    put(k, g); ch = True; over += g >= 0
    for k in "LDXC": assert head(k) is None, (name, k, head(k).i.t, head(k).lo, n)
    leads = sorted(o.use - o.g for o in L if o.g >= 0)
    sys.stderr.write("%s: mfma %d est %d cycles (floor %d), forced %d, lds leads min %s\n" % (name, n, G.est(), 16 * n, over, leads[:24]))

def spread(G, TV):
    cost = lambda o: 8 if (o.i.op in TRANS or o.i.op.startswith("v_permlane")) else 4
    for k in range(len(TV) - 2, -1, -1): TV[k].hard = min(TV[k].hard, TV[k + 1].hard)
    for k in range(1, len(TV)): TV[k].lo = max(TV[k].lo, TV[k - 1].lo)
    p = 0; g = TV[0].lo
    while p < len(TV):
        rate = 8; acc = 0
        for k in range(p, len(TV)):
            acc += cost(TV[k]); h = TV[k].hard
            if k + 1 < len(TV) and TV[k + 1].hard == h: continue
            assert h >= g, (TV[k].i.t, g, h)
            rate = max(rate, (acc + sum(G.cost(x) for x in range(g, h + 1))) / (h - g + 1))
        while p < len(TV) and TV[p].lo <= g and (G.cost(g) + cost(TV[p]) / 2 <= rate or TV[p].hard <= g):
            G.val[g].append(TV[p].i); p += 1
        g += 1

class Ring:
    def __init__(self): self.k = 0; self.free_at = [-1] * NRING
    def alloc(self, last_use):
        s = self.k % NRING; self.k += 1; lo = self.free_at[s]; self.free_at[s] = last_use
        return A_RING + 4 * s, lo
    def peek(self, ahead=0): return A_RING + 4 * ((self.k + ahead) % NRING)

def tile_dma(kind, idx, lds, lo, hi, nt=True):
    ops = []
    if kind == "K": srd, vo, base, off, fl = SRD_K, lambda j: V_OK + j, S_KVB, idx * 16384, " nt" if nt else ""
    elif kind == "V": srd, vo, base, off, fl = SRD_V, lambda j: V_OV + (j & 1), S_KVB, idx * 16384, " nt" if nt else ""
    elif kind == "WO": srd, vo, fl = SRD_WO, lambda j: V_OO + j, ""
    if kind == "WO" and idx == (3, 1):
        return [Op(I("buffer_load_dwordx4 %s, v%d, %s, s%d offen offset:%d" % (ar(A_XF + 4 * j), V_OO + j, sr(SRD_WO), S_SO, j * 1024), "WOr"), lo, lo + (hi - lo) * (j + 1) // 4, hard=hi,
                   pre=[I("s_xor_b32 s%d, s%d, 0x%x" % (S_SO, S_WOB, (3 << 17) | (1 << 16)))] if j == 0 else []) for j in range(4)]
    tag = "%s%s" % (kind, idx)
    for j in range(4):
        pre = []
        if j == 0:
            pre = [I("s_add_u32 m0, s%d, 0x%x" % (S_L4, lds))]
            if kind == "WO":
                hh, half = idx
                pre += [I("s_xor_b32 s%d, s%d, 0x%x" % (S_SO, S_WOB, (hh << 17) | (half << 16)))]
            else: pre += [I("s_add_u32 s%d, s%d, 0x%x" % (S_SO, base, off))]
        h = lo + (hi - lo) * (j + 1) // 4
        ops.append(Op(I("buffer_load_dwordx4 v%d, %s, s%d offen offset:%d%s lds" % (vo(j), sr(srd), S_SO, j * 1024, fl), tag), lo, h, hard=hi, pre=pre))
    return ops

def stage_so(c): return (S_AS + 2 * (c % 7), S_AS + 2 * (c % 7) + 1)
def stage_setup(c):
    sw, sx = stage_so(c)
    return [I("s_add_u32 s%d, s%d, %d" % (S_KC, S_ROT, c)), I("s_and_b32 s%d, s%d, 7" % (S_KC, S_KC)),
            I("s_lshl_b32 s%d, s%d, 19" % (sw, S_KC)), I("s_add_u32 s%d, s%d, s%d" % (sw, sw, S_WB)),
            I("s_lshl_b32 s%d, s%d, 7" % (sx, S_KC)), I("s_add_u32 s%d, s%d, s%d" % (sx, sx, S_XB))]
def stage_dma(c, lo, hi):
    ops = []; tag = "A%d" % c
    seq = []; sw, sx = stage_so(c)
    for j in range(4):
        seq.append((I("buffer_load_dwordx4 v%d, %s, s%d offen offset:%d lds" % (V_OW + j, sr(SRD_WQ), sw, j * 1024), tag), [I("s_add_u32 m0, s%d, 0x%x" % (S_L4, WS_(c)))] if j == 0 else []))
    for j in range(7):
        p = [I("s_add_u32 m0, s%d, 0x%x" % (S_LX, XS(c) + 1024 * j))] if j in (0, 4) else []
        seq.append((I("buffer_load_dwordx4 v%d, %s, s%d offen offset:%d lds" % (V_OX + j, sr(SRD_X), sx, (j & 3) * 1024), tag), p))
    for k, (ins, p) in enumerate(seq):
        ops.append(Op(ins, lo, lo + (hi - lo) * (k + 1) // len(seq), hard=hi, pre=p))
    return ops

def flat(ops):
    out = []
    for o in ops: out += o.pre + [o.i]
    return out

class K:
    def __init__(self, cfg):
        self.c = cfg; self.ins = []; self.nst = 0
    def __call__(self, s, tag=None):
        for l in s.split("\n"):
            l = l.strip()
            if l: self.ins.append(I(l, tag))
    def add(self, lst): self.ins += lst
    def stamp_ins(self, name):
        st = self.c.get("stamps")
        if not st or name not in st.split(","): return []
        return self.stamp_at(1 + st.split(",").index(name), name.startswith("spin"))
    def stamp_at(self, k, spin=False):
        b = STAMP0 + 2 * k
        assert b + 1 < S_AS
        if spin: return [I("s_mov_b32 s%d, s%d" % (b, STAMP0)), I("s_add_u32 s%d, s%d, s%d" % (b + 1, STAMP0 + 1, S_SPIN))]
        return [I("s_waitcnt lgkmcnt(0)"), I("s_memrealtime s[64:65]"), I("s_memtime s[66:67]"), I("s_waitcnt lgkmcnt(0)"), I("s_mov_b32 s%d, s64" % b), I("s_mov_b32 s%d, s66" % (b + 1))]
    def stamp(self, name): self.add(self.stamp_ins(name))
    def gstamps(self, G, prefix):
        for nm in (self.c.get("stamps") or "").split(","):
            if nm.startswith(prefix) and nm[len(prefix):].isdigit(): G.val[int(nm[len(prefix):])] += self.stamp_ins(nm)

    def prologue(self):
        a = self; c = self.c
        a("s_cmp_ge_u32 s2, 256"); a("s_cbranch_scc1 L_end")
        for d, off in ((SRD_WQ, 24), (SRD_X, 0)):
            a("s_load_dwordx2 s[%d:%d], s[0:1], %d" % (d, d + 1, off))
        if c.get("stamps"):
            a("s_memrealtime s[64:65]"); a("s_memtime s[66:67]")
        T = V_T
        if c.get("touch", 1):
            a("s_getpc_b64 s[%d:%d]" % (S_T1, S_T2)); a("L_pc:")
            a("s_bfe_u32 s%d, s2, 0x20003" % S_T0); a("s_mul_i32 s%d, s%d, %d" % (S_T0, S_T0, c["touch_n"] * 512))
            a("v_min_u32 v6, %d, v0" % (4 * c["touch_n"] - 1)); a("v_lshl_add_u32 v6, v6, 7, s%d" % S_T0)
            a("v_min_u32 v6, L_codeend-L_pc-4, v6")
            a("global_load_dword a84, v6, s[%d:%d]" % (S_T1, S_T2), "touch")
        a("v_lshrrev_b32 v1, 6, v0"); a("v_and_b32 v0, 63, v0"); a("v_readfirstlane_b32 s3, v1")
        a("s_mov_b32 s%d, 0" % S_NEUT)
        a("L_restart:")
        a("v_lshrrev_b32 v1, 4, v0"); a("v_and_b32 v2, 15, v0"); a("v_lshrrev_b32 v3, 3, v0"); a("v_and_b32 v4, 7, v0")
        a("s_and_b32 s%d, s2, 7" % S_ROT); a("s_lshr_b32 s%d, s2, 3" % S_T3)
        if c.get("map", 2) == 2:
            a("s_and_b32 s%d, s%d, 7" % (S_B, S_T3)); a("s_lshr_b32 s%d, s%d, 3" % (S_CQ, S_T3))
            a("s_lshl2_add_u32 s%d, s%d, s%d" % (S_H, S_ROT, S_CQ))
        else:
            a("s_and_b32 s%d, s2, 1" % S_B); a("s_and_b32 s%d, s%d, 3" % (S_T0, S_T3)); a("s_lshl2_add_u32 s%d, s%d, s%d" % (S_B, S_B, S_T0))
            a("s_lshr_b32 s%d, s%d, 1" % (S_H, S_ROT)); a("s_lshr_b32 s%d, s2, 5" % S_T0); a("s_lshl3_add_u32 s%d, s%d, s%d" % (S_H, S_H, S_T0))
        a("v_lshlrev_b32 v5, 1, v1"); a("v_xor_b32 v5, v5, v2"); a("v_lshlrev_b32 v5, 4, v5")
        a("v_lshl_add_u32 v%d, v1, 13, v5" % V_OW)
        a("v_add_u32 v%d, %d, v%d" % (V_OW + 1, 31744, V_OW))
        a("v_xor_b32 v6, 0x80, v%d" % V_OW)
        a("v_add_u32 v%d, %d, v6" % (V_OW + 2, 2 * 31744)); a("v_add_u32 v%d, %d, v6" % (V_OW + 3, 3 * 31744))
        a("s_lshl_b32 s%d, s%d, 8" % (S_WB, S_H)); a("s_lshl_b32 s%d, s3, 17" % S_T0); a("s_add_u32 s%d, s%d, s%d" % (S_WB, S_WB, S_T0))
        a("s_lshl_b32 s%d, s3, 12" % S_L4)
        def srd(d, nb):
            a("s_mov_b32 s%d, 0x%x" % (d + 2, nb)); a("s_mov_b32 s%d, 0x20000" % (d + 3))
        srd(SRD_WQ, 512 * 4096 * 2); srd(SRD_X, 8 * 224 * 512 * 2)
        a("s_and_b32 s%d, s3, 1" % S_E); a("s_lshl_b32 s%d, s%d, 6" % (S_T1, S_E))
        a("v_xor_b32 v6, v4, v1"); a("v_lshlrev_b32 v6, 4, v6"); a("v_lshl_add_u32 v6, v3, 10, v6")
        a("v_xor_b32 v%d, s%d, v6" % (V_OX, S_T1))
        a("v_xor_b32 v7, 64, v%d" % V_OX)
        a("v_add_u32 v%d, %d, v7" % (V_OX + 1, 7168)); a("v_add_u32 v%d, %d, v%d" % (V_OX + 2, 2 * 7168, V_OX)); a("v_add_u32 v%d, %d, v7" % (V_OX + 3, 3 * 7168))
        for j in range(4, 7): a("v_add_u32 v%d, 0x8000, v%d" % (V_OX + j, V_OX + j - 4))
        a("s_mul_i32 s%d, s%d, %d" % (S_XB, S_B, 229376)); a("s_mul_i32 s%d, s3, %d" % (S_T0, 57344)); a("s_add_u32 s%d, s%d, s%d" % (S_XB, S_XB, S_T0))
        a("s_mul_i32 s%d, s3, 7168" % S_LX)
        rot = c.get("rot", "xcd")
        if rot == "two":
            a("s_add_u32 s%d, s%d, s%d" % (S_T0, S_B, S_H)); a("s_and_b32 s%d, s%d, 1" % (S_T0, S_T0)); a("s_lshl2_add_u32 s%d, s%d, s%d" % (S_ROT, S_T0, S_ROT))
        a.add(stage_setup(0) + stage_setup(1))
        a("s_waitcnt lgkmcnt(0)")
        for d, off in ((SRD_K, 8), (SRD_V, 16), (SRD_WO, 32), (SRD_OUT, 40), (SRD_DBG, 48), (SRD_WS, 56)):
            a("s_load_dwordx2 s[%d:%d], s[0:1], %d" % (d, d + 1, off))
        a.add(flat(stage_dma(0, 0, 0)))
        st1 = stage_dma(1, 0, 0); n1 = c.get("n1", 4)
        a.add(flat(st1[:n1]))
        srd(SRD_K, 8 * 32 * 512 * 128 * 2); srd(SRD_V, 8 * 32 * 512 * 128 * 2); srd(SRD_WO, 4096 * 512 * 2)
        srd(SRD_OUT, 8 * 224 * 512 * 2); srd(SRD_DBG, 256); srd(SRD_WS, 48 << 20)
        a("s_waitcnt lgkmcnt(0)")
        if c.get("stamps"): a("s_mov_b64 s[18:19], s[%d:%d]" % (SRD_WS, SRD_WS + 1)); a("s_mov_b32 s%d, s64" % STAMP0); a("s_mov_b32 s%d, s66" % (STAMP0 + 1))
        a.stamp("S0")
        if c.get("wsoff"):
            a("s_add_u32 s%d, s%d, 0x%x" % (SRD_WS, SRD_WS, c["wsoff"] << 20)); a("s_addc_u32 s%d, s%d, 0" % (SRD_WS + 1, SRD_WS + 1))
        a("s_lshr_b32 s%d, s%d, 2" % (S_HG, S_H)); a("s_and_b32 s%d, s%d, 3" % (S_CQ, S_H))
        for ch in range(2, 8): a.add(stage_setup(ch))
        a("s_lshl_b32 s%d, s%d, 5" % (S_T0, S_B)); a("s_add_u32 s%d, s%d, s%d" % (S_T0, S_T0, S_H))
        a("s_lshl_b32 s%d, s%d, 17" % (S_KVB, S_T0)); a("s_add_u32 s%d, s%d, s%d" % (S_KVB, S_KVB, S_L4))
        a("s_lshl_b32 s%d, s%d, 2" % (S_T0, S_T0)); a("s_add_u32 s%d, s%d, s3" % (S_T0, S_T0))
        a("s_lshl_b32 s%d, s%d, 3" % (S_OB, S_HG)); a("s_add_u32 s%d, s%d, s%d" % (S_OB, S_OB, S_B)); a("s_lshl_b32 s%d, s%d, 2" % (S_OB, S_OB)); a("s_add_u32 s%d, s%d, s3" % (S_OB, S_OB))
        a("s_mul_i32 s%d, s%d, %d" % (S_OB, S_OB, 4 * 14336))
        a("s_mul_i32 s%d, s%d, 14336" % (S_OS, S_CQ)); a("s_add_u32 s%d, s%d, s%d" % (S_OS, S_OS, S_OB))
        for u in range(1, 4): a("s_add_u32 s%d, s%d, %d" % (S_OS + u, S_OS, 4096 * u))
        a("s_lshl_b32 s%d, s%d, 7" % (S_FL, S_T0)); a("s_add_u32 s%d, s%d, 0x%x" % (S_FL, S_FL, FL_OFF))
        a("s_lshl_b32 s%d, s%d, 17" % (S_WOB, S_H)); a("s_lshl_b32 s%d, s3, 14" % S_T0); a("s_add_u32 s%d, s%d, s%d" % (S_WOB, S_WOB, S_T0))
        a("s_lshl_b32 s%d, s%d, 8" % (S_T0, S_CQ)); a("s_add_u32 s%d, s%d, s%d" % (S_WOB, S_WOB, S_T0))
        a("s_lshl_b32 s%d, s%d, 2" % (S_T0, S_B)); a("s_add_u32 s%d, s%d, s%d" % (S_T0, S_T0, S_CQ)); a("s_mul_i32 s%d, s%d, %d" % (S_PB, S_T0, 8 * 57344))
        a("s_lshl_b32 s%d, s3, 11" % S_T0); a("s_add_u32 s%d, s%d, s%d" % (S_PB, S_PB, S_T0)); a("s_add_u32 s%d, s%d, 0x%x" % (S_PB, S_PB, PB_OFF - 8192))
        cc = f2u(math.log2(math.e) / math.sqrt(128.0))
        a("s_mov_b32 s%d, 0x%x" % (S_C0, cc))
        a("s_cmp_lg_u32 s%d, 0" % S_NEUT); a("s_cbranch_scc1 L_noinit")
        a("s_mov_b32 s%d, 0x%x" % (S_RETRY, f2u(2.0 ** 40))); a("s_mov_b32 s%d, 0" % S_SPIN)
        for u in range(4): a("v_mov_b32 v%d, 0x7f800000" % (V_NEGM + 4 * u))
        a("L_noinit:")
        a("s_lshl_b32 s%d, s%d, 3" % (S_T1, S_CQ)); a("s_lshl_b32 s%d, 1, s%d" % (S_T0, S_T1)); a("v_mov_b32 v%d, s%d" % (V_T + 1, S_T0))
        a("s_lshl3_add_u32 s%d, s%d, s%d" % (S_T1, S_B, S_HG)); a("s_lshl_b32 s%d, s3, 8" % S_KC); a("s_lshl2_add_u32 s%d, s%d, s%d" % (S_KC, S_T1, S_KC)); a("s_add_u32 s%d, s%d, s%d" % (S_KC, S_KC, S_NEUT))
        a("v_lshlrev_b32 v%d, 4, v0" % V_L16)
        a("v_cmp_eq_u32 vcc, 0, v0"); a("v_bfrev_b32 v6, 1"); a("v_cndmask_b32 v%d, v6, 0, vcc" % V_L0)
        a("v_lshlrev_b32 v7, 9, v0"); a("v_xor_b32 v7, s%d, v7" % S_FL); a("v_lshl_add_u32 v7, v0, 2, v7")
        a("s_mov_b64 vcc, 14"); a("v_cndmask_b32 v%d, v6, v7, vcc" % V_POLL)
        a("v_lshlrev_b32 v7, 2, v0"); a("s_mov_b64 vcc, 0xff"); a("v_cndmask_b32 v%d, v6, v7, vcc" % (V_T + 8))
        a("v_and_b32 v6, 3, v0")
        a("v_xor_b32 v7, v2, v1"); a("v_lshlrev_b32 v7, 4, v7"); a("v_lshl_add_u32 v%d, v1, 8, v7" % V_OK)
        for j in (1, 2, 3): a("v_xor_b32 v%d, %d, v%d" % (V_OK + j, j << 6, V_OK))
        a("v_lshl_add_u32 v%d, v1, 8, v5" % V_OV); a("v_xor_b32 v%d, 0x80, v%d" % (V_OV + 1, V_OV))
        a("v_lshl_add_u32 v%d, v1, 10, v5" % V_OO); a("v_xor_b32 v7, 0x80, v%d" % V_OO)
        a("v_add_u32 v%d, 3072, v7" % (V_OO + 1)); a("v_add_u32 v%d, 6144, v%d" % (V_OO + 2, V_OO)); a("v_add_u32 v%d, 9216, v7" % (V_OO + 3))
        a("v_lshrrev_b32 v7, 1, v2"); a("v_xor_b32 v7, v7, v1"); a("v_lshlrev_b32 v7, 4, v7"); a("v_lshl_add_u32 v7, v2, 7, v7")
        a("s_lshr_b32 s%d, s3, 1" % S_T0); a("s_mul_i32 s%d, s%d, %d" % (S_T0, S_T0, 7 * 2048))
        a("s_lshl_b32 s%d, s%d, 13" % (S_T1, S_E)); a("s_add_u32 s%d, s%d, s%d" % (S_T2, S_T0, S_T1)); a("s_add_u32 s%d, s%d, %d" % (S_T0, S_T0, 3 * 2048))
        a("v_add_u32 v%d, s%d, v7" % (V_AX, S_T2)); a("v_xor_b32 v%d, 64, v%d" % (V_AX + 1, V_AX))
        a("v_add_u32 v%d, s%d, v7" % (V_AX + 2, S_T0)); a("v_xor_b32 v%d, 64, v%d" % (V_AX + 3, V_AX + 2))
        a("v_lshrrev_b32 v3, 2, v2"); a("v_and_b32 v4, 1, v1"); a("v_lshl_or_b32 v4, v4, 2, v3")
        a("s_lshl_b32 s%d, s%d, 1" % (S_T0, S_E)); a("v_xor_b32 v4, s%d, v4" % S_T0); a("v_lshlrev_b32 v4, 5, v4"); a("v_lshl_add_u32 v4, v6, 3, v4")
        a("v_lshl_add_u32 v7, v1, 3, v3"); a("v_lshl_add_u32 v7, v7, 8, v4"); a("v_add_u32 v%d, 0x%x, v7" % (V_AW, WQ_WIN))
        for j in range(1, 8): a("v_xor_b32 v%d, %d, v%d" % (V_AW + j, j << 5, V_AW))
        a("v_lshl_add_u32 v7, v1, 2, v3"); a("v_lshl_add_u32 v7, v7, 8, v4")
        a("s_add_u32 s%d, s%d, 0x%x" % (S_T2, S_T1, V_WIN)); a("v_add_u32 v%d, s%d, v7" % (V_AVX, S_T2))
        for j in range(1, 8): a("v_xor_b32 v%d, %d, v%d" % (V_AVX + j, j << 5, V_AVX))
        for j in range(8): a("v_xor_b32 v%d, 0x2000, v%d" % (V_AVY + j, V_AVX + j))
        a("v_and_b32 v7, 1, v1"); a("v_lshlrev_b32 v7, 1, v7"); a("v_lshrrev_b32 v3, 1, v1"); a("v_or_b32 v7, v7, v3")
        a("s_lshl_b32 s%d, s%d, 2" % (S_T0, S_E)); a("v_xor_b32 v7, s%d, v7" % S_T0); a("v_xor_b32 v7, v7, v2"); a("v_lshlrev_b32 v7, 4, v7"); a("v_lshl_add_u32 v7, v2, 8, v7")
        a("s_add_u32 s%d, s%d, 0x%x" % (S_T2, S_T1, K_WIN)); a("v_add_u32 v%d, s%d, v7" % (V_AKX, S_T2))
        for s in range(1, 4): a("v_xor_b32 v%d, %d, v%d" % (V_AKX + s, s << 6, V_AKX))
        for s in range(4): a("v_xor_b32 v%d, 0x2000, v%d" % (V_AKY + s, V_AKX + s))
        a("v_mov_b32 v7, 0x3f803f80")
        for k in range(4): a("v_accvgpr_write_b32 a%d, v7" % (A_ONE + k))
        a("s_add_u32 s%d, s%d, 0x%x" % (S_T0, S_L4, SL(2))); a("v_add_u32 v%d, s%d, v%d" % (V_SCR, S_T0, V_L16))
        for q in range(4): a("v_and_b32 v%d, 0xffffdfff, v%d" % (252 + q, V_AKX + q))
        a("s_lshl_b32 s%d, s3, 2" % S_T0); a("s_add_u32 s%d, s%d, 0x%x" % (S_T0, S_T0, LSCR)); a("v_add_u32 v%d, s%d, v%d" % (T + 5, S_T0, V_L16))
        a("v_xor_b32 v%d, 4, v%d" % (T + 6, T + 5)); a("v_xor_b32 v%d, 0x1000, v%d" % (T + 7, V_SCR)); a("v_add_u32 v1, 0x%x, v%d" % (LSCR, V_L16))
        a("v_and_b32 v%d, 7, v0" % (T + 9)); a("v_lshlrev_b32 v%d, 2, v%d" % (T + 9, T + 9))
        a("v_mov_b32 v6, 0")
        if c.get("warm"):
            for k in range(16):
                a("v_mul_u32_u24 v2, %d, v0" % (0x9e3b + 0x2f17 * k)); a("v_mul_u32_u24 v2, v2, v2"); a("v_and_b32 v2, 0x807f807f, v2"); a("v_or_b32 v2, 0x3f003f00, v2"); a("v_accvgpr_write_b32 a%d, v2" % (160 + k))
            a("s_mov_b32 s%d, 0" % S_T0); a("L_warm:")
            for m in range(16): self.ins.append(I("%s %s, %s, %s, 0" % (MF, ar(176 + 4 * (m % 4)), ar(160 + 4 * (m % 4)), ar(160 + 4 * (m // 4))))); self.ins[-1].kind = "opaque"
            a("s_add_u32 s%d, s%d, 1" % (S_T0, S_T0)); a("s_cmp_lt_u32 s%d, %d" % (S_T0, c["warm"])); a("s_cbranch_scc1 L_warm")
        a.stamp("S1")
        a.add(flat(st1[n1:]))
        a.stamp("S2")
        a("s_add_u32 s%d, s%d, s%d" % (S_T0, S_FL, S_NEUT))
        a("buffer_store_dword v6, v%d, %s, s%d offen sc1" % (V_T + 8, sr(SRD_WS), S_T0), "flagreset")
        a("s_add_u32 s%d, s%d, 0x%x" % (S_T0, S_T0, FL2))
        a("buffer_store_dword v6, v%d, %s, s%d offen sc1" % (V_T + 8, sr(SRD_WS), S_T0), "flagreset")

    def acc(self, u, j): return V_O + (u * 8 + j) * 4 if u < 3 else V_O + 96 + 4 * ACT.index(j)
    def rowmax_finish(self, M):
        a = self; T = V_T
        for u in range(4): a("v_mov_b32 v%d, v%d" % (T + u, M[u]))
        for u in range(4): a("v_permlane16_swap_b32 v%d, v%d" % (M[u], T + u))
        for u in range(4): a("v_max_f32 v%d, v%d, v%d" % (M[u], M[u], T + u))
        for u in range(4): a("v_mov_b32 v%d, v%d" % (T + u, M[u]))
        for u in range(4): a("v_permlane32_swap_b32 v%d, v%d" % (M[u], T + u))
        for u in range(4): a("v_max_f32 v%d, v%d, v%d" % (M[u], M[u], T + u))
        for u in range(4):
            for k in range(4): a("v_sub_f32 v%d, 0, v%d" % (V_NEGM + 4 * u + k, M[u]))

    def streamAB(self):
        c = self.c; T = V_T
        G = Gaps(); ring = Ring(); L = []; D = []; X = []; C = []; TV = []
        SLAT = 5; nt = c.get("nt", True)
        LEAD = c.get("leadA", 10); BOFF = c.get("boffA", 16); BUB = c.get("bubA", 5)
        xf = lambda ch, u, ks: A_XF + 32 * (ch & 1) + 8 * u + 4 * ks
        groups = [(j, [ch]) for ch in range(6) for j in range(8)] + [(j, [6]) for j in ACT] + [(j, [7]) for j in ACT] + [(j, [6, 7]) for j in (2, 3, 6, 7)]
        nA = 448
        bar = {ch: 56 * ch - BOFF for ch in range(1, 7)}; bar[0] = -1; bar[7] = 336 + 32 - BOFF
        BQ = nA - c.get("boffQ", 18)
        rel = lambda ch: bar[ch + 1] if ch < 6 else BQ
        LA = []; xfirst = {}; xlast = {}; adone = {}
        for j, chs in groups:
            us = [0, 1, 2] + ([3] if j in ACT else [])
            steps = [(ch, ks) for ch in chs for ks in range(2)]; ns = len(steps)
            m0 = G.n(); fr = []
            for k, (ch, ks) in enumerate(steps):
                reg, lo = ring.alloc(m0 + ns * (len(us) - 1) + k); fr.append(reg)
                for eh in range(2):
                    LA.append((m0 + k, Op(I("ds_read_b64_tr_b16 %s, v%d offset:%d" % (ar(reg + 2 * eh, 2), V_AW + j, WS_(ch) - WQ_WIN + ks * 8192 + eh * 1024)),
                                          max(lo, bar[ch]), min(m0 + k - LEAD, rel(ch) - BUB), hard=min(m0 + k - 1, rel(ch) - 2))))
            for u in us:
                for k, (ch, ks) in enumerate(steps):
                    A = self.acc(u, j)
                    m = G.mfma("%s %s, %s, %s, %s" % (MF, vr(A), ar(fr[k]), ar(xf(ch, u, ks)), "0" if ch == 0 and ks == 0 else vr(A)))
                    xfirst.setdefault((ch, u, ks), m); xlast[(ch, u, ks)] = m; adone[(u, j)] = m
        assert G.n() == nA
        for (ch, u, ks), m in xfirst.items():
            lo = max(bar[ch], xlast.get((ch - 2, u, ks), -1))
            LA.append((m, Op(I("ds_read_b128 %s, v%d offset:%d" % (ar(xf(ch, u, ks)), V_AX + (2 if u == 3 else 0) + ks, XS(ch) + (u * 2048 if u < 3 else 0))), lo, m - LEAD, hard=m - 1)))
        L += [o for m, o in sorted(LA, key=lambda t: t[0])]
        for o in L:
            if o.lo < bar[7] and o.use <= 368: o.hi = min(o.hi, bar[7] - BUB); o.hard = min(o.hard, bar[7] - 2)
            elif o.lo < bar[7] and o.use > 368: o.lo = bar[7]
        for ch in range(1, 8): G.pre[bar[ch] - 1] += [W(vm="A%d" % ch, lgkm0=True)]; G.pre[bar[ch]] += [I("s_barrier")]
        G.pre[BQ - 1] += [W(vm="K0", lgkm0=True)]; G.pre[BQ] += [I("s_barrier")]
        gw = BQ - BUB - 2
        for k in range(2): L.append(Op(I("ds_write_b128 v%d, %s offset:%d" % (V_SCR, vr(self.acc(3, 4 * k)), QSCR - SL(2) + k * 1024)), gw + k, gw + k, hard=BQ - 2))
        LEAD = c.get("leadB", 10); BOFF = c.get("boffB", 13); BUB = c.get("bubB", 5)
        segs = [("QK", "X", 0), ("QK", "Y", 0)]
        for i in range(8):
            segs += [("PV", "X", i)] + ([("QK", "X", i + 1)] if i < 7 else []) + [("PV", "Y", i)] + ([("QK", "Y", i + 1)] if i < 7 else [])
        pos = {}; p = nA
        for sg in segs:
            pos[sg] = p; nu = 4 if sg[1] == "X" else 3
            p += 8 * nu + (nu if sg[0] == "PV" else 0) + (4 if sg == ("QK", "X", 0) else 0)
        barB = {i: pos[("PV", "X", i)] - BOFF for i in range(8)}; barB[-1] = BQ; barB[8] = 10 ** 6
        quse = {}; sdone = {}; nuse = {}
        V_M4, V_MX, V_AKM = 240, 244, 252
        def kread(reg, lo, ad, off, use, st):
            L.append(Op(I("ds_read_b128 %s, v%d offset:%d" % (ar(reg), ad, off)), max(lo, barB[st]), min(use - LEAD, barB[st + 1] - BUB), hard=min(use - 1, barB[st + 1] - 2)))
        for op, un, i in segs:
            nu = 4 if un == "X" else 3; S = V_SX if un == "X" else V_SY
            if (op, un, i) == ("QK", "X", 0):
                for si, s in enumerate((0, 2, 1, 3)):
                    if s == 1:
                        for k in range(2): kread(A_Q + 48 + 4 * (2 * k + 1), BQ, T + 7, QSCR - SL(2) + k * 1024, G.n() + 3, -1)
                    if s == 3:
                        m0 = G.n(); fr = []
                        for q in range(4):
                            reg, lo = ring.alloc(m0 + q); fr.append(reg); kread(reg, lo, V_AKM + q, KSL(0) - K_WIN, m0 + q, -1)
                        for q in range(4):
                            m = G.mfma("%s %s, %s, %s, %s" % (MF, vr(V_M4), ar(fr[q]), ar(A_Q + 48 + 4 * q), "0" if q == 0 else vr(V_M4)))
                        mdone = m
                    for kt in range(2):
                        m0 = G.n(); reg, lo = ring.alloc(m0 + 3); kread(reg, lo, V_AKX + s, KSL(0) - K_WIN + kt * 4096, m0, -1)
                        for u in range(4):
                            Dd = S + 8 * u + 4 * kt
                            m = G.mfma("%s %s, %s, %s, %s" % (MF, vr(Dd), ar(reg), ar(A_Q + 16 * u + 4 * s), "0" if si == 0 else vr(Dd)))
                            quse.setdefault((u, s), m); sdone[(u, kt)] = m
            elif op == "QK":
                st = i - 1; ad = V_AKX if un == "X" else V_AKY
                pv0 = pos[("PV", un, i)]
                for kt in range(2):
                    m0 = G.n(); fr = []
                    for s in range(4):
                        reg, lo = ring.alloc(m0 + 4 * (nu - 1) + s); fr.append(reg)
                        kread(reg, lo, ad + s, KSL(i) - K_WIN + kt * 4096, m0 + s, st)
                    for u in range(nu):
                        Dd = S + 8 * u + 4 * kt
                        for s in range(4):
                            m = G.mfma("%s %s, %s, %s, %s" % (MF, vr(Dd), ar(fr[s]), ar(A_Q + 16 * u + 4 * s), vr(V_NEGM + 4 * u) if s == 0 else vr(Dd)))
                            if s == 0: nuse.setdefault(u, m)
                        dl = pv0 + u - 2
                        lo = max(m + SLAT, pos[("PV", "X", 0)] + 2)
                        ex = [Op(I("v_exp_f32 v%d, v%d" % (Dd + k, Dd + k)), lo, dl - 1) for k in range(4)]
                        cv = [Op(I("v_cvt_pk_bf16_f32 v%d, v%d, v%d" % (S + 8 * u + 2 * kt + k, Dd + 2 * k, Dd + 2 * k + 1)), lo, dl, dep=ex[2 * k:2 * k + 2]) for k in range(2)]
                        X += ex; C += cv
            else:
                ad = V_AVX if un == "X" else V_AVY
                first = (un == "X" and i == 0)
                for j in range(8):
                    m0 = G.n()
                    reg, lo = ring.alloc(m0 + nu - 1)
                    for t in range(2):
                        L.append(Op(I("ds_read_b64_tr_b16 %s, v%d offset:%d" % (ar(reg + 2 * t, 2), ad + j, VSL(i) - V_WIN + t * 4096)),
                                    max(lo, barB[i]), min(m0 - LEAD, barB[i + 1] - BUB), hard=min(m0 - 1, barB[i + 1] - 2)))
                    for u in range(nu):
                        O = V_O + (u * 8 + j) * 4
                        G.mfma("%s %s, %s, %s, %s" % (MF, vr(O), ar(reg), vr(S + 8 * u), "0" if first else vr(O)))
                    if j == 0:
                        for u in range(nu):
                            G.mfma("%s %s, %s, %s, %s" % (MF, ar(A_L + 4 * u), ar(A_ONE), vr(S + 8 * u), "0" if first else ar(A_L + 4 * u)))
        n = G.n()
        for i in range(8): G.pre[barB[i] - 1] += [W(vm=["V%d" % i, "K%d" % (i + 1)], lgkm0=True)]; G.pre[barB[i]] += [I("s_barrier")]
        lateq = []
        def conv(u, s):
            A = self.acc(u, 2 * s); lo = max(adone[(u, 2 * s)], adone[(u, 2 * s + 1)]) + 3; hard = quse[(u, s)] - 2
            hs = gw - 1 if u == 3 else hard
            body = [("v_mul_f32 v%d, s%d, v%d" % (A + k, S_C0, A + k), hs) for k in range(8)] + [("v_cvt_pk_bf16_f32 v%d, v%d, v%d" % (A + k, A + 2 * k, A + 2 * k + 1), hs) for k in range(4)]
            for k, (t, h) in enumerate(body):
                TV.append(Op(I(t), lo, h))
                if k == 1:
                    TV.extend(lateq); del lateq[:]
            lateq.extend([Op(I("v_permlane16_swap_b32 v%d, v%d" % (A + k, A + 2 + k)), lo, hs) for k in range(2)] +
                         [Op(I("v_accvgpr_write_b32 a%d, v%d" % (A_Q + 16 * u + 4 * s + k, A + k)), lo, hard) for k in range(4)])
        for u, s in [(0, 0), (3, 0), (1, 0), (2, 0), (3, 2), (0, 2), (1, 2), (2, 2)] + [(u, s) for s in (1, 3) for u in range(3)]: conv(u, s)
        TV.extend(lateq)
        pv0 = pos[("PV", "X", 0)]
        def maxchain(u):
            B = V_M4 if u == 3 else V_SX + 8 * u; M = V_MX + 2 * u; N = V_NEGM + 4 * u
            return ["v_max3_f32 v%d, v%d, v%d, v%d" % (M, B, B + 1, B + 2), "v_max_f32 v%d, v%d, v%d" % (M, M, B + 3), "v_mov_b32 v%d, v%d" % (M + 1, M),
                    "v_permlane16_swap_b32 v%d, v%d" % (M, M + 1), "v_max_f32 v%d, v%d, v%d" % (M, M, M + 1), "v_mov_b32 v%d, v%d" % (M + 1, M),
                    "v_permlane32_swap_b32 v%d, v%d" % (M, M + 1), "v_max_f32 v%d, v%d, v%d" % (M, M, M + 1), "v_min_f32 v%d, -v%d, v%d" % (N, M, N)] + ["v_mov_b32 v%d, v%d" % (N + k, N) for k in (1, 2, 3)]
        ch4 = {u: maxchain(u) for u in range(4)}
        lo = sdone[(2, 0)] + 3
        for k in range(9):
            for u in (0, 3, 1, 2): TV.append(Op(I(ch4[u][k]), lo, nuse[0] - 1))
        for u in (0, 1, 2, 3):
            for k in range(9, 12): TV.append(Op(I(ch4[u][k]), lo, min(nuse[u] - 1, pv0)))
        for u in range(4):
            B = V_SX + 8 * u; lo = sdone[(u, 1)] + 3; hard = pv0 + u - 2
            for t in ["v_add_f32 v%d, v%d, v%d" % (B + k, B + k, V_NEGM + 4 * u) for k in range(8)] + ["v_exp_f32 v%d, v%d" % (B + k, B + k) for k in range(8)] + \
                     ["v_cvt_pk_bf16_f32 v%d, v%d, v%d" % (B + k, B + 2 * k, B + 2 * k + 1) for k in range(4)]: TV.append(Op(I(t), lo, hard))
        win = [(("a", ch), max(bar[ch], 0), (bar[ch + 1] if ch < 7 else BQ) - 2) for ch in range(8)] + [(("b", i), barB[i], min(barB[i + 1] - 2, n - 1 - c.get("dtail", 8))) for i in range(-1, 8)]
        for (ph, i), lo, hi in win:
            lst = c["kvA" if ph == "a" else "kvB"].get(i, []); l0 = lo
            if ph == "a" and i + 2 < 8:
                mid = hi if not lst else lo + (hi - lo) * 11 // (11 + 4 * len(lst))
                ops = stage_dma(i + 2, lo, mid)
                for o in ops: o.hi += c.get("dlagA", 0); o.hard = hi
                D += ops; lo = mid
            if (ph, i) == ("b", -1):
                D.append(Op(I("buffer_atomic_add v%d, v%d, %s, s%d offen" % (T + 1, V_L0, sr(SRD_DBG), S_KC), "hello"), lo + 1, lo + 20, hard=hi))
            if (ph, i) == ("b", 6):
                D.append(Op(I("buffer_load_dword v%d, v%d, %s, s%d offen sc1" % (T + 8, T + 9, sr(SRD_DBG), S_T3), "hl"), lo + 1, lo + 3, hard=hi, pre=[I("s_lshl_b32 s%d, s%d, 5" % (S_T3, S_B))]))
            for k, (kind, ix) in enumerate(lst):
                h0 = lo + (hi - lo) * (k + 1) // len(lst)
                ops = tile_dma(kind, ix, KSL(ix) if kind == "K" else VSL(ix) if kind == "V" else WOSL[ix], l0 + 1, h0, nt)
                for j, o in enumerate(ops):
                    o.hi = lo + (hi - lo) * (4 * k + j + 1) // (4 * len(lst)); o.hard = hi
                    if c.get("even"): o.lo = max(o.lo, o.hi - c["even"])
                D += ops
        px = pos[("PV", "X", 7)]; py = pos[("PV", "Y", 7)]
        rl3 = Op(I("v_accvgpr_read_b32 v%d, a%d" % (T + 3, A_L + 12)), py - 1, n - 1); C.append(rl3)
        rl = [Op(I("v_accvgpr_read_b32 v%d, a%d" % (T + u, A_L + 4 * u)), py + 3 + u + SLAT, n - 1) for u in range(3)]; C += rl
        m1 = Op(I("v_max3_f32 v%d, v%d, v%d, v%d" % (T + 4, T, T + 1, T + 2)), py, n - 1); m2 = Op(I("v_max_f32 v%d, v%d, v%d" % (T + 4, T + 4, T + 3)), py, n - 1); C += [m1, m2]
        X += [Op(I("v_rcp_f32 v%d, v%d" % (2 + 2 * u, T + u)), py, n - 1, dep=[rl[u]]) for u in range(3)]
        for k, j in enumerate((2, 3, 6, 7)):
            L.append(Op(I("ds_write_b128 v%d, %s offset:%d" % (V_SCR, vr(V_O + (24 + j) * 4), OSCR - SL(2) + k * 1024)), px + 4 + 4 * j + 3 + SLAT, n - 1))
        L.append(Op(I("ds_write_b32 v%d, v%d" % (T + 5, T + 3)), py, n - 1, dep=[rl3]))
        L.append(Op(I("ds_write_b32 v%d, v%d offset:1024" % (T + 5, T + 4)), py, n - 1, dep=[m2]))
        schedule(G, L, D, X, C, "AB")
        spread(G, TV)
        self.gstamps(G, "a")
        self.add([W(vm="A0"), I("s_barrier")])
        self.stamp("A0")
        self.add(G.flatten())
        self.nAB = n; self.pv0 = pv0

    def ofrag(self, u, s): return V_SX + 4 * (4 * u + s if u < 3 else 12 + s // 2)
    def ostore(self, u, s):
        f = 4 * u + s if u < 3 else 12 + s // 2
        return I("buffer_store_dwordx4 %s, v%d, %s, s%d offen offset:%d sc1" % (vr(V_SX + 4 * f), V_L16, sr(SRD_WS), S_OS + opos(u, s) // 4, (opos(u, s) % 4) * 1024), "ost%d" % (s // 2))
    def transBC(self):
        a = self; T = V_T; c = self.c
        self.tail = []
        a.add([W(vm=["WO(0, 0)", "WO(0, 1)"], lgkm0=True), I("s_barrier")])
        a.stamp("M")
        a("ds_read_b128 %s, v1 offset:1024" % vr(V_NEGM))
        a("ds_read_b32 v%d, v%d" % (T + 4, T + 6))
        for k, j in enumerate((2, 3, 6, 7)): a("ds_read_b128 %s, v%d offset:%d" % (vr(V_O + (24 + j) * 4), T + 7, OSCR - SL(2) + k * 1024))
        def norm(u, s, rl):
            O = V_O + (u * 8 + 2 * s) * 4; F = self.ofrag(u, s)
            for k in range(4): a("v_pk_mul_f32 %s, %s, %s op_sel_hi:[1,0]" % (vr(O + 2 * k, 2), vr(O + 2 * k, 2), vr(rl, 2)))
            for k in range(4): a("v_cvt_pk_bf16_f32 v%d, v%d, v%d" % (F + k, O + 2 * k, O + 2 * k + 1))
        for s in range(2):
            for u in range(3): norm(u, s, 2 + 2 * u); a.add([self.ostore(u, s)])
        a("v_max3_f32 v%d, v%d, v%d, v%d" % (V_NEGM, V_NEGM, V_NEGM + 1, V_NEGM + 2)); a("v_max_f32 v%d, v%d, v%d" % (V_NEGM, V_NEGM, V_NEGM + 3))
        a("v_add_f32 v%d, v%d, v%d" % (T + 3, T + 3, T + 4))
        a("v_cmp_lt_f32 vcc, s%d, v%d" % (S_RETRY, V_NEGM))
        a("v_rcp_f32 v%d, v%d" % (T, T + 3))
        a("s_cbranch_vccnz L_fallback")
        for j in ACT:
            O = V_O + (24 + j) * 4
            for k in range(2): a("v_pk_add_f32 %s, %s, %s" % (vr(O + 2 * k, 2), vr(O + 2 * k, 2), vr(O + 8 + 2 * k, 2)))
        a("s_barrier")
        norm(3, 0, T); a.add([self.ostore(3, 0)])
        a("s_lshl_b32 s%d, s%d, 1" % (S_T0, S_E)); a("s_xor_b32 s%d, s%d, s%d" % (S_T0, S_T0, S_HG)); a("s_lshl_b32 s%d, s%d, 5" % (S_T0, S_T0))
        a("s_or_b32 s%d, s%d, 0x%x" % (S_T0, S_T0, V_WIN))
        for k in range(16): a("v_xor_b32 v%d, s%d, v%d" % (V_AVX + k, S_T0, V_AVX + k))
        self.normB = lambda: [norm(u, s, T if u == 3 else 2 + 2 * u) for s in (2, 3) for u in range(4) if not (u == 3 and s & 1)]

    def spin(self, name, load):
        for s in ["L_%s_spin:" % name, "s_add_u32 s%d, s%d, 1" % (S_SPIN, S_SPIN), "s_cmp_ge_u32 s%d, 0x%x" % (S_SPIN, SPIN_MAX), "s_cbranch_scc1 L_%s_ok" % name,
                  "s_sleep 1", load, "s_waitcnt vmcnt(0)", "s_branch L_%s" % name]: self.tail.append(I(s))

    def phaseC(self):
        a = self; c = self.c; T = V_T
        LEAD = c.get("leadC", 10)
        acc = lambda u, j: V_O + (j * 4 + u) * 4
        fidx = lambda u, s: 4 * u + s if u < 3 else 12 + s // 2
        def bfrag(hh, u, s):
            return vr(V_SX + 4 * fidx(u, s)) if hh == 0 else ar(56 * (hh - 1) + 4 * fidx(u, s))
        JO = [1, 2, 3, 4, 5, 6, 7, 0]
        started = set(); done = {}; firstuse = {}
        def build(groups):
            G = Gaps(); ring = Ring(); L = []
            for grp in groups:
                m0 = G.n(); fr = []
                seq = [(u, k) for u in range(4) for k, (hh, j, s) in enumerate(grp) if not (u == 3 and s & 1)]
                for k, (hh, j, s) in enumerate(grp):
                    us = [i for i, (u, kk) in enumerate(seq) if kk == k]
                    reg, lo = ring.alloc(m0 + us[-1]); fr.append(reg)
                    slot = WOSL[(hh, s >> 1)]
                    ad = (V_AVX if slot < SL(8) else V_NEGM) + (8 if s & 1 else 0) + j
                    off = slot - (0 if hh == 0 else SL(4) if slot < SL(8) else SL(8))
                    for t in range(2):
                        L.append(Op(I("ds_read_b64_tr_b16 %s, v%d offset:%d" % (ar(reg + 2 * t, 2), ad, off + t * 4096)), lo, m0 + us[0] - LEAD, hard=m0 + us[0] - 1))
                for u, k in seq:
                    hh, j, s = grp[k]; A = acc(u, j)
                    m = G.mfma("%s %s, %s, %s, %s" % (MF, vr(A), ar(fr[k]), bfrag(hh, u, s), vr(A) if (u, j) in started else "0"))
                    started.add((u, j)); done[(u, j)] = m; firstuse.setdefault((hh, u, s), m)
            return G, L
        G, L = build([[(0, j, s) for s in range(4)] for j in JO]); D = []; C = []
        sp = c.get("bspace", 12); k = 0; fa = c.get("flagAat", 4)
        for s in (2, 3):
            for u in range(4):
                if u == 3 and s & 1: continue
                if k == fa: D.append(Op(I("buffer_store_dword v7, v%d, %s, 0 offen sc1" % (V_POLL, sr(SRD_WS)), "flag"), sp * k - 2, sp * k - 1, hard=G.n() - 1, pre=[W(vm="ost0")]))
                D.append(Op(self.ostore(u, s), sp * k, sp * k + 1, hard=G.n() - 1)); k += 1
        wa = Op(I("v_add_u32 v6, 0x%x, v%d" % (WOSL[(3, 1)] - SL(2), V_SCR)), 0, G.n() - 1); C.append(wa)
        for j in range(4): L.append(Op(I("ds_write_b128 v6, %s offset:%d" % (ar(A_XF + 4 * j), j * 1024)), 70 + 3 * j, G.n() - 12, dep=[wa]))
        for k in range(16): C.append(Op(I("v_add_u32 v%d, 0x%x, v%d" % (V_NEGM + k, SL(8), V_AVX + k)), 0, G.n() - 1))
        for u in range(4): C.append(Op(I("v_add_u32 v%d, %d, v%d" % (V_OK + u, 4096 * u, V_L16)), 0, G.n() - 1))
        F = S_WOB
        for t in ["v_mov_b32 v5, 2", "v_and_b32 v3, 3, v0", "v_max_u32 v3, 1, v3", "v_lshlrev_b32 v3, 2, v3",
                  "v_lshlrev_b32 v2, 11, v0", "v_xor_b32 v2, s%d, v2" % S_T3, "v_lshl_add_u32 v%d, v0, 2, v2" % V_OV,
                  "v_and_b32 v4, 15, v0", "v_lshlrev_b32 v4, 10, v4", "v_lshrrev_b32 v2, 4, v0", "v_lshl_add_u32 v%d, v2, 3, v4" % (V_OV + 1), "v_xor_b32 v1, 0x1000, v%d" % V_SCR]:
            C.append(Op(I(t), 0, G.n() - 1))
        schedule(G, L, D, [], C, "P0"); self.gstamps(G, "p")
        sal = []
        for hh in (1, 2, 3):
            sal += ["s_xor_b32 s%d, s%d, %d" % (S_T0, S_CQ, hh), "s_mul_i32 s%d, s%d, 14336" % (S_T0, S_T0), "s_add_u32 s%d, s%d, s%d" % (S_XB + hh - 1, S_T0, S_OB)]
        sal += ["s_mul_i32 s%d, s%d, 57344" % (S_LX, S_HG), "s_add_u32 s%d, s%d, s%d" % (S_LX, S_LX, S_PB),
                "s_mul_i32 s%d, s%d, 224" % (S_T0, S_B), "s_lshr_b32 s%d, s3, 1" % S_T1, "s_mul_i32 s%d, s%d, 112" % (S_T1, S_T1), "s_add_u32 s%d, s%d, s%d" % (S_T0, S_T0, S_T1),
                "s_lshl_b32 s%d, s%d, 10" % (S_T0, S_T0), "s_lshl_b32 s%d, s%d, 8" % (S_T1, S_CQ), "s_add_u32 s%d, s%d, s%d" % (S_T0, S_T0, S_T1),
                "s_lshl_b32 s%d, s%d, 5" % (S_T1, S_HG), "s_add_u32 s%d, s%d, s%d" % (S_T0, S_T0, S_T1),
                "s_lshl_b32 s%d, s%d, 16" % (S_T1, S_E), "s_add_u32 s%d, s%d, s%d" % (S_T1, S_T1, S_T0), "s_add_u32 s%d, s%d, %d" % (S_T2, S_T0, 48 * 1024)]
        g = 1
        for t in sal:
            while G.pre[g] or any(x.kind == "vm" for x in G.mem[g]): g += 1
            G.pre[g].append(I(t)); g += 2
        spA = "s_buffer_load_dwordx4 s[84:87], %s, s%d glc" % (sr(SRD_WS), S_FL)
        G.pre[G.n() - c.get("spoffA", 6)] += [W(lgkm0=True), I(spA)]
        a.add(G.head); G.head = []
        self.normB()
        a("v_mov_b32 v7, 1")
        hz = ["v_subrev_u32 v2, 0x01010101, v%d" % (T + 8), "v_not_b32 v3, v%d" % (T + 8), "v_and_b32 v2, v2, v3", "v_and_b32 v2, 0x80808080, v2", "v_cmp_ne_u32 vcc, 0, v2", "s_cbranch_vccnz L_hello_spin"]
        for t in hz: a(t)
        a("L_hello_ok:")
        a("s_add_u32 s%d, s%d, 0x%x" % (S_T3, S_FL, FL2))
        for t in ["L_hello_spin:", "s_add_u32 s%d, s%d, 1" % (S_SPIN, S_SPIN), "s_cmp_ge_u32 s%d, 0x%x" % (S_SPIN, SPIN_MAX), "s_cbranch_scc1 L_hello_ok", "s_sleep 4",
                  "buffer_load_dword v%d, v%d, %s, s%d offen sc1" % (T + 8, T + 9, sr(SRD_DBG), S_T3), "s_waitcnt vmcnt(0)"] + hz + ["s_branch L_hello_ok"]: self.tail.append(I(t))
        a.stamp("C0")
        a.add(G.flatten())
        a.stamp("P1")
        flB = "buffer_store_dword v5, v%d, %s, 0 offen sc1" % (V_POLL, sr(SRD_WS))
        a("L_poll:"); a("s_waitcnt lgkmcnt(0)"); a("s_min_u32 s84, s85, s86"); a("s_min_u32 s84, s84, s87"); a("s_cmp_eq_u32 s84, 0"); a("s_cbranch_scc1 L_poll_spin"); a("L_poll_ok:")
        for t in ["L_poll_spin:", "s_add_u32 s%d, s%d, 1" % (S_SPIN, S_SPIN), "s_cmp_ge_u32 s%d, 0x%x" % (S_SPIN, SPIN_MAX), "s_cbranch_scc1 L_poll_ok", spA, "s_branch L_poll"]: self.tail.append(I(t))
        a.stamp("P2")
        pl = "buffer_load_dword v%d, v3, %s, s%d offen sc1" % (T + 8, sr(SRD_WS), S_FL)
        s0 = c.get("s0", [1, 2, 3, 4, 5, 6, 7]); s1 = c.get("s1", [1, 2, 3, 4, 5]); s2 = c.get("s2", [])
        groups = [[(hh, j, 0)] for hh in (1, 2, 3) for j in s0]
        groups += [[(hh, j, 1) for hh in (1, 2, 3)] for j in s1]
        groups += [[(hh, j, 2) for hh in (1, 2, 3)] for j in s2]
        for j in JO:
            for s, early in enumerate((s0, s1, s2, [])):
                if j not in early: groups.append([(hh, j, s) for hh in (1, 2, 3)])
        G, L = build(groups); D = []; X = []; C = []
        n = G.n()
        lds = []
        for s in range(4):
            for hh in (1, 2, 3):
                for u in range(4):
                    if u == 3 and s & 1: continue
                    f = fidx(u, s)
                    lds.append((I("buffer_load_dwordx4 %s, v%d, %s, s%d offen offset:%d sc1" % (ar(56 * (hh - 1) + 4 * f), V_OK + opos(u, s) // 4, sr(SRD_WS), S_XB + hh - 1, (opos(u, s) % 4) * 1024), "of"), firstuse[(hh, u, s)]))
        n0 = c.get("n0", 12); n1 = c.get("n1c", 17); sp = c.get("ospace", 3); gP = c.get("gP", 20); gB = c.get("gB", 44)
        a.add([x[0] for x in lds[:n0]])
        for k in range(16): a("v_add_u32 v%d, 0x%x, v%d" % (V_AVX + k, SL(4), V_AVX + k))
        a("v_bfrev_b32 v6, 1"); self.pubsetup = len(self.ins)
        a.add([W(vm=["ost1"])]); a(flB, "flag")
        a("s_barrier")
        a.stamp("P3")
        for k in range(n0, n1): D.append(Op(lds[k][0], sp * (k - n0), sp * (k - n0), hard=min(gP - 1, lds[k][1] - 1)))
        D.append(Op(I(pl, "poll"), gP, gP, hard=gB - 2))
        for k in range(n1, 21): D.append(Op(lds[k][0], gP + 1 + sp * (k - n1), gP + 1 + sp * (k - n1), hard=min(gB - 1, lds[k][1] - 1)))
        G.val[gB] += [I("L_pollb:"), I("v_cmp_ne_u32 vcc, 2, v%d" % (T + 8)), I("s_cbranch_vccnz L_pollb_spin"), I("L_pollb_ok:")]
        self.spin("pollb", pl)
        for k in range(21, 42): D.append(Op(lds[k][0], gB + 1 + sp * (k - 21), gB + 1 + sp * (k - 21), hard=lds[k][1] - 1))
        def pub(lo, hi):
            m = sum(1 << k for k in range(lo, hi + 1))
            return [I("s_mov_b64 exec, 0x%x" % m), I("buffer_store_dword v7, v%d, %s, 0 offen sc1" % (V_OV, sr(SRD_WS)), "flag2"), I("s_mov_b64 exec, -1")]
        sp2 = "s_buffer_load_dwordx8 s[88:95], %s, s%d glc" % (sr(SRD_WS), S_T3)
        pubs = c.get("pubs", {5: 2, 6: 3, 7: 4, 8: 5})
        pubgap = {}
        for idx, j in enumerate(range(1, 8)):
            B = (V_AKX if idx & 1 else V_T)
            last = max(done[(u, j)] for u in range(4))
            prev = max(done[(u, j - 2)] for u in range(4)) + 13 if j > 2 else 0
            cv = {}
            for u in (3, 0, 1, 2):
                for k in range(2):
                    cv[(u, k)] = Op(I("v_cvt_pk_bf16_f32 v%d, v%d, v%d" % (B + 2 * u + k, acc(u, j) + 2 * k, acc(u, j) + 2 * k + 1)), max(done[(u, j)] + 5, prev), min(last + 9, n - 3))
                    C.append(cv[(u, k)])
            st = [I("buffer_store_dwordx4 %s, v%d, %s, s%d offen offset:%d sc1" % (vr(B + 4 * hf), V_L16, sr(SRD_WS), S_SO, hf * 1024), "pst%d" % j) for hf in range(2)]
            pre = [I("s_xor_b32 s%d, s%d, %d" % (S_SO, S_HG, j)), I("s_mul_i32 s%d, s%d, 57344" % (S_SO, S_SO)), I("s_add_u32 s%d, s%d, s%d" % (S_SO, S_SO, S_PB)), I("s_add_u32 s%d, s%d, %d" % (S_SO, S_SO, j * 8192))]
            if j in pubs: pubgap[j] = done[(1, j)] + 3
            D.append(Op(st[0], min(done[(1, j)] + 6, n - 2), last + 5, hard=min(last + 10, n - 2), pre=pre, dep=[cv[(u, k)] for u in (0, 1) for k in range(2)]))
            D.append(Op(st[1], min(last + 6, n - 1), last + 7, hard=min(last + 11, n - 1), dep=[cv[(u, k)] for u in (2, 3) for k in range(2)]))
        if 8 in pubs: pubgap[8] = n - c.get("puboff", 12)
        npub = 0
        for j in sorted(pubs):
            r = V_OO + sorted(pubs).index(j)
            self.ins[self.pubsetup:self.pubsetup] = [I("s_mov_b64 vcc, 0x%x" % sum(1 << k for k in range(npub + 1, pubs[j] + 1))), I("v_cndmask_b32 v%d, v6, v%d, vcc" % (r, V_OV))]
            G.pre[pubgap[j] - 1] += [W(vm="pst%d" % pubs[j])]
            G.mem[pubgap[j]].append(I("buffer_store_dword v7, v%d, %s, 0 offen sc1" % (r, sr(SRD_WS)), "flag2")); G.pre[pubgap[j]].append(I("L_pub%d:" % j)); npub = pubs[j]
        schedule(G, L, D, X, C, "phaseC"); self.gstamps(G, "c")
        G.pre[n - c.get("spoffP", 6)] += [W(lgkm0=True), I(sp2)]
        self.add(G.flatten())
        a.stamp("C1"); a.stamp("spin0")
        def red(j):
            for d in range(8):
                x = acc(0, j) + d; t = acc(2, j) + 2 * (d & 3)
                a("v_lshlrev_b32 v%d, 16, v%d" % (t, x)); a("v_and_b32 v%d, 0xffff0000, v%d" % (t + 1, x))
                a("v_pk_add_f32 %s, %s, %s" % (vr(V_O + 2 * d, 2), vr(V_O + 2 * d, 2), vr(t, 2)))
        NE = c.get("nearly", 3); NB = c.get("nblock", 5)
        a("s_waitcnt lgkmcnt(0)")
        def ldin(j, hidden=False):
            a("s_add_u32 s%d, s%d, %d" % (S_SO, S_LX, j * 8192))
            for hf in range(2):
                a("buffer_load_dwordx4 %s, v%d, %s, s%d offen offset:%d sc1" % (vr(acc(hf, j)), V_L16, sr(SRD_WS), S_SO, hf * 1024), "in%d" % j)
                if hidden: self.ins[-1].kind = "opaque"
        def block(j):
            a("s_cmp_eq_u32 s%d, 0" % (88 + j)); a("s_cbranch_scc1 L_f%d_%s" % (j, "pub" if j <= NE else "spin")); a("L_f%d_ok:" % j)
            t = []
            if j <= NE: t += ["L_f%d_pub:" % j, "s_waitcnt vmcnt(0)"] + [x.t for x in pub(npub + 1, 7)]
            t += ["L_f%d_spin:" % j, "s_add_u32 s%d, s%d, 1" % (S_SPIN, S_SPIN), "s_cmp_ge_u32 s%d, 0x%x" % (S_SPIN, SPIN_MAX), "s_cbranch_scc1 L_f%d_ok" % j,
                  sp2, "s_waitcnt lgkmcnt(0)", "s_cmp_eq_u32 s%d, 0" % (88 + j), "s_cbranch_scc1 L_f%d_spin" % j, "s_branch L_f%d_ok" % j]
            for x in t: self.tail.append(I(x))
        for j in range(1, NB + 1):
            block(j); ldin(j)
            if j == NE:
                a.stamp("T0"); a.stamp("spin1")
                for k in range(npub + 1, 8):
                    if k == 7: a(sp2)
                    a.add([W(vm="pst%d" % k)] + pub(k, k))
                a("s_waitcnt lgkmcnt(0)")
                a.stamp("T1"); a.stamp("spin2")
        a("s_mov_b32 s%d, %d" % (S_T0, NB + 1))
        ntry = [0]
        def tryall():
            ntry[0] += 1
            a("s_waitcnt lgkmcnt(0)")
            for j in range(NB + 1, 8):
                lab = "L_try%d_%d" % (ntry[0], j)
                a("s_cmp_lg_u32 s%d, %d" % (S_T0, j)); a("s_cbranch_scc1 %s" % lab); a("s_cmp_eq_u32 s%d, 0" % (88 + j)); a("s_cbranch_scc1 %s" % lab)
                ldin(j, True); a("s_add_u32 s%d, s%d, 1" % (S_T0, S_T0)); a("%s:" % lab)
        tryall()
        for j in range(1, NB + 1):
            if j in c.get("tryat", (1, 3)): a(sp2)
            red(j)
            if j in c.get("tryat", (1, 3)): tryall()
        a.stamp("T2"); a.stamp("spin3")
        for j in range(NB + 1, 8):
            a("s_cmp_gt_u32 s%d, %d" % (S_T0, j)); a("s_cbranch_scc1 L_have%d" % j)
            block(j); ldin(j, True); a("L_have%d:" % j)
        for j in range(NB + 1, 8):
            a("s_waitcnt vmcnt(%d)" % (2 * (7 - j))); red(j)
        a.stamp("T3")
        a("ds_write_b128 v%d, %s offset:%d" % (V_SCR, vr(acc(3, 0)), OSCR - SL(2)))
        osc = c.get("outsc", "")
        for u in range(3):
            for k in range(2): a("v_cvt_pk_bf16_f32 v%d, v%d, v%d" % (T + 2 * u + k, acc(u, 0) + 2 * k, acc(u, 0) + 2 * k + 1))
        a.add([W(lgkm0=True), I("s_barrier")])
        a("ds_read_b128 %s, v%d offset:%d" % (vr(4), 1, OSCR - SL(2)))
        for u in range(3):
            a("buffer_store_dwordx2 %s, v%d, %s, s%d offen%s" % (vr(T + 2 * u, 2), V_OV + 1, sr(SRD_OUT), S_T1, osc))
            if u < 2: a("s_add_u32 s%d, s%d, 16384" % (S_T1, S_T1))
        a("s_cmp_eq_u32 s%d, 1" % S_E); a("s_cbranch_scc1 L_fin")
        for k in range(2): a("v_pk_add_f32 %s, %s, %s" % (vr(4 + 2 * k, 2), vr(4 + 2 * k, 2), vr(acc(3, 0) + 2 * k, 2)))
        for k in range(2): a("v_cvt_pk_bf16_f32 v%d, v%d, v%d" % (2 + k, 4 + 2 * k, 5 + 2 * k))
        a("buffer_store_dwordx2 %s, v%d, %s, s%d offen%s" % (vr(2, 2), V_OV + 1, sr(SRD_OUT), S_T2, osc))
        a("L_fin:")

    def fallback(self):
        t = lambda s: self.tail.append(I(s)); T = V_T
        t("L_fallback:")
        t("s_waitcnt vmcnt(0) lgkmcnt(0)"); t("s_barrier")
        t("s_mov_b32 s%d, 0x7f800000" % S_RETRY); t("s_mov_b32 s%d, 0" % S_KC)
        M = [V_NEGM + 4 * u for u in range(4)]
        for u in range(4): t("v_mov_b32 v%d, 0xff800000" % M[u])
        t("L_fb_loop:")
        t("s_add_u32 m0, s%d, 0x%x" % (S_L4, KSL(0))); t("s_add_u32 s%d, s%d, s%d" % (S_SO, S_KVB, S_KC))
        for j in range(4): t("buffer_load_dwordx4 v%d, %s, s%d offen offset:%d lds" % (V_OK + j, sr(SRD_K), S_SO, j * 1024))
        t("s_waitcnt vmcnt(0)"); t("s_barrier")
        for ad in (V_AKX, V_AKY):
            for kt in range(2):
                for s in range(4): t("ds_read_b128 %s, v%d offset:%d" % (ar(A_XF + 4 * s), ad + s, KSL(0) - K_WIN + kt * 4096))
                t("s_waitcnt lgkmcnt(0)")
                for u in range(4):
                    for s in range(4):
                        Dd = V_SY + 4 * u
                        t("%s %s, %s, %s, %s" % (MF, vr(Dd), ar(A_XF + 4 * s), ar(A_Q + 16 * u + 4 * s), "0" if s == 0 else vr(Dd)))
                t("s_nop 7")
                for u in range(4):
                    Dd = V_SY + 4 * u
                    t("v_max3_f32 v%d, v%d, v%d, v%d" % (M[u], M[u], Dd, Dd + 1)); t("v_max3_f32 v%d, v%d, v%d, v%d" % (M[u], M[u], Dd + 2, Dd + 3))
                t("s_nop 1")
        t("s_barrier")
        t("s_add_u32 s%d, s%d, 0x4000" % (S_KC, S_KC)); t("s_cmp_lt_u32 s%d, 0x20000" % S_KC); t("s_cbranch_scc1 L_fb_loop")
        for u in range(4): t("v_mov_b32 v%d, v%d" % (V_SY + u, M[u]))
        save = self.ins; self.ins = self.tail
        self.rowmax_finish([V_SY + u for u in range(4)])
        self.ins = save
        t("s_mov_b32 s%d, 0x40000000" % S_NEUT); t("s_branch L_restart")

    def build(self):
        a = self
        self.prologue(); self.streamAB(); self.stamp("B1"); self.transBC(); self.phaseC()
        self.fallback()
        ex = self.c.get("exp", "")
        if ex:
            seen = 0; keep = []
            for i in self.ins:
                if i.kind == "mfma": seen += 1
                if 0 < seen < self.nAB:
                    if "d" in ex and i.kind == "vm" and i.lds: continue
                    if "b" in ex and i.op == "s_barrier": continue
                    if "v" in ex and i.kind == "pseudo": i.need = (None, i.need[1])
                    if "l" in ex and i.kind == "pseudo": i.need = (i.need[0], False)
                    if "x" in ex and i.op == "v_exp_f32": continue
                if "v" in ex and i.kind == "vm" and i.lds and seen: keep.append(I("s_waitcnt vmcnt(40)"))
                if i.op == "s_cbranch_vccnz" and "fallback" in i.t: continue
                keep.append(i)
            self.ins = keep
        main = insert_waits(self.ins, AGE=self.c.get("age", 8), MINAGE=self.c.get("minage", 6))
        main, n1 = fix_hazards(main, self.c.get("verbose"))
        tail, n2 = fix_hazards(self.tail)
        verify_waits(main)
        est = estimate(main); nb = self.nAB
        sys.stderr.write("issue estimate A(0..335) %d  trans(336..pv0) %d  B %d  P0 %d  C %d; waits %d\n" % (sum(est[:336]), sum(est[336:self.pv0]), sum(est[self.pv0:nb - 1]), sum(est[nb:nb + 111]), sum(est[nb + 112:]), sum(1 for i in main if i.op == "s_waitcnt")))
        sys.stderr.write("hazard pads %d, instructions %d\n" % (n1, len(main) + len(tail)))
        A = Asm()
        for i in main:
            if i.kind == "label": A.raw(i.t)
            else: A(i.t)
        if self.c.get("stamps"):
            A("s_waitcnt vmcnt(0)")
            n = 2 + len(self.c["stamps"].split(","))
            for i in self.stamp_at(n - 1): A(i.t)
            A("s_lshl2_add_u32 s%d, s2, s3" % S_T0); A("s_mul_i32 s%d, s%d, %d" % (S_T0, S_T0, 16 * n)); A("s_add_u32 s%d, s%d, 0x%x" % (S_T0, S_T0, STAMP_OFF))
            A("s_mov_b64 exec, 1"); A("v_mov_b32 v4, s%d" % S_T0); A("v_mov_b32 v3, 0")
            for k in range(n):
                for h in range(2):
                    A("v_mov_b32 v2, s%d" % (STAMP0 + 2 * k + h)); A("global_store_dwordx2 v4, v[2:3], s[18:19] offset:%d" % (8 * (k + h * n))); A("s_nop 1")
            sys.stderr.write("stamps: %d\n" % (2 * n))
        A.label("L_end"); A("s_endpgm")
        for i in tail:
            if i.kind == "label": A.raw(i.t)
            else: A(i.t)
        A.label("L_codeend")
        return A.text()

def reduce_kernel():
    a = Asm()
    a("s_cmp_ge_u32 s2, 256"); a("s_cbranch_scc1 R_end")
    a("s_load_dwordx2 s[4:5], s[0:1], 40"); a("s_load_dwordx2 s[6:7], s[0:1], 56")
    a("v_lshrrev_b32 v1, 6, v0"); a("v_and_b32 v0, 63, v0"); a("v_readfirstlane_b32 s3, v1"); a("v_lshlrev_b32 v2, 4, v0")
    a("s_waitcnt lgkmcnt(0)")
    a("s_mov_b32 s8, s4"); a("s_and_b32 s9, s5, 0xffff"); a("s_mov_b32 s10, %d" % (8 * 224 * 512 * 2)); a("s_mov_b32 s11, 0x20000")
    a("s_mov_b32 s12, s6"); a("s_and_b32 s13, s7, 0xffff"); a("s_mov_b32 s14, 0x%x" % WS_BYTES); a("s_mov_b32 s15, 0x20000")
    a("s_lshl_b32 s16, s2, 16"); a("s_lshl_b32 s17, s3, 11"); a("s_add_u32 s16, s16, s17"); a("s_add_u32 s16, s16, 0x%x" % PB_OFF)
    for hg in range(8):
        a("s_add_u32 s17, s16, %d" % (hg * 8192)); a("s_xor_b32 s18, s17, 2048")
        a("buffer_load_dwordx4 %s, v2, s[12:15], s17 offen" % vr(32 + 12 * hg))
        a("buffer_load_dwordx4 %s, v2, s[12:15], s17 offen offset:1024" % vr(36 + 12 * hg))
        a("buffer_load_dwordx2 %s, v2, s[12:15], s18 offen offset:1032" % vr(40 + 12 * hg, 2))
    a("s_lshr_b32 s19, s2, 5"); a("s_mul_i32 s19, s19, 224"); a("s_lshr_b32 s20, s3, 1"); a("s_mul_i32 s20, s20, 112"); a("s_add_u32 s19, s19, s20")
    a("s_lshl_b32 s19, s19, 10"); a("s_and_b32 s20, s2, 31"); a("s_lshl_b32 s20, s20, 5"); a("s_add_u32 s19, s19, s20")
    a("s_and_b32 s20, s3, 1"); a("s_lshl_b32 s21, s20, 16"); a("s_add_u32 s21, s21, s19"); a("s_add_u32 s22, s19, %d" % (48 * 1024))
    a("v_and_b32 v3, 15, v0"); a("v_lshlrev_b32 v3, 10, v3"); a("v_lshrrev_b32 v4, 4, v0"); a("v_lshl_add_u32 v3, v4, 3, v3")
    for k in range(16): a("v_mov_b32 v%d, 0" % (8 + k))
    for hg in range(8):
        a("s_waitcnt vmcnt(%d)" % (21 - 3 * hg))
        for d in range(10):
            src = 32 + 12 * hg + d; dd = d if d < 8 else d - 2
            a("v_lshlrev_b32 v4, 16, v%d" % src); a("v_and_b32 v5, 0xffff0000, v%d" % src)
            a("v_add_f32 v%d, v%d, v4" % (8 + 2 * dd, 8 + 2 * dd)); a("v_add_f32 v%d, v%d, v5" % (9 + 2 * dd, 9 + 2 * dd))
    for d in range(8): a("v_cvt_pk_bf16_f32 v%d, v%d, v%d" % (24 + d, 8 + 2 * d, 9 + 2 * d))
    for u in range(3):
        a("buffer_store_dwordx2 %s, v3, s[8:11], s21 offen" % vr(24 + 2 * u, 2)); a("s_add_u32 s21, s21, 16384")
    a("s_cmp_eq_u32 s20, 1"); a("s_cbranch_scc1 R_end")
    a("buffer_store_dwordx2 %s, v3, s[8:11], s22 offen" % vr(30, 2))
    a.label("R_end"); a("s_endpgm")
    return a.text()

DEFAULT = dict(
    kvA={5: [("K", 0)], 6: [("V", 0)], 7: [("K", 1), ("V", 1)]},
    kvB={-1: [("K", 2)], 0: [("V", 2), ("K", 3)], 1: [("V", 3), ("K", 4)], 2: [("V", 4), ("K", 5)], 3: [("V", 5), ("K", 6)], 4: [("V", 6), ("K", 7)],
         5: [("V", 7), ("WO", (0, 0)), ("WO", (0, 1))], 6: [("WO", (1, 0)), ("WO", (2, 0)), ("WO", (3, 0))], 7: [("WO", (1, 1)), ("WO", (2, 1)), ("WO", (3, 1))]},
    touch_n=21, map=1, rot='two', wotouch=99,
)
HEADER = open("standalone__gqa_block_cached__near_ridge.s.ref").read().split("; Override")[0]

def generate(fn, **kw):
    cfg = dict(DEFAULT); cfg.update(kw); OLAY[0] = cfg.get("olay", 1)
    body = K(cfg).build()
    ks = [(KN, body, 256, 256, 163840, 512, 256)]
    open(fn, "w").write(wrap(ks, HEADER))

if __name__ == "__main__":
    import ast
    kw = {}
    for x in sys.argv[2:]:
        k, v = x.split("=", 1)
        try: v = ast.literal_eval(v)
        except Exception: pass
        kw[k] = v
    generate(sys.argv[1], **kw)
```

```python
import sys, math, struct
from asmlib import Asm, wrap, KN, STAMP_OFF
from stream import *

MF = "v_mfma_f32_16x16x32_bf16"
def vr(b, n=4): return "v[%d:%d]" % (b, b + n - 1)
def ar(b, n=4): return "a[%d:%d]" % (b, b + n - 1)
def sr(b, n=4): return "s[%d:%d]" % (b, b + n - 1)
def f2u(x): return struct.unpack("<I", struct.pack("<f", x))[0]

S_WG, S_W = 2, 3
SRD_X, SRD_WQ, SRD_K, SRD_V, SRD_WO, SRD_WS, SRD_OUT, SRD_DBG = 20, 24, 28, 32, 36, 40, 44, 48
S_B, S_H, S_HG, S_CQ, S_E, S_ROT = 4, 5, 6, 7, 8, 9
S_XB, S_WB, S_KVB, S_WOB, S_LX, S_L4 = 10, 11, 12, 13, 14, 15
S_OB, S_PB = 16, 17
S_C0 = 52
S_NEUT = 53
S_SO = 54
S_T0, S_T1, S_T2, S_T3 = 55, 56, 57, 58
S_XCC, S_RETRY, S_FL = 59, 60, 61
S_KC = 62
S_SPIN = 63
S_OS = 98
SPIN_MAX = 1 << 20
STAMP0 = 68
S_AS = 84
V_OK, V_OV, V_OO = 8, 12, 14
V_L16, V_L0, V_POLL, V_SCR = 18, 19, 20, 21
V_AKX, V_AKY, V_AVX, V_AVY = 22, 26, 30, 38
V_T = 46
V_SX, V_SY = 56, 88
V_NEGM = 112
V_O = 128
V_OX, V_OW, V_AX, V_AW = 76, 60, 64, 68
A_Q, A_L, A_ONE, A_XF, A_RING = 0, 64, 80, 96, 192
NRING = 16
SL = lambda i: i * 16384
XS = lambda c: ((7 - c) % 3) * 28672
WS_ = lambda c: SL(6 + (7 - c) % 3)
KSL = lambda i: SL(9 - i % 4)
VSL = lambda i: SL(5 - i % 4)
WOSL = {(0, 0): SL(0), (0, 1): SL(1), (1, 0): SL(9), (2, 0): SL(8), (3, 0): SL(5), (1, 1): SL(7), (2, 1): SL(4), (3, 1): SL(6)}
K_WIN, V_WIN, WQ_WIN = SL(6), SL(2), SL(6)
QSCR = SL(2); OSCR = SL(3); LSCR = SL(6)
OB_OFF, FL_OFF, PB_OFF = 0, 16 << 20, 32 << 20
FL3 = 1 << 17
FLP_OFF = 17 << 20
WS_BYTES = 256 << 20
ACT = (0, 1, 4, 5)

OLAY = [1]
def opos(u, s):
    if OLAY[0] == 0: return 4 * u + s if u < 3 else 12 + s // 2
    return (0, 3, 7, 11)[s] + u if (u, s) != (3, 0) else 6

class Op:
    def __init__(self, ins, lo, hi, hard=None, pre=(), dep=None):
        self.i = ins; self.lo = lo; self.hi = hi; self.hard = hi if hard is None else hard; self.pre = list(pre); self.dep = dep; self.g = None; self.use = self.hard + 1

def schedule(G, L, D, X, C, name=""):
    n = G.n()
    for q in (L, D, X, C):
        for k in range(len(q) - 2, -1, -1):
            q[k].hi = min(q[k].hi, q[k + 1].hi - 1); q[k].hard = min(q[k].hard, q[k + 1].hard)
    ptr = {"L": 0, "D": 0, "X": 0, "C": 0}; Q = {"L": L, "D": D, "X": X, "C": C}
    lastD = [-5]
    def head(k):
        return Q[k][ptr[k]] if ptr[k] < len(Q[k]) else None
    def slots(o, g):
        return [x for x in range(max(lastD[0] + 1, 0, g - 12), g) if not G.pre[x]]
    def avail(o, g, strict=True):
        if o is None or o.lo > g: return False
        if o.dep is not None:
            for d in o.dep:
                if d.g is None or (strict and d.g >= g): return False
        if strict and o.i.kind == "vm":
            if G.pre[g]: return False
            if len(slots(o, g)) < len(o.pre): return False
        return True
    def put(k, g):
        o = head(k); o.g = g; ptr[k] += 1
        if g < 0:
            G.head += o.pre + [o.i]; return
        if k in "LD":
            pre = list(o.pre)
            if k == "D":
                sl = slots(o, g); sl = sl[max(0, len(sl) - len(pre)):] if pre else []
                for x in sl: G.pre[x].append(pre.pop(0))
                lastD[0] = g
            if G.mem[g] and pre: G.mem[g] += pre + [o.i]
            else: G.pre[g] += pre; G.mem[g].append(o.i)
        else: G.val[g].append(o.i)
    over = 0
    for g in range(-1, n):
        if g >= 0:
            cands = [(head(k).hi, k) for k in "LDX" if avail(head(k), g)]
            if cands and G.cost(g) <= 0:
                put(min(cands)[1], g)
            while G.cost(g) <= 4 and g not in G.blocked:
                if avail(head("C"), g): put("C", g)
                elif avail(head("X"), g) and head("X").i.op not in TRANS: put("X", g)
                else: break
        if g < 0:
            while head("L") is not None and head("L").hi < 0 and head("L").lo < 0: put("L", g)
        ch = True
        while ch:
            ch = False
            for k in "LDXC":
                o = head(k)
                if o is not None and o.hard <= g:
                    assert avail(o, g, False), "%s: cannot meet hard deadline g=%d lo=%d %s" % (name, g, o.lo, o.i.t)
                    put(k, g); ch = True; over += g >= 0
    for k in "LDXC": assert head(k) is None, (name, k, head(k).i.t, head(k).lo, n)
    leads = sorted(o.use - o.g for o in L if o.g >= 0)
    sys.stderr.write("%s: mfma %d est %d cycles (floor %d), forced %d, lds leads min %s\n" % (name, n, G.est(), 16 * n, over, leads[:24]))

def spread(G, TV):
    cost = lambda o: 8 if (o.i.op in TRANS or o.i.op.startswith("v_permlane")) else 4
    for k in range(len(TV) - 2, -1, -1): TV[k].hard = min(TV[k].hard, TV[k + 1].hard)
    for k in range(1, len(TV)): TV[k].lo = max(TV[k].lo, TV[k - 1].lo)
    p = 0; g = TV[0].lo
    while p < len(TV):
        rate = 8; acc = 0
        for k in range(p, len(TV)):
            acc += cost(TV[k]); h = TV[k].hard
            if k + 1 < len(TV) and TV[k + 1].hard == h: continue
            assert h >= g, (TV[k].i.t, g, h)
            rate = max(rate, (acc + sum(G.cost(x) for x in range(g, h + 1))) / (h - g + 1))
        while p < len(TV) and TV[p].lo <= g and (G.cost(g) + cost(TV[p]) / 2 <= rate or TV[p].hard <= g):
            G.val[g].append(TV[p].i); p += 1
        g += 1

class Ring:
    def __init__(self): self.k = 0; self.free_at = [-1] * NRING
    def alloc(self, last_use):
        s = self.k % NRING; self.k += 1; lo = self.free_at[s]; self.free_at[s] = last_use
        return A_RING + 4 * s, lo
    def peek(self, ahead=0): return A_RING + 4 * ((self.k + ahead) % NRING)

def tile_dma(kind, idx, lds, lo, hi, nt=True):
    ops = []
    if kind == "K": srd, vo, base, off, fl = SRD_K, lambda j: V_OK + j, S_KVB, idx * 16384, " nt" if nt else ""
    elif kind == "V": srd, vo, base, off, fl = SRD_V, lambda j: V_OV + (j & 1), S_KVB, idx * 16384, " nt" if nt else ""
    elif kind == "WO": srd, vo, fl = SRD_WO, lambda j: V_OO + j, ""
    if kind == "WO" and idx == (3, 1):
        return [Op(I("buffer_load_dwordx4 %s, v%d, %s, s%d offen offset:%d" % (ar(A_XF + 4 * j), V_OO + j, sr(SRD_WO), S_SO, j * 1024), "WOr"), lo, lo + (hi - lo) * (j + 1) // 4, hard=hi,
                   pre=[I("s_xor_b32 s%d, s%d, 0x%x" % (S_SO, S_WOB, (3 << 17) | (1 << 16)))] if j == 0 else []) for j in range(4)]
    tag = "%s%s" % (kind, idx)
    for j in range(4):
        pre = []
        if j == 0:
            pre = [I("s_add_u32 m0, s%d, 0x%x" % (S_L4, lds))]
            if kind == "WO":
                hh, half = idx
                pre += [I("s_xor_b32 s%d, s%d, 0x%x" % (S_SO, S_WOB, (hh << 17) | (half << 16)))]
            else: pre += [I("s_add_u32 s%d, s%d, 0x%x" % (S_SO, base, off))]
        h = lo + (hi - lo) * (j + 1) // 4
        ops.append(Op(I("buffer_load_dwordx4 v%d, %s, s%d offen offset:%d%s lds" % (vo(j), sr(srd), S_SO, j * 1024, fl), tag), lo, h, hard=hi, pre=pre))
    return ops

def stage_so(c): return (S_AS + 2 * (c % 7), S_AS + 2 * (c % 7) + 1)
def stage_setup(c):
    sw, sx = stage_so(c)
    return [I("s_add_u32 s%d, s%d, %d" % (S_KC, S_ROT, c)), I("s_and_b32 s%d, s%d, 7" % (S_KC, S_KC)),
            I("s_lshl_b32 s%d, s%d, 19" % (sw, S_KC)), I("s_add_u32 s%d, s%d, s%d" % (sw, sw, S_WB)),
            I("s_lshl_b32 s%d, s%d, 7" % (sx, S_KC)), I("s_add_u32 s%d, s%d, s%d" % (sx, sx, S_XB))]
def stage_dma(c, lo, hi):
    ops = []; tag = "A%d" % c
    seq = []; sw, sx = stage_so(c)
    for j in range(4):
        seq.append((I("buffer_load_dwordx4 v%d, %s, s%d offen offset:%d lds" % (V_OW + j, sr(SRD_WQ), sw, j * 1024), tag), [I("s_add_u32 m0, s%d, 0x%x" % (S_L4, WS_(c)))] if j == 0 else []))
    for j in range(7):
        p = [I("s_add_u32 m0, s%d, 0x%x" % (S_LX, XS(c) + 1024 * j))] if j in (0, 4) else []
        seq.append((I("buffer_load_dwordx4 v%d, %s, s%d offen offset:%d lds" % (V_OX + j, sr(SRD_X), sx, (j & 3) * 1024), tag), p))
    for k, (ins, p) in enumerate(seq):
        ops.append(Op(ins, lo, lo + (hi - lo) * (k + 1) // len(seq), hard=hi, pre=p))
    return ops

def flat(ops):
    out = []
    for o in ops: out += o.pre + [o.i]
    return out

class K:
    def __init__(self, cfg):
        self.c = cfg; self.ins = []; self.nst = 0
    def __call__(self, s, tag=None):
        for l in s.split("\n"):
            l = l.strip()
            if l: self.ins.append(I(l, tag))
    def add(self, lst): self.ins += lst
    def stamp_ins(self, name):
        st = self.c.get("stamps")
        if not st or name not in st.split(","): return []
        return self.stamp_at(1 + st.split(",").index(name), name.startswith("spin"))
    def stamp_at(self, k, spin=False):
        b = STAMP0 + 2 * k
        assert b + 1 < S_AS
        if spin: return [I("s_mov_b32 s%d, s%d" % (b, STAMP0)), I("s_add_u32 s%d, s%d, s%d" % (b + 1, STAMP0 + 1, S_SPIN))]
        return [I("s_waitcnt lgkmcnt(0)"), I("s_memrealtime s[64:65]"), I("s_memtime s[66:67]"), I("s_waitcnt lgkmcnt(0)"), I("s_mov_b32 s%d, s64" % b), I("s_mov_b32 s%d, s66" % (b + 1))]
    def stamp(self, name): self.add(self.stamp_ins(name))
    def gstamps(self, G, prefix):
        for nm in (self.c.get("stamps") or "").split(","):
            if nm.startswith(prefix) and nm[len(prefix):].isdigit(): G.val[int(nm[len(prefix):])] += self.stamp_ins(nm)

    def prologue(self):
        a = self; c = self.c
        a("s_cmp_ge_u32 s2, 256"); a("s_cbranch_scc1 L_end")
        for d, off in ((SRD_WQ, 24), (SRD_X, 0)):
            a("s_load_dwordx2 s[%d:%d], s[0:1], %d" % (d, d + 1, off))
        if c.get("stamps"):
            a("s_memrealtime s[64:65]"); a("s_memtime s[66:67]")
        T = V_T
        if c.get("touch", 1):
            a("s_getpc_b64 s[%d:%d]" % (S_T1, S_T2)); a("L_pc:")
            a("s_bfe_u32 s%d, s2, 0x20003" % S_T0); a("s_mul_i32 s%d, s%d, %d" % (S_T0, S_T0, c["touch_n"] * 512))
            a("v_min_u32 v6, %d, v0" % (4 * c["touch_n"] - 1)); a("v_lshl_add_u32 v6, v6, 7, s%d" % S_T0)
            a("v_min_u32 v6, L_codeend-L_pc-4, v6")
            a("global_load_dword a84, v6, s[%d:%d]" % (S_T1, S_T2), "touch")
        a("v_lshrrev_b32 v1, 6, v0"); a("v_and_b32 v0, 63, v0"); a("v_readfirstlane_b32 s3, v1")
        a("s_mov_b32 s%d, 0" % S_NEUT)
        a("L_restart:")
        a("v_lshrrev_b32 v1, 4, v0"); a("v_and_b32 v2, 15, v0"); a("v_lshrrev_b32 v3, 3, v0"); a("v_and_b32 v4, 7, v0")
        a("s_and_b32 s%d, s2, 7" % S_ROT); a("s_lshr_b32 s%d, s2, 3" % S_T3)
        if c.get("map", 2) == 2:
            a("s_and_b32 s%d, s%d, 7" % (S_B, S_T3)); a("s_lshr_b32 s%d, s%d, 3" % (S_CQ, S_T3))
            a("s_lshl2_add_u32 s%d, s%d, s%d" % (S_H, S_ROT, S_CQ))
        else:
            a("s_and_b32 s%d, s2, 1" % S_B); a("s_and_b32 s%d, s%d, 3" % (S_T0, S_T3)); a("s_lshl2_add_u32 s%d, s%d, s%d" % (S_B, S_B, S_T0))
            a("s_lshr_b32 s%d, s%d, 1" % (S_H, S_ROT)); a("s_lshr_b32 s%d, s2, 5" % S_T0); a("s_lshl3_add_u32 s%d, s%d, s%d" % (S_H, S_H, S_T0))
        a("v_lshlrev_b32 v5, 1, v1"); a("v_xor_b32 v5, v5, v2"); a("v_lshlrev_b32 v5, 4, v5")
        a("v_lshl_add_u32 v%d, v1, 13, v5" % V_OW)
        a("v_add_u32 v%d, %d, v%d" % (V_OW + 1, 31744, V_OW))
        a("v_xor_b32 v6, 0x80, v%d" % V_OW)
        a("v_add_u32 v%d, %d, v6" % (V_OW + 2, 2 * 31744)); a("v_add_u32 v%d, %d, v6" % (V_OW + 3, 3 * 31744))
        a("s_lshl_b32 s%d, s%d, 8" % (S_WB, S_H)); a("s_lshl_b32 s%d, s3, 17" % S_T0); a("s_add_u32 s%d, s%d, s%d" % (S_WB, S_WB, S_T0))
        a("s_lshl_b32 s%d, s3, 12" % S_L4)
        def srd(d, nb):
            a("s_mov_b32 s%d, 0x%x" % (d + 2, nb)); a("s_mov_b32 s%d, 0x20000" % (d + 3))
        srd(SRD_WQ, 512 * 4096 * 2); srd(SRD_X, 8 * 224 * 512 * 2)
        a("s_and_b32 s%d, s3, 1" % S_E); a("s_lshl_b32 s%d, s%d, 6" % (S_T1, S_E))
        a("v_xor_b32 v6, v4, v1"); a("v_lshlrev_b32 v6, 4, v6"); a("v_lshl_add_u32 v6, v3, 10, v6")
        a("v_xor_b32 v%d, s%d, v6" % (V_OX, S_T1))
        a("v_xor_b32 v7, 64, v%d" % V_OX)
        a("v_add_u32 v%d, %d, v7" % (V_OX + 1, 7168)); a("v_add_u32 v%d, %d, v%d" % (V_OX + 2, 2 * 7168, V_OX)); a("v_add_u32 v%d, %d, v7" % (V_OX + 3, 3 * 7168))
        for j in range(4, 7): a("v_add_u32 v%d, 0x8000, v%d" % (V_OX + j, V_OX + j - 4))
        a("s_mul_i32 s%d, s%d, %d" % (S_XB, S_B, 229376)); a("s_mul_i32 s%d, s3, %d" % (S_T0, 57344)); a("s_add_u32 s%d, s%d, s%d" % (S_XB, S_XB, S_T0))
        a("s_mul_i32 s%d, s3, 7168" % S_LX)
        rot = c.get("rot", "xcd")
        if rot == "two":
            a("s_add_u32 s%d, s%d, s%d" % (S_T0, S_B, S_H)); a("s_and_b32 s%d, s%d, 1" % (S_T0, S_T0)); a("s_lshl2_add_u32 s%d, s%d, s%d" % (S_ROT, S_T0, S_ROT))
        a.add(stage_setup(0) + stage_setup(1))
        a("s_waitcnt lgkmcnt(0)")
        for d, off in ((SRD_K, 8), (SRD_V, 16), (SRD_WO, 32), (SRD_OUT, 40), (SRD_DBG, 48), (SRD_WS, 56)):
            a("s_load_dwordx2 s[%d:%d], s[0:1], %d" % (d, d + 1, off))
        a.add(flat(stage_dma(0, 0, 0)))
        st1 = stage_dma(1, 0, 0); n1 = c.get("n1", 4)
        a.add(flat(st1[:n1]))
        srd(SRD_K, 8 * 32 * 512 * 128 * 2); srd(SRD_V, 8 * 32 * 512 * 128 * 2); srd(SRD_WO, 4096 * 512 * 2)
        srd(SRD_OUT, 8 * 224 * 512 * 2); srd(SRD_DBG, 256); srd(SRD_WS, 48 << 20)
        a("s_waitcnt lgkmcnt(0)")
        if c.get("stamps"): a("s_mov_b64 s[18:19], s[%d:%d]" % (SRD_WS, SRD_WS + 1)); a("s_mov_b32 s%d, s64" % STAMP0); a("s_mov_b32 s%d, s66" % (STAMP0 + 1))
        a.stamp("S0")
        if c.get("wsoff"):
            a("s_add_u32 s%d, s%d, 0x%x" % (SRD_WS, SRD_WS, c["wsoff"] << 20)); a("s_addc_u32 s%d, s%d, 0" % (SRD_WS + 1, SRD_WS + 1))
        a("s_lshr_b32 s%d, s%d, 2" % (S_HG, S_H)); a("s_and_b32 s%d, s%d, 3" % (S_CQ, S_H))
        for ch in range(2, 8): a.add(stage_setup(ch))
        a("s_lshl_b32 s%d, s%d, 5" % (S_T0, S_B)); a("s_add_u32 s%d, s%d, s%d" % (S_T0, S_T0, S_H))
        a("s_lshl_b32 s%d, s%d, 17" % (S_KVB, S_T0)); a("s_add_u32 s%d, s%d, s%d" % (S_KVB, S_KVB, S_L4))
        a("s_lshl_b32 s%d, s%d, 2" % (S_T0, S_T0)); a("s_add_u32 s%d, s%d, s3" % (S_T0, S_T0))
        a("s_lshl_b32 s%d, s%d, 3" % (S_OB, S_HG)); a("s_add_u32 s%d, s%d, s%d" % (S_OB, S_OB, S_B)); a("s_lshl_b32 s%d, s%d, 2" % (S_OB, S_OB)); a("s_add_u32 s%d, s%d, s3" % (S_OB, S_OB))
        a("s_mul_i32 s%d, s%d, %d" % (S_OB, S_OB, 4 * 14336))
        a("s_mul_i32 s%d, s%d, 14336" % (S_OS, S_CQ)); a("s_add_u32 s%d, s%d, s%d" % (S_OS, S_OS, S_OB))
        for u in range(1, 4): a("s_add_u32 s%d, s%d, %d" % (S_OS + u, S_OS, 4096 * u))
        a("s_lshl_b32 s%d, s%d, 7" % (S_FL, S_T0)); a("s_add_u32 s%d, s%d, 0x%x" % (S_FL, S_FL, FL_OFF))
        a("s_lshl_b32 s%d, s%d, 10" % (S_XCC, S_T0)); a("s_add_u32 s%d, s%d, 0x%x" % (S_XCC, S_XCC, FLP_OFF))
        a("s_lshl_b32 s%d, s%d, 17" % (S_WOB, S_H)); a("s_lshl_b32 s%d, s3, 14" % S_T0); a("s_add_u32 s%d, s%d, s%d" % (S_WOB, S_WOB, S_T0))
        a("s_lshl_b32 s%d, s%d, 8" % (S_T0, S_CQ)); a("s_add_u32 s%d, s%d, s%d" % (S_WOB, S_WOB, S_T0))
        a("s_lshl_b32 s%d, s%d, 2" % (S_T0, S_B)); a("s_add_u32 s%d, s%d, s%d" % (S_T0, S_T0, S_CQ)); a("s_mul_i32 s%d, s%d, %d" % (S_PB, S_T0, 8 * 57344))
        a("s_lshl_b32 s%d, s3, 11" % S_T0); a("s_add_u32 s%d, s%d, s%d" % (S_PB, S_PB, S_T0)); a("s_add_u32 s%d, s%d, 0x%x" % (S_PB, S_PB, PB_OFF - 8192))
        cc = f2u(math.log2(math.e) / math.sqrt(128.0))
        a("s_mov_b32 s%d, 0x%x" % (S_C0, cc))
        a("s_cmp_lg_u32 s%d, 0" % S_NEUT); a("s_cbranch_scc1 L_noinit")
        a("s_mov_b32 s%d, 0x%x" % (S_RETRY, f2u(2.0 ** 40))); a("s_mov_b32 s%d, 0" % S_SPIN)
        for u in range(4): a("v_mov_b32 v%d, 0x7f800000" % (V_NEGM + 4 * u))
        a("L_noinit:")
        a("s_lshl_b32 s%d, s%d, 3" % (S_T1, S_CQ)); a("s_lshl_b32 s%d, 1, s%d" % (S_T0, S_T1)); a("v_mov_b32 v%d, s%d" % (V_T + 1, S_T0))
        a("s_lshl3_add_u32 s%d, s%d, s%d" % (S_T1, S_B, S_HG)); a("s_lshl_b32 s%d, s3, 8" % S_KC); a("s_lshl2_add_u32 s%d, s%d, s%d" % (S_KC, S_T1, S_KC)); a("s_add_u32 s%d, s%d, s%d" % (S_KC, S_KC, S_NEUT))
        a("v_lshlrev_b32 v%d, 4, v0" % V_L16)
        a("v_cmp_eq_u32 vcc, 0, v0"); a("v_bfrev_b32 v6, 1"); a("v_cndmask_b32 v%d, v6, 0, vcc" % V_L0)
        a("v_lshlrev_b32 v7, 7, v0"); a("s_mov_b64 vcc, 0xfe"); a("v_cndmask_b32 v%d, v6, v7, vcc" % (V_T + 8))
        a("v_and_b32 v6, 3, v0")
        a("v_xor_b32 v7, v2, v1"); a("v_lshlrev_b32 v7, 4, v7"); a("v_lshl_add_u32 v%d, v1, 8, v7" % V_OK)
        for j in (1, 2, 3): a("v_xor_b32 v%d, %d, v%d" % (V_OK + j, j << 6, V_OK))
        a("v_lshl_add_u32 v%d, v1, 8, v5" % V_OV); a("v_xor_b32 v%d, 0x80, v%d" % (V_OV + 1, V_OV))
        a("v_lshl_add_u32 v%d, v1, 10, v5" % V_OO); a("v_xor_b32 v7, 0x80, v%d" % V_OO)
        a("v_add_u32 v%d, 3072, v7" % (V_OO + 1)); a("v_add_u32 v%d, 6144, v%d" % (V_OO + 2, V_OO)); a("v_add_u32 v%d, 9216, v7" % (V_OO + 3))
        a("v_lshrrev_b32 v7, 1, v2"); a("v_xor_b32 v7, v7, v1"); a("v_lshlrev_b32 v7, 4, v7"); a("v_lshl_add_u32 v7, v2, 7, v7")
        a("s_lshr_b32 s%d, s3, 1" % S_T0); a("s_mul_i32 s%d, s%d, %d" % (S_T0, S_T0, 7 * 2048))
        a("s_lshl_b32 s%d, s%d, 13" % (S_T1, S_E)); a("s_add_u32 s%d, s%d, s%d" % (S_T2, S_T0, S_T1)); a("s_add_u32 s%d, s%d, %d" % (S_T0, S_T0, 3 * 2048))
        a("v_add_u32 v%d, s%d, v7" % (V_AX, S_T2)); a("v_xor_b32 v%d, 64, v%d" % (V_AX + 1, V_AX))
        a("v_add_u32 v%d, s%d, v7" % (V_AX + 2, S_T0)); a("v_xor_b32 v%d, 64, v%d" % (V_AX + 3, V_AX + 2))
        a("v_lshrrev_b32 v3, 2, v2"); a("v_and_b32 v4, 1, v1"); a("v_lshl_or_b32 v4, v4, 2, v3")
        a("s_lshl_b32 s%d, s%d, 1" % (S_T0, S_E)); a("v_xor_b32 v4, s%d, v4" % S_T0); a("v_lshlrev_b32 v4, 5, v4"); a("v_lshl_add_u32 v4, v6, 3, v4")
        a("v_lshl_add_u32 v7, v1, 3, v3"); a("v_lshl_add_u32 v7, v7, 8, v4"); a("v_add_u32 v%d, 0x%x, v7" % (V_AW, WQ_WIN))
        for j in range(1, 8): a("v_xor_b32 v%d, %d, v%d" % (V_AW + j, j << 5, V_AW))
        a("v_lshl_add_u32 v7, v1, 2, v3"); a("v_lshl_add_u32 v7, v7, 8, v4")
        a("s_add_u32 s%d, s%d, 0x%x" % (S_T2, S_T1, V_WIN)); a("v_add_u32 v%d, s%d, v7" % (V_AVX, S_T2))
        for j in range(1, 8): a("v_xor_b32 v%d, %d, v%d" % (V_AVX + j, j << 5, V_AVX))
        for j in range(8): a("v_xor_b32 v%d, 0x2000, v%d" % (V_AVY + j, V_AVX + j))
        a("v_and_b32 v7, 1, v1"); a("v_lshlrev_b32 v7, 1, v7"); a("v_lshrrev_b32 v3, 1, v1"); a("v_or_b32 v7, v7, v3")
        a("s_lshl_b32 s%d, s%d, 2" % (S_T0, S_E)); a("v_xor_b32 v7, s%d, v7" % S_T0); a("v_xor_b32 v7, v7, v2"); a("v_lshlrev_b32 v7, 4, v7"); a("v_lshl_add_u32 v7, v2, 8, v7")
        a("s_add_u32 s%d, s%d, 0x%x" % (S_T2, S_T1, K_WIN)); a("v_add_u32 v%d, s%d, v7" % (V_AKX, S_T2))
        for s in range(1, 4): a("v_xor_b32 v%d, %d, v%d" % (V_AKX + s, s << 6, V_AKX))
        for s in range(4): a("v_xor_b32 v%d, 0x2000, v%d" % (V_AKY + s, V_AKX + s))
        a("v_mov_b32 v7, 0x3f803f80")
        for k in range(4): a("v_accvgpr_write_b32 a%d, v7" % (A_ONE + k))
        a("s_add_u32 s%d, s%d, 0x%x" % (S_T0, S_L4, SL(2))); a("v_add_u32 v%d, s%d, v%d" % (V_SCR, S_T0, V_L16))
        for q in range(4): a("v_and_b32 v%d, 0xffffdfff, v%d" % (252 + q, V_AKX + q))
        a("s_lshl_b32 s%d, s3, 2" % S_T0); a("s_add_u32 s%d, s%d, 0x%x" % (S_T0, S_T0, LSCR)); a("v_add_u32 v%d, s%d, v%d" % (T + 5, S_T0, V_L16))
        a("v_xor_b32 v%d, 4, v%d" % (T + 6, T + 5)); a("v_xor_b32 v%d, 0x1000, v%d" % (T + 7, V_SCR)); a("v_add_u32 v1, 0x%x, v%d" % (LSCR, V_L16))
        a("v_and_b32 v%d, 7, v0" % (T + 9)); a("v_lshlrev_b32 v%d, 2, v%d" % (T + 9, T + 9))
        a("v_mov_b32 v6, 0")
        if c.get("warm"):
            for k in range(16):
                a("v_mul_u32_u24 v2, %d, v0" % (0x9e3b + 0x2f17 * k)); a("v_mul_u32_u24 v2, v2, v2"); a("v_and_b32 v2, 0x807f807f, v2"); a("v_or_b32 v2, 0x3f003f00, v2"); a("v_accvgpr_write_b32 a%d, v2" % (160 + k))
            a("s_mov_b32 s%d, 0" % S_T0); a("L_warm:")
            for m in range(16): self.ins.append(I("%s %s, %s, %s, 0" % (MF, ar(176 + 4 * (m % 4)), ar(160 + 4 * (m % 4)), ar(160 + 4 * (m // 4))))); self.ins[-1].kind = "opaque"
            a("s_add_u32 s%d, s%d, 1" % (S_T0, S_T0)); a("s_cmp_lt_u32 s%d, %d" % (S_T0, c["warm"])); a("s_cbranch_scc1 L_warm")
        a.stamp("S1")
        a.add(flat(st1[n1:]))
        a.stamp("S2")
        a("s_add_u32 s%d, s%d, s%d" % (S_T0, S_FL, S_NEUT))
        a("buffer_store_dword v6, v%d, %s, s%d offen sc1" % (V_L0, sr(SRD_WS), S_T0), "flagreset")
        a("s_add_u32 s%d, s%d, 0x%x" % (S_T0, S_T0, FL3))
        a("buffer_store_dword v6, v%d, %s, s%d offen sc1" % (V_L0, sr(SRD_WS), S_T0), "flagreset")
        a("s_add_u32 s%d, s%d, s%d" % (S_T0, S_XCC, S_NEUT))
        a("buffer_store_dword v6, v%d, %s, s%d offen sc1" % (V_T + 8, sr(SRD_WS), S_T0), "flagreset")

    def acc(self, u, j): return V_O + (u * 8 + j) * 4 if u < 3 else V_O + 96 + 4 * ACT.index(j)
    def rowmax_finish(self, M):
        a = self; T = V_T
        for u in range(4): a("v_mov_b32 v%d, v%d" % (T + u, M[u]))
        for u in range(4): a("v_permlane16_swap_b32 v%d, v%d" % (M[u], T + u))
        for u in range(4): a("v_max_f32 v%d, v%d, v%d" % (M[u], M[u], T + u))
        for u in range(4): a("v_mov_b32 v%d, v%d" % (T + u, M[u]))
        for u in range(4): a("v_permlane32_swap_b32 v%d, v%d" % (M[u], T + u))
        for u in range(4): a("v_max_f32 v%d, v%d, v%d" % (M[u], M[u], T + u))
        for u in range(4):
            for k in range(4): a("v_sub_f32 v%d, 0, v%d" % (V_NEGM + 4 * u + k, M[u]))

    def streamAB(self):
        c = self.c; T = V_T
        G = Gaps(); ring = Ring(); L = []; D = []; X = []; C = []; TV = []
        SLAT = 5; nt = c.get("nt", True)
        LEAD = c.get("leadA", 10); BOFF = c.get("boffA", 16); BUB = c.get("bubA", 5)
        xf = lambda ch, u, ks: A_XF + 32 * (ch & 1) + 8 * u + 4 * ks
        groups = [(j, [ch]) for ch in range(6) for j in range(8)] + [(j, [6]) for j in ACT] + [(j, [7]) for j in ACT] + [(j, [6, 7]) for j in (2, 3, 6, 7)]
        nA = 448
        bar = {ch: 56 * ch - BOFF for ch in range(1, 7)}; bar[0] = -1; bar[7] = 336 + 32 - BOFF
        BQ = nA - c.get("boffQ", 18)
        rel = lambda ch: bar[ch + 1] if ch < 6 else BQ
        LA = []; xfirst = {}; xlast = {}; adone = {}
        for j, chs in groups:
            us = [0, 1, 2] + ([3] if j in ACT else [])
            steps = [(ch, ks) for ch in chs for ks in range(2)]; ns = len(steps)
            m0 = G.n(); fr = []
            for k, (ch, ks) in enumerate(steps):
                reg, lo = ring.alloc(m0 + ns * (len(us) - 1) + k); fr.append(reg)
                for eh in range(2):
                    LA.append((m0 + k, Op(I("ds_read_b64_tr_b16 %s, v%d offset:%d" % (ar(reg + 2 * eh, 2), V_AW + j, WS_(ch) - WQ_WIN + ks * 8192 + eh * 1024)),
                                          max(lo, bar[ch]), min(m0 + k - LEAD, rel(ch) - BUB), hard=min(m0 + k - 1, rel(ch) - 2))))
            for u in us:
                for k, (ch, ks) in enumerate(steps):
                    A = self.acc(u, j)
                    m = G.mfma("%s %s, %s, %s, %s" % (MF, vr(A), ar(fr[k]), ar(xf(ch, u, ks)), "0" if ch == 0 and ks == 0 else vr(A)))
                    xfirst.setdefault((ch, u, ks), m); xlast[(ch, u, ks)] = m; adone[(u, j)] = m
        assert G.n() == nA
        for (ch, u, ks), m in xfirst.items():
            lo = max(bar[ch], xlast.get((ch - 2, u, ks), -1))
            LA.append((m, Op(I("ds_read_b128 %s, v%d offset:%d" % (ar(xf(ch, u, ks)), V_AX + (2 if u == 3 else 0) + ks, XS(ch) + (u * 2048 if u < 3 else 0))), lo, m - LEAD, hard=m - 1)))
        L += [o for m, o in sorted(LA, key=lambda t: t[0])]
        for o in L:
            if o.lo < bar[7] and o.use <= 368: o.hi = min(o.hi, bar[7] - BUB); o.hard = min(o.hard, bar[7] - 2)
            elif o.lo < bar[7] and o.use > 368: o.lo = bar[7]
        for ch in range(1, 8): G.pre[bar[ch] - 1] += [W(vm="A%d" % ch, lgkm0=True)]; G.pre[bar[ch]] += [I("s_barrier")]
        G.pre[BQ - 1] += [W(vm="K0", lgkm0=True)]; G.pre[BQ] += [I("s_barrier")]
        gw = BQ - BUB - 2
        for k in range(2): L.append(Op(I("ds_write_b128 v%d, %s offset:%d" % (V_SCR, vr(self.acc(3, 4 * k)), QSCR - SL(2) + k * 1024)), gw + k, gw + k, hard=BQ - 2))
        LEAD = c.get("leadB", 10); BOFF = c.get("boffB", 13); BUB = c.get("bubB", 5)
        segs = [("QK", "X", 0), ("QK", "Y", 0)]
        for i in range(8):
            segs += [("PV", "X", i)] + ([("QK", "X", i + 1)] if i < 7 else []) + [("PV", "Y", i)] + ([("QK", "Y", i + 1)] if i < 7 else [])
        pos = {}; p = nA
        for sg in segs:
            pos[sg] = p; nu = 4 if sg[1] == "X" else 3
            p += 8 * nu + (nu if sg[0] == "PV" else 0) + (4 if sg == ("QK", "X", 0) else 0)
        barB = {i: pos[("PV", "X", i)] - BOFF for i in range(8)}; barB[-1] = BQ; barB[8] = 10 ** 6
        quse = {}; sdone = {}; nuse = {}
        V_M4, V_MX, V_AKM = 240, 244, 252
        def kread(reg, lo, ad, off, use, st):
            L.append(Op(I("ds_read_b128 %s, v%d offset:%d" % (ar(reg), ad, off)), max(lo, barB[st]), min(use - LEAD, barB[st + 1] - BUB), hard=min(use - 1, barB[st + 1] - 2)))
        for op, un, i in segs:
            nu = 4 if un == "X" else 3; S = V_SX if un == "X" else V_SY
            if (op, un, i) == ("QK", "X", 0):
                for si, s in enumerate((0, 2, 1, 3)):
                    if s == 1:
                        for k in range(2): kread(A_Q + 48 + 4 * (2 * k + 1), BQ, T + 7, QSCR - SL(2) + k * 1024, G.n() + 3, -1)
                    if s == 3:
                        m0 = G.n(); fr = []
                        for q in range(4):
                            reg, lo = ring.alloc(m0 + q); fr.append(reg); kread(reg, lo, V_AKM + q, KSL(0) - K_WIN, m0 + q, -1)
                        for q in range(4):
                            m = G.mfma("%s %s, %s, %s, %s" % (MF, vr(V_M4), ar(fr[q]), ar(A_Q + 48 + 4 * q), "0" if q == 0 else vr(V_M4)))
                        mdone = m
                    for kt in range(2):
                        m0 = G.n(); reg, lo = ring.alloc(m0 + 3); kread(reg, lo, V_AKX + s, KSL(0) - K_WIN + kt * 4096, m0, -1)
                        for u in range(4):
                            Dd = S + 8 * u + 4 * kt
                            m = G.mfma("%s %s, %s, %s, %s" % (MF, vr(Dd), ar(reg), ar(A_Q + 16 * u + 4 * s), "0" if si == 0 else vr(Dd)))
                            quse.setdefault((u, s), m); sdone[(u, kt)] = m
            elif op == "QK":
                st = i - 1; ad = V_AKX if un == "X" else V_AKY
                pv0 = pos[("PV", un, i)]
                for kt in range(2):
                    m0 = G.n(); fr = []
                    for s in range(4):
                        reg, lo = ring.alloc(m0 + 4 * (nu - 1) + s); fr.append(reg)
                        kread(reg, lo, ad + s, KSL(i) - K_WIN + kt * 4096, m0 + s, st)
                    for u in range(nu):
                        Dd = S + 8 * u + 4 * kt
                        for s in range(4):
                            m = G.mfma("%s %s, %s, %s, %s" % (MF, vr(Dd), ar(fr[s]), ar(A_Q + 16 * u + 4 * s), vr(V_NEGM + 4 * u) if s == 0 else vr(Dd)))
                            if s == 0: nuse.setdefault(u, m)
                        dl = pv0 + u - 2
                        lo = max(m + SLAT, pos[("PV", "X", 0)] + 2)
                        ex = [Op(I("v_exp_f32 v%d, v%d" % (Dd + k, Dd + k)), lo, dl - 1) for k in range(4)]
                        cv = [Op(I("v_cvt_pk_bf16_f32 v%d, v%d, v%d" % (S + 8 * u + 2 * kt + k, Dd + 2 * k, Dd + 2 * k + 1)), lo, dl, dep=ex[2 * k:2 * k + 2]) for k in range(2)]
                        X += ex; C += cv
            else:
                ad = V_AVX if un == "X" else V_AVY
                first = (un == "X" and i == 0)
                for j in range(8):
                    m0 = G.n()
                    reg, lo = ring.alloc(m0 + nu - 1)
                    for t in range(2):
                        L.append(Op(I("ds_read_b64_tr_b16 %s, v%d offset:%d" % (ar(reg + 2 * t, 2), ad + j, VSL(i) - V_WIN + t * 4096)),
                                    max(lo, barB[i]), min(m0 - LEAD, barB[i + 1] - BUB), hard=min(m0 - 1, barB[i + 1] - 2)))
                    for u in range(nu):
                        O = V_O + (u * 8 + j) * 4
                        G.mfma("%s %s, %s, %s, %s" % (MF, vr(O), ar(reg), vr(S + 8 * u), "0" if first else vr(O)))
                    if j == 0:
                        for u in range(nu):
                            G.mfma("%s %s, %s, %s, %s" % (MF, ar(A_L + 4 * u), ar(A_ONE), vr(S + 8 * u), "0" if first else ar(A_L + 4 * u)))
        n = G.n()
        for i in range(8): G.pre[barB[i] - 1] += [W(vm=["V%d" % i, "K%d" % (i + 1)], lgkm0=True)]; G.pre[barB[i]] += [I("s_barrier")]
        lateq = []
        def conv(u, s):
            A = self.acc(u, 2 * s); lo = max(adone[(u, 2 * s)], adone[(u, 2 * s + 1)]) + 3; hard = quse[(u, s)] - 2
            hs = gw - 1 if u == 3 else hard
            body = [("v_mul_f32 v%d, s%d, v%d" % (A + k, S_C0, A + k), hs) for k in range(8)] + [("v_cvt_pk_bf16_f32 v%d, v%d, v%d" % (A + k, A + 2 * k, A + 2 * k + 1), hs) for k in range(4)]
            for k, (t, h) in enumerate(body):
                TV.append(Op(I(t), lo, h))
                if k == 1:
                    TV.extend(lateq); del lateq[:]
            lateq.extend([Op(I("v_permlane16_swap_b32 v%d, v%d" % (A + k, A + 2 + k)), lo, hs) for k in range(2)] +
                         [Op(I("v_accvgpr_write_b32 a%d, v%d" % (A_Q + 16 * u + 4 * s + k, A + k)), lo, hard) for k in range(4)])
        for u, s in [(0, 0), (3, 0), (1, 0), (2, 0), (3, 2), (0, 2), (1, 2), (2, 2)] + [(u, s) for s in (1, 3) for u in range(3)]: conv(u, s)
        TV.extend(lateq)
        pv0 = pos[("PV", "X", 0)]
        def maxchain(u):
            B = V_M4 if u == 3 else V_SX + 8 * u; M = V_MX + 2 * u; N = V_NEGM + 4 * u
            return ["v_max3_f32 v%d, v%d, v%d, v%d" % (M, B, B + 1, B + 2), "v_max_f32 v%d, v%d, v%d" % (M, M, B + 3), "v_mov_b32 v%d, v%d" % (M + 1, M),
                    "v_permlane16_swap_b32 v%d, v%d" % (M, M + 1), "v_max_f32 v%d, v%d, v%d" % (M, M, M + 1), "v_mov_b32 v%d, v%d" % (M + 1, M),
                    "v_permlane32_swap_b32 v%d, v%d" % (M, M + 1), "v_max_f32 v%d, v%d, v%d" % (M, M, M + 1), "v_min_f32 v%d, -v%d, v%d" % (N, M, N)] + ["v_mov_b32 v%d, v%d" % (N + k, N) for k in (1, 2, 3)]
        ch4 = {u: maxchain(u) for u in range(4)}
        lo = sdone[(2, 0)] + 3
        for k in range(9):
            for u in (0, 3, 1, 2): TV.append(Op(I(ch4[u][k]), lo, nuse[0] - 1))
        for u in (0, 1, 2, 3):
            for k in range(9, 12): TV.append(Op(I(ch4[u][k]), lo, min(nuse[u] - 1, pv0)))
        for u in range(4):
            B = V_SX + 8 * u; lo = sdone[(u, 1)] + 3; hard = pv0 + u - 2
            for t in ["v_add_f32 v%d, v%d, v%d" % (B + k, B + k, V_NEGM + 4 * u) for k in range(8)] + ["v_exp_f32 v%d, v%d" % (B + k, B + k) for k in range(8)] + \
                     ["v_cvt_pk_bf16_f32 v%d, v%d, v%d" % (B + k, B + 2 * k, B + 2 * k + 1) for k in range(4)]: TV.append(Op(I(t), lo, hard))
        win = [(("a", ch), max(bar[ch], 0), (bar[ch + 1] if ch < 7 else BQ) - 2) for ch in range(8)] + [(("b", i), barB[i], min(barB[i + 1] - 2, n - 1 - c.get("dtail", 8))) for i in range(-1, 8)]
        for (ph, i), lo, hi in win:
            lst = c["kvA" if ph == "a" else "kvB"].get(i, []); l0 = lo
            if ph == "a" and i + 2 < 8:
                mid = hi if not lst else lo + (hi - lo) * 11 // (11 + 4 * len(lst))
                ops = stage_dma(i + 2, lo, mid)
                for o in ops: o.hi += c.get("dlagA", 0); o.hard = hi
                D += ops; lo = mid
            if (ph, i) == ("b", -1):
                D.append(Op(I("buffer_atomic_add v%d, v%d, %s, s%d offen" % (T + 1, V_L0, sr(SRD_DBG), S_KC), "hello"), lo + 1, lo + 20, hard=hi))
            if (ph, i) == ("b", 6):
                D.append(Op(I("buffer_load_dword v%d, v%d, %s, s%d offen sc1" % (T + 8, T + 9, sr(SRD_DBG), S_T3), "hl"), lo + 1, lo + 3, hard=hi, pre=[I("s_lshl_b32 s%d, s%d, 5" % (S_T3, S_B))]))
            for k, (kind, ix) in enumerate(lst):
                h0 = lo + (hi - lo) * (k + 1) // len(lst)
                ops = tile_dma(kind, ix, KSL(ix) if kind == "K" else VSL(ix) if kind == "V" else WOSL[ix], l0 + 1, h0, nt)
                for j, o in enumerate(ops):
                    o.hi = lo + (hi - lo) * (4 * k + j + 1) // (4 * len(lst)); o.hard = hi
                    if c.get("even"): o.lo = max(o.lo, o.hi - c["even"])
                D += ops
        px = pos[("PV", "X", 7)]; py = pos[("PV", "Y", 7)]
        rl3 = Op(I("v_accvgpr_read_b32 v%d, a%d" % (T + 3, A_L + 12)), py - 1, n - 1); C.append(rl3)
        rl = [Op(I("v_accvgpr_read_b32 v%d, a%d" % (T + u, A_L + 4 * u)), py + 3 + u + SLAT, n - 1) for u in range(3)]; C += rl
        m1 = Op(I("v_max3_f32 v%d, v%d, v%d, v%d" % (T + 4, T, T + 1, T + 2)), py, n - 1); m2 = Op(I("v_max_f32 v%d, v%d, v%d" % (T + 4, T + 4, T + 3)), py, n - 1); C += [m1, m2]
        X += [Op(I("v_rcp_f32 v%d, v%d" % (2 + 2 * u, T + u)), py, n - 1, dep=[rl[u]]) for u in range(3)]
        for k, j in enumerate((2, 3, 6, 7)):
            L.append(Op(I("ds_write_b128 v%d, %s offset:%d" % (V_SCR, vr(V_O + (24 + j) * 4), OSCR - SL(2) + k * 1024)), px + 4 + 4 * j + 3 + SLAT, n - 1))
        L.append(Op(I("ds_write_b32 v%d, v%d" % (T + 5, T + 3)), py, n - 1, dep=[rl3]))
        L.append(Op(I("ds_write_b32 v%d, v%d offset:1024" % (T + 5, T + 4)), py, n - 1, dep=[m2]))
        schedule(G, L, D, X, C, "AB")
        spread(G, TV)
        self.gstamps(G, "a")
        self.add([W(vm="A0"), I("s_barrier")])
        self.stamp("A0")
        self.add(G.flatten())
        self.nAB = n; self.pv0 = pv0

    def ofrag(self, u, s): return V_SX + 4 * (4 * u + s if u < 3 else 12 + s // 2)
    def ostore(self, u, s):
        f = 4 * u + s if u < 3 else 12 + s // 2
        return I("buffer_store_dwordx4 %s, v%d, %s, s%d offen offset:%d sc1" % (vr(V_SX + 4 * f), V_L16, sr(SRD_WS), S_OS + opos(u, s) // 4, (opos(u, s) % 4) * 1024), "ost%d" % (s // 2))
    def transBC(self):
        a = self; T = V_T; c = self.c
        self.tail = []
        a.add([W(vm=["WO(0, 0)", "WO(0, 1)"], lgkm0=True), I("s_barrier")])
        a.stamp("M")
        a("ds_read_b128 %s, v1 offset:1024" % vr(V_NEGM))
        a("ds_read_b32 v%d, v%d" % (T + 4, T + 6))
        for k, j in enumerate((2, 3, 6, 7)): a("ds_read_b128 %s, v%d offset:%d" % (vr(V_O + (24 + j) * 4), T + 7, OSCR - SL(2) + k * 1024))
        def norm(u, s, rl):
            O = V_O + (u * 8 + 2 * s) * 4; F = self.ofrag(u, s)
            for k in range(4): a("v_pk_mul_f32 %s, %s, %s op_sel_hi:[1,0]" % (vr(O + 2 * k, 2), vr(O + 2 * k, 2), vr(rl, 2)))
            for k in range(4): a("v_cvt_pk_bf16_f32 v%d, v%d, v%d" % (F + k, O + 2 * k, O + 2 * k + 1))
        for s in range(2):
            for u in range(3): norm(u, s, 2 + 2 * u); a.add([self.ostore(u, s)])
        a("v_max3_f32 v%d, v%d, v%d, v%d" % (V_NEGM, V_NEGM, V_NEGM + 1, V_NEGM + 2)); a("v_max_f32 v%d, v%d, v%d" % (V_NEGM, V_NEGM, V_NEGM + 3))
        a("v_add_f32 v%d, v%d, v%d" % (T + 3, T + 3, T + 4))
        a("v_cmp_lt_f32 vcc, s%d, v%d" % (S_RETRY, V_NEGM))
        a("v_rcp_f32 v%d, v%d" % (T, T + 3))
        a("s_cbranch_vccnz L_fallback")
        for j in ACT:
            O = V_O + (24 + j) * 4
            for k in range(2): a("v_pk_add_f32 %s, %s, %s" % (vr(O + 2 * k, 2), vr(O + 2 * k, 2), vr(O + 8 + 2 * k, 2)))
        a("s_barrier")
        norm(3, 0, T); a.add([self.ostore(3, 0)])
        a("s_lshl_b32 s%d, s%d, 1" % (S_T0, S_E)); a("s_xor_b32 s%d, s%d, s%d" % (S_T0, S_T0, S_HG)); a("s_lshl_b32 s%d, s%d, 5" % (S_T0, S_T0))
        a("s_or_b32 s%d, s%d, 0x%x" % (S_T0, S_T0, V_WIN))
        for k in range(16): a("v_xor_b32 v%d, s%d, v%d" % (V_AVX + k, S_T0, V_AVX + k))
        self.normB = lambda: [norm(u, s, T if u == 3 else 2 + 2 * u) for s in (2, 3) for u in range(4) if not (u == 3 and s & 1)]

    def spin(self, name, load):
        for s in ["L_%s_spin:" % name, "s_add_u32 s%d, s%d, 1" % (S_SPIN, S_SPIN), "s_cmp_ge_u32 s%d, 0x%x" % (S_SPIN, SPIN_MAX), "s_cbranch_scc1 L_%s_ok" % name,
                  "s_sleep 1", load, "s_waitcnt vmcnt(0)", "s_branch L_%s" % name]: self.tail.append(I(s))

    def phaseC(self):
        a = self; c = self.c; T = V_T
        LEAD = c.get("leadC", 10)
        acc = lambda u, j: V_O + (j * 4 + u) * 4
        fidx = lambda u, s: 4 * u + s if u < 3 else 12 + s // 2
        def bfrag(hh, u, s):
            return vr(V_SX + 4 * fidx(u, s)) if hh == 0 else ar(56 * (hh - 1) + 4 * fidx(u, s))
        JO = [1, 2, 3, 4, 5, 6, 7, 0]
        started = set(); done = {}; firstuse = {}
        def build(groups):
            G = Gaps(); ring = Ring(); L = []
            for grp in groups:
                m0 = G.n(); fr = []
                seq = [(u, k) for u in range(4) for k, (hh, j, s) in enumerate(grp) if not (u == 3 and s & 1)]
                for k, (hh, j, s) in enumerate(grp):
                    us = [i for i, (u, kk) in enumerate(seq) if kk == k]
                    reg, lo = ring.alloc(m0 + us[-1]); fr.append(reg)
                    slot = WOSL[(hh, s >> 1)]
                    ad = (V_AVX if slot < SL(8) else V_NEGM) + (8 if s & 1 else 0) + j
                    off = slot - (0 if hh == 0 else SL(4) if slot < SL(8) else SL(8))
                    for t in range(2):
                        L.append(Op(I("ds_read_b64_tr_b16 %s, v%d offset:%d" % (ar(reg + 2 * t, 2), ad, off + t * 4096)), lo, m0 + us[0] - LEAD, hard=m0 + us[0] - 1))
                for u, k in seq:
                    hh, j, s = grp[k]; A = acc(u, j)
                    m = G.mfma("%s %s, %s, %s, %s" % (MF, vr(A), ar(fr[k]), bfrag(hh, u, s), vr(A) if (u, j) in started else "0"))
                    started.add((u, j)); done[(u, j)] = m; firstuse.setdefault((hh, u, s), m)
            return G, L
        G, L = build([[(0, j, s) for s in range(4)] for j in JO]); D = []; C = []
        sp = c.get("bspace", 12); k = 0; fa = c.get("flagAat", 4)
        for s in (2, 3):
            for u in range(4):
                if u == 3 and s & 1: continue
                if k == fa: D.append(Op(I("buffer_store_dword v7, v%d, %s, s%d offen sc1" % (V_L0, sr(SRD_WS), S_FL), "flag"), sp * k - 2, sp * k - 1, hard=G.n() - 1, pre=[W(vm="ost0")]))
                D.append(Op(self.ostore(u, s), sp * k, sp * k + 1, hard=G.n() - 1)); k += 1
        wa = Op(I("v_add_u32 v6, 0x%x, v%d" % (WOSL[(3, 1)] - SL(2), V_SCR)), 0, G.n() - 1); C.append(wa)
        for j in range(4): L.append(Op(I("ds_write_b128 v6, %s offset:%d" % (ar(A_XF + 4 * j), j * 1024)), 70 + 3 * j, G.n() - 12, dep=[wa]))
        for k in range(16): C.append(Op(I("v_add_u32 v%d, 0x%x, v%d" % (V_NEGM + k, SL(8), V_AVX + k)), 0, G.n() - 1))
        for u in range(4): C.append(Op(I("v_add_u32 v%d, %d, v%d" % (V_OK + u, 4096 * u, V_L16)), 0, G.n() - 1))
        F = S_WOB
        for t in [                  "v_lshlrev_b32 v2, 14, v0", "v_xor_b32 v2, s%d, v2" % S_XCC, "v_lshl_add_u32 v%d, v0, 7, v2" % V_OV,
                  "v_and_b32 v4, 15, v0", "v_lshlrev_b32 v4, 10, v4", "v_lshrrev_b32 v2, 4, v0", "v_lshl_add_u32 v%d, v2, 3, v4" % (V_OV + 1), "v_xor_b32 v1, 0x1000, v%d" % V_SCR]:
            C.append(Op(I(t), 0, G.n() - 1))
        schedule(G, L, D, [], C, "P0"); self.gstamps(G, "p")
        sal = ["s_xor_b32 s%d, s%d, 0x%x" % (87 + hh, S_FL, hh << 9) for hh in (1, 2, 3)] + ["s_add_u32 s91, s%d, 0x%x" % (S_FL, FL3)]
        for hh in (1, 2, 3):
            sal += ["s_xor_b32 s%d, s%d, %d" % (S_T0, S_CQ, hh), "s_mul_i32 s%d, s%d, 14336" % (S_T0, S_T0), "s_add_u32 s%d, s%d, s%d" % (S_XB + hh - 1, S_T0, S_OB)]
        sal += ["s_mul_i32 s%d, s%d, 57344" % (S_LX, S_HG), "s_add_u32 s%d, s%d, s%d" % (S_LX, S_LX, S_PB),
                "s_mul_i32 s%d, s%d, 224" % (S_T0, S_B), "s_lshr_b32 s%d, s3, 1" % S_T1, "s_mul_i32 s%d, s%d, 112" % (S_T1, S_T1), "s_add_u32 s%d, s%d, s%d" % (S_T0, S_T0, S_T1),
                "s_lshl_b32 s%d, s%d, 10" % (S_T0, S_T0), "s_lshl_b32 s%d, s%d, 8" % (S_T1, S_CQ), "s_add_u32 s%d, s%d, s%d" % (S_T0, S_T0, S_T1),
                "s_lshl_b32 s%d, s%d, 5" % (S_T1, S_HG), "s_add_u32 s%d, s%d, s%d" % (S_T0, S_T0, S_T1),
                "s_lshl_b32 s%d, s%d, 16" % (S_T1, S_E), "s_add_u32 s%d, s%d, s%d" % (S_T1, S_T1, S_T0), "s_add_u32 s%d, s%d, %d" % (S_T2, S_T0, 48 * 1024)]
        g = 1
        for t in sal:
            while G.pre[g] or any(x.kind == "vm" for x in G.mem[g]): g += 1
            G.pre[g].append(I(t)); g += 2
        spA = ["s_buffer_load_dword s%d, %s, s%d glc" % (83 + hh, sr(SRD_WS), 87 + hh) for hh in (1, 2, 3)]
        spB = ["s_buffer_load_dword s%d, %s, s%d offset:0x%x glc" % (83 + hh, sr(SRD_WS), 87 + hh, FL3) for hh in (1, 2, 3)]
        chk3 = ["s_waitcnt lgkmcnt(0)", "s_and_b32 s84, s84, s85", "s_and_b32 s84, s84, s86"]
        G.pre[G.n() - c.get("spoffA", 6) - 3] += [W(lgkm0=True)]
        for k in range(3): G.pre[G.n() - c.get("spoffA", 6) - 2 + k] += [I(spA[k])]
        a.add(G.head); G.head = []
        self.normB()
        a("v_mov_b32 v7, 1")
        hz = ["v_subrev_u32 v2, 0x01010101, v%d" % (T + 8), "v_not_b32 v3, v%d" % (T + 8), "v_and_b32 v2, v2, v3", "v_and_b32 v2, 0x80808080, v2", "v_cmp_ne_u32 vcc, 0, v2", "s_cbranch_vccnz L_hello_spin"]
        for t in hz: a(t)
        a("L_hello_ok:")
        for t in ["L_hello_spin:", "s_add_u32 s%d, s%d, 1" % (S_SPIN, S_SPIN), "s_cmp_ge_u32 s%d, 0x%x" % (S_SPIN, SPIN_MAX), "s_cbranch_scc1 L_hello_ok", "s_sleep 4",
                  "buffer_load_dword v%d, v%d, %s, s%d offen sc1" % (T + 8, T + 9, sr(SRD_DBG), S_T3), "s_waitcnt vmcnt(0)"] + hz + ["s_branch L_hello_ok"]: self.tail.append(I(t))
        a.stamp("C0")
        a.add(G.flatten())
        a.stamp("P1")
        flB = "buffer_store_dword v7, v%d, %s, s91 offen sc1" % (V_L0, sr(SRD_WS))
        def sspin(name, lds3):
            for t in ["L_%s_spin:" % name, "s_add_u32 s%d, s%d, 1" % (S_SPIN, S_SPIN), "s_cmp_ge_u32 s%d, 0x%x" % (S_SPIN, SPIN_MAX), "s_cbranch_scc1 L_%s_ok" % name] + lds3 + ["s_branch L_%s" % name]: self.tail.append(I(t))
            return [I(t) for t in ["L_%s:" % name] + chk3 + ["s_cbranch_scc0 L_%s_spin" % name, "L_%s_ok:" % name]]
        a.add(sspin("poll", spA))
        a.stamp("P2")
        s0 = c.get("s0", [1, 2, 3, 4, 5, 6, 7]); s1 = c.get("s1", [1, 2, 3, 4, 5]); s2 = c.get("s2", [])
        groups = [[(hh, j, 0)] for hh in (1, 2, 3) for j in s0]
        groups += [[(hh, j, 1) for hh in (1, 2, 3)] for j in s1]
        groups += [[(hh, j, 2) for hh in (1, 2, 3)] for j in s2]
        for j in JO:
            for s, early in enumerate((s0, s1, s2, [])):
                if j not in early: groups.append([(hh, j, s) for hh in (1, 2, 3)])
        G, L = build(groups); D = []; X = []; C = []
        n = G.n()
        lds = []
        for s in range(4):
            for hh in (1, 2, 3):
                for u in range(4):
                    if u == 3 and s & 1: continue
                    f = fidx(u, s)
                    lds.append((I("buffer_load_dwordx4 %s, v%d, %s, s%d offen offset:%d sc1" % (ar(56 * (hh - 1) + 4 * f), V_OK + opos(u, s) // 4, sr(SRD_WS), S_XB + hh - 1, (opos(u, s) % 4) * 1024), "of"), firstuse[(hh, u, s)]))
        n0 = c.get("n0", 12); n1 = c.get("n1c", 17); sp = c.get("ospace", 3); gP = c.get("gP", 20); gB = c.get("gB", 44)
        a.add([x[0] for x in lds[:n0]])
        for k in range(16): a("v_add_u32 v%d, 0x%x, v%d" % (V_AVX + k, SL(4), V_AVX + k))
        a("v_bfrev_b32 v6, 1"); self.pubsetup = len(self.ins)
        a.add([W(vm=["ost1"])]); a(flB, "flag")
        a("s_barrier")
        a.stamp("P3")
        for k in range(n0, 21): D.append(Op(lds[k][0], sp * (k - n0), sp * (k - n0), hard=min(gB - 1, lds[k][1] - 1)))
        for k in range(3): G.pre[gP + k] += [I(spB[k])]
        G.pre[gB] += sspin("pollb", spB)
        for k in range(21, 42): D.append(Op(lds[k][0], gB + 1 + sp * (k - 21), gB + 1 + sp * (k - 21), hard=lds[k][1] - 1))
        def pub(lo, hi):
            m = sum(1 << k for k in range(lo, hi + 1))
            return [I("s_mov_b64 exec, 0x%x" % m), I("buffer_store_dword v7, v%d, %s, 0 offen sc1" % (V_OV, sr(SRD_WS)), "flag2"), I("s_mov_b64 exec, -1")]
        sp2 = lambda lo, hi=7: ["s_buffer_load_dword s%d, %s, s%d offset:%d glc" % (88 + j, sr(SRD_WS), S_XCC, 128 * j) for j in range(lo, hi + 1)]
        pubs = c.get("pubs", {5: 2, 6: 3, 7: 4, 8: 5})
        pubgap = {}
        for idx, j in enumerate(range(1, 8)):
            B = (V_AKX if idx & 1 else V_T)
            last = max(done[(u, j)] for u in range(4))
            prev = max(done[(u, j - 2)] for u in range(4)) + 13 if j > 2 else 0
            cv = {}
            for u in (3, 0, 1, 2):
                for k in range(2):
                    cv[(u, k)] = Op(I("v_cvt_pk_bf16_f32 v%d, v%d, v%d" % (B + 2 * u + k, acc(u, j) + 2 * k, acc(u, j) + 2 * k + 1)), max(done[(u, j)] + 5, prev), min(last + 9, n - 3))
                    C.append(cv[(u, k)])
            st = [I("buffer_store_dwordx4 %s, v%d, %s, s%d offen offset:%d sc1" % (vr(B + 4 * hf), V_L16, sr(SRD_WS), S_SO, hf * 1024), "pst%d" % j) for hf in range(2)]
            pre = [I("s_xor_b32 s%d, s%d, %d" % (S_SO, S_HG, j)), I("s_mul_i32 s%d, s%d, 57344" % (S_SO, S_SO)), I("s_add_u32 s%d, s%d, s%d" % (S_SO, S_SO, S_PB)), I("s_add_u32 s%d, s%d, %d" % (S_SO, S_SO, j * 8192))]
            if j in pubs: pubgap[j] = done[(1, j)] + 3
            D.append(Op(st[0], min(done[(1, j)] + 6, n - 2), last + 5, hard=min(last + 10, n - 2), pre=pre, dep=[cv[(u, k)] for u in (0, 1) for k in range(2)]))
            D.append(Op(st[1], min(last + 6, n - 1), last + 7, hard=min(last + 11, n - 1), dep=[cv[(u, k)] for u in (2, 3) for k in range(2)]))
        if 8 in pubs: pubgap[8] = n - c.get("puboff", 12)
        npub = 0
        for j in sorted(pubs):
            r = V_OO + sorted(pubs).index(j)
            self.ins[self.pubsetup:self.pubsetup] = [I("s_mov_b64 vcc, 0x%x" % sum(1 << k for k in range(npub + 1, pubs[j] + 1))), I("v_cndmask_b32 v%d, v6, v%d, vcc" % (r, V_OV))]
            G.pre[pubgap[j] - 1] += [W(vm="pst%d" % pubs[j])]
            G.mem[pubgap[j]].append(I("buffer_store_dword v7, v%d, %s, 0 offen sc1" % (r, sr(SRD_WS)), "flag2")); G.pre[pubgap[j]].append(I("L_pub%d:" % j)); npub = pubs[j]
        schedule(G, L, D, X, C, "phaseC"); self.gstamps(G, "c")
        NE = c.get("nearly", 3); NB = c.get("nblock", 5)
        G.pre[n - c.get("spoffP", 8) - 1] += [W(lgkm0=True)]
        for k, t in enumerate(sp2(1, NE)): G.pre[n - c.get("spoffP", 8) + k] += [I(t)]
        self.add(G.flatten())
        a.stamp("C1"); a.stamp("spin0")
        def red(j):
            for d in range(8):
                x = acc(0, j) + d; t = acc(2, j) + 2 * (d & 3)
                a("v_lshlrev_b32 v%d, 16, v%d" % (t, x)); a("v_and_b32 v%d, 0xffff0000, v%d" % (t + 1, x))
                a("v_pk_add_f32 %s, %s, %s" % (vr(V_O + 2 * d, 2), vr(V_O + 2 * d, 2), vr(t, 2)))
        NE = c.get("nearly", 3); NB = c.get("nblock", 5)
        a("s_waitcnt lgkmcnt(0)")
        def ldin(j, hidden=False):
            a("s_add_u32 s%d, s%d, %d" % (S_SO, S_LX, j * 8192))
            for hf in range(2):
                a("buffer_load_dwordx4 %s, v%d, %s, s%d offen offset:%d sc1" % (vr(acc(hf, j)), V_L16, sr(SRD_WS), S_SO, hf * 1024), "in%d" % j)
                if hidden: self.ins[-1].kind = "opaque"
        def block(j):
            a("s_cmp_eq_u32 s%d, 0" % (88 + j)); a("s_cbranch_scc1 L_f%d_%s" % (j, "pub" if j <= NE else "spin")); a("L_f%d_ok:" % j)
            t = []
            if j <= NE: t += ["L_f%d_pub:" % j, "s_waitcnt vmcnt(0)"] + [x.t for x in pub(npub + 1, 7)]
            t += ["L_f%d_spin:" % j, "s_add_u32 s%d, s%d, 1" % (S_SPIN, S_SPIN), "s_cmp_ge_u32 s%d, 0x%x" % (S_SPIN, SPIN_MAX), "s_cbranch_scc1 L_f%d_ok" % j] + sp2(j, NE if j <= NE else 7) + ["s_waitcnt lgkmcnt(0)", "s_cmp_eq_u32 s%d, 0" % (88 + j), "s_cbranch_scc1 L_f%d_spin" % j, "s_branch L_f%d_ok" % j]
            for x in t: self.tail.append(I(x))
        for j in range(1, NB + 1):
            block(j); ldin(j)
            if j == NE:
                a.stamp("T0"); a.stamp("spin1")
                for k in range(npub + 1, 8):
                    if k == 7: a("\n".join(sp2(NE + 1)))
                    a.add([W(vm="pst%d" % k)] + pub(k, k))
                a("s_waitcnt lgkmcnt(0)")
                a.stamp("T1"); a.stamp("spin2")
        a("s_mov_b32 s%d, %d" % (S_T0, NB + 1))
        ntry = [0]
        def tryall():
            ntry[0] += 1
            a("s_waitcnt lgkmcnt(0)")
            for j in range(NB + 1, 8):
                lab = "L_try%d_%d" % (ntry[0], j)
                a("s_cmp_lg_u32 s%d, %d" % (S_T0, j)); a("s_cbranch_scc1 %s" % lab); a("s_cmp_eq_u32 s%d, 0" % (88 + j)); a("s_cbranch_scc1 %s" % lab)
                ldin(j, True); a("s_add_u32 s%d, s%d, 1" % (S_T0, S_T0)); a("%s:" % lab)
        tryall()
        for j in range(1, NB + 1):
            if j in c.get("tryat", (1, 3)): a("\n".join(sp2(NB + 1)))
            red(j)
            if j in c.get("tryat", (1, 3)): tryall()
        a.stamp("T2"); a.stamp("spin3")
        for j in range(NB + 1, 8):
            a("s_cmp_gt_u32 s%d, %d" % (S_T0, j)); a("s_cbranch_scc1 L_have%d" % j)
            block(j); ldin(j, True); a("L_have%d:" % j)
        for j in range(NB + 1, 8):
            a("s_waitcnt vmcnt(%d)" % (2 * (7 - j))); red(j)
        a.stamp("T3")
        a("ds_write_b128 v%d, %s offset:%d" % (V_SCR, vr(acc(3, 0)), OSCR - SL(2)))
        osc = c.get("outsc", "")
        for u in range(3):
            for k in range(2): a("v_cvt_pk_bf16_f32 v%d, v%d, v%d" % (T + 2 * u + k, acc(u, 0) + 2 * k, acc(u, 0) + 2 * k + 1))
        a.add([W(lgkm0=True), I("s_barrier")])
        a("ds_read_b128 %s, v%d offset:%d" % (vr(4), 1, OSCR - SL(2)))
        for u in range(3):
            a("buffer_store_dwordx2 %s, v%d, %s, s%d offen%s" % (vr(T + 2 * u, 2), V_OV + 1, sr(SRD_OUT), S_T1, osc))
            if u < 2: a("s_add_u32 s%d, s%d, 16384" % (S_T1, S_T1))
        a("s_cmp_eq_u32 s%d, 1" % S_E); a("s_cbranch_scc1 L_fin")
        for k in range(2): a("v_pk_add_f32 %s, %s, %s" % (vr(4 + 2 * k, 2), vr(4 + 2 * k, 2), vr(acc(3, 0) + 2 * k, 2)))
        for k in range(2): a("v_cvt_pk_bf16_f32 v%d, v%d, v%d" % (2 + k, 4 + 2 * k, 5 + 2 * k))
        a("buffer_store_dwordx2 %s, v%d, %s, s%d offen%s" % (vr(2, 2), V_OV + 1, sr(SRD_OUT), S_T2, osc))
        a("L_fin:")

    def fallback(self):
        t = lambda s: self.tail.append(I(s)); T = V_T
        t("L_fallback:")
        t("s_waitcnt vmcnt(0) lgkmcnt(0)"); t("s_barrier")
        t("s_mov_b32 s%d, 0x7f800000" % S_RETRY); t("s_mov_b32 s%d, 0" % S_KC)
        M = [V_NEGM + 4 * u for u in range(4)]
        for u in range(4): t("v_mov_b32 v%d, 0xff800000" % M[u])
        t("L_fb_loop:")
        t("s_add_u32 m0, s%d, 0x%x" % (S_L4, KSL(0))); t("s_add_u32 s%d, s%d, s%d" % (S_SO, S_KVB, S_KC))
        for j in range(4): t("buffer_load_dwordx4 v%d, %s, s%d offen offset:%d lds" % (V_OK + j, sr(SRD_K), S_SO, j * 1024))
        t("s_waitcnt vmcnt(0)"); t("s_barrier")
        for ad in (V_AKX, V_AKY):
            for kt in range(2):
                for s in range(4): t("ds_read_b128 %s, v%d offset:%d" % (ar(A_XF + 4 * s), ad + s, KSL(0) - K_WIN + kt * 4096))
                t("s_waitcnt lgkmcnt(0)")
                for u in range(4):
                    for s in range(4):
                        Dd = V_SY + 4 * u
                        t("%s %s, %s, %s, %s" % (MF, vr(Dd), ar(A_XF + 4 * s), ar(A_Q + 16 * u + 4 * s), "0" if s == 0 else vr(Dd)))
                t("s_nop 7")
                for u in range(4):
                    Dd = V_SY + 4 * u
                    t("v_max3_f32 v%d, v%d, v%d, v%d" % (M[u], M[u], Dd, Dd + 1)); t("v_max3_f32 v%d, v%d, v%d, v%d" % (M[u], M[u], Dd + 2, Dd + 3))
                t("s_nop 1")
        t("s_barrier")
        t("s_add_u32 s%d, s%d, 0x4000" % (S_KC, S_KC)); t("s_cmp_lt_u32 s%d, 0x20000" % S_KC); t("s_cbranch_scc1 L_fb_loop")
        for u in range(4): t("v_mov_b32 v%d, v%d" % (V_SY + u, M[u]))
        save = self.ins; self.ins = self.tail
        self.rowmax_finish([V_SY + u for u in range(4)])
        self.ins = save
        t("s_mov_b32 s%d, 0x40000000" % S_NEUT); t("s_branch L_restart")

    def build(self):
        a = self
        self.prologue(); self.streamAB(); self.stamp("B1"); self.transBC(); self.phaseC()
        self.fallback()
        ex = self.c.get("exp", "")
        if ex:
            seen = 0; keep = []
            for i in self.ins:
                if i.kind == "mfma": seen += 1
                if 0 < seen < self.nAB:
                    if "d" in ex and i.kind == "vm" and i.lds: continue
                    if "b" in ex and i.op == "s_barrier": continue
                    if "v" in ex and i.kind == "pseudo": i.need = (None, i.need[1])
                    if "l" in ex and i.kind == "pseudo": i.need = (i.need[0], False)
                    if "x" in ex and i.op == "v_exp_f32": continue
                if "v" in ex and i.kind == "vm" and i.lds and seen: keep.append(I("s_waitcnt vmcnt(40)"))
                if i.op == "s_cbranch_vccnz" and "fallback" in i.t: continue
                keep.append(i)
            self.ins = keep
        main = insert_waits(self.ins, AGE=self.c.get("age", 8), MINAGE=self.c.get("minage", 6))
        main, n1 = fix_hazards(main, self.c.get("verbose"))
        tail, n2 = fix_hazards(self.tail)
        verify_waits(main)
        est = estimate(main); nb = self.nAB
        sys.stderr.write("issue estimate A(0..335) %d  trans(336..pv0) %d  B %d  P0 %d  C %d; waits %d\n" % (sum(est[:336]), sum(est[336:self.pv0]), sum(est[self.pv0:nb - 1]), sum(est[nb:nb + 111]), sum(est[nb + 112:]), sum(1 for i in main if i.op == "s_waitcnt")))
        sys.stderr.write("hazard pads %d, instructions %d\n" % (n1, len(main) + len(tail)))
        A = Asm()
        for i in main:
            if i.kind == "label": A.raw(i.t)
            else: A(i.t)
        if self.c.get("stamps"):
            A("s_waitcnt vmcnt(0)")
            n = 2 + len(self.c["stamps"].split(","))
            for i in self.stamp_at(n - 1): A(i.t)
            A("s_lshl2_add_u32 s%d, s2, s3" % S_T0); A("s_mul_i32 s%d, s%d, %d" % (S_T0, S_T0, 16 * n)); A("s_add_u32 s%d, s%d, 0x%x" % (S_T0, S_T0, STAMP_OFF))
            A("s_mov_b64 exec, 1"); A("v_mov_b32 v4, s%d" % S_T0); A("v_mov_b32 v3, 0")
            for k in range(n):
                for h in range(2):
                    A("v_mov_b32 v2, s%d" % (STAMP0 + 2 * k + h)); A("global_store_dwordx2 v4, v[2:3], s[18:19] offset:%d" % (8 * (k + h * n))); A("s_nop 1")
            sys.stderr.write("stamps: %d\n" % (2 * n))
        A.label("L_end"); A("s_endpgm")
        for i in tail:
            if i.kind == "label": A.raw(i.t)
            else: A(i.t)
        A.label("L_codeend")
        return A.text()

def reduce_kernel():
    a = Asm()
    a("s_cmp_ge_u32 s2, 256"); a("s_cbranch_scc1 R_end")
    a("s_load_dwordx2 s[4:5], s[0:1], 40"); a("s_load_dwordx2 s[6:7], s[0:1], 56")
    a("v_lshrrev_b32 v1, 6, v0"); a("v_and_b32 v0, 63, v0"); a("v_readfirstlane_b32 s3, v1"); a("v_lshlrev_b32 v2, 4, v0")
    a("s_waitcnt lgkmcnt(0)")
    a("s_mov_b32 s8, s4"); a("s_and_b32 s9, s5, 0xffff"); a("s_mov_b32 s10, %d" % (8 * 224 * 512 * 2)); a("s_mov_b32 s11, 0x20000")
    a("s_mov_b32 s12, s6"); a("s_and_b32 s13, s7, 0xffff"); a("s_mov_b32 s14, 0x%x" % WS_BYTES); a("s_mov_b32 s15, 0x20000")
    a("s_lshl_b32 s16, s2, 16"); a("s_lshl_b32 s17, s3, 11"); a("s_add_u32 s16, s16, s17"); a("s_add_u32 s16, s16, 0x%x" % PB_OFF)
    for hg in range(8):
        a("s_add_u32 s17, s16, %d" % (hg * 8192)); a("s_xor_b32 s18, s17, 2048")
        a("buffer_load_dwordx4 %s, v2, s[12:15], s17 offen" % vr(32 + 12 * hg))
        a("buffer_load_dwordx4 %s, v2, s[12:15], s17 offen offset:1024" % vr(36 + 12 * hg))
        a("buffer_load_dwordx2 %s, v2, s[12:15], s18 offen offset:1032" % vr(40 + 12 * hg, 2))
    a("s_lshr_b32 s19, s2, 5"); a("s_mul_i32 s19, s19, 224"); a("s_lshr_b32 s20, s3, 1"); a("s_mul_i32 s20, s20, 112"); a("s_add_u32 s19, s19, s20")
    a("s_lshl_b32 s19, s19, 10"); a("s_and_b32 s20, s2, 31"); a("s_lshl_b32 s20, s20, 5"); a("s_add_u32 s19, s19, s20")
    a("s_and_b32 s20, s3, 1"); a("s_lshl_b32 s21, s20, 16"); a("s_add_u32 s21, s21, s19"); a("s_add_u32 s22, s19, %d" % (48 * 1024))
    a("v_and_b32 v3, 15, v0"); a("v_lshlrev_b32 v3, 10, v3"); a("v_lshrrev_b32 v4, 4, v0"); a("v_lshl_add_u32 v3, v4, 3, v3")
    for k in range(16): a("v_mov_b32 v%d, 0" % (8 + k))
    for hg in range(8):
        a("s_waitcnt vmcnt(%d)" % (21 - 3 * hg))
        for d in range(10):
            src = 32 + 12 * hg + d; dd = d if d < 8 else d - 2
            a("v_lshlrev_b32 v4, 16, v%d" % src); a("v_and_b32 v5, 0xffff0000, v%d" % src)
            a("v_add_f32 v%d, v%d, v4" % (8 + 2 * dd, 8 + 2 * dd)); a("v_add_f32 v%d, v%d, v5" % (9 + 2 * dd, 9 + 2 * dd))
    for d in range(8): a("v_cvt_pk_bf16_f32 v%d, v%d, v%d" % (24 + d, 8 + 2 * d, 9 + 2 * d))
    for u in range(3):
        a("buffer_store_dwordx2 %s, v3, s[8:11], s21 offen" % vr(24 + 2 * u, 2)); a("s_add_u32 s21, s21, 16384")
    a("s_cmp_eq_u32 s20, 1"); a("s_cbranch_scc1 R_end")
    a("buffer_store_dwordx2 %s, v3, s[8:11], s22 offen" % vr(30, 2))
    a.label("R_end"); a("s_endpgm")
    return a.text()

DEFAULT = dict(
    kvA={5: [("K", 0)], 6: [("V", 0)], 7: [("K", 1), ("V", 1)]},
    kvB={-1: [("K", 2)], 0: [("V", 2), ("K", 3)], 1: [("V", 3), ("K", 4)], 2: [("V", 4), ("K", 5)], 3: [("V", 5), ("K", 6)], 4: [("V", 6), ("K", 7)],
         5: [("V", 7), ("WO", (0, 0)), ("WO", (0, 1))], 6: [("WO", (1, 0)), ("WO", (2, 0)), ("WO", (3, 0))], 7: [("WO", (1, 1)), ("WO", (2, 1)), ("WO", (3, 1))]},
    touch_n=21, map=1, rot='two', wotouch=99,
)
HEADER = open("standalone__gqa_block_cached__near_ridge.s.ref").read().split("; Override")[0]

def generate(fn, **kw):
    cfg = dict(DEFAULT); cfg.update(kw); OLAY[0] = cfg.get("olay", 1)
    body = K(cfg).build()
    ks = [(KN, body, 256, 256, 163840, 512, 256)]
    open(fn, "w").write(wrap(ks, HEADER))

if __name__ == "__main__":
    import ast
    kw = {}
    for x in sys.argv[2:]:
        k, v = x.split("=", 1)
        try: v = ast.literal_eval(v)
        except Exception: pass
        kw[k] = v
    generate(sys.argv[1], **kw)
```

```python
import sys, math, struct
from asmlib import Asm, wrap, KN, STAMP_OFF
from stream import *

MF = "v_mfma_f32_16x16x32_bf16"
def vr(b, n=4): return "v[%d:%d]" % (b, b + n - 1)
def ar(b, n=4): return "a[%d:%d]" % (b, b + n - 1)
def sr(b, n=4): return "s[%d:%d]" % (b, b + n - 1)
def f2u(x): return struct.unpack("<I", struct.pack("<f", x))[0]

S_WG, S_W = 2, 3
SRD_X, SRD_WQ, SRD_K, SRD_V, SRD_WO, SRD_WS, SRD_OUT, SRD_DBG = 20, 24, 28, 32, 36, 40, 44, 48
S_B, S_H, S_HG, S_CQ, S_E, S_ROT = 4, 5, 6, 7, 8, 9
S_XB, S_WB, S_KVB, S_WOB, S_LX, S_L4 = 10, 11, 12, 13, 14, 15
S_OB, S_PB = 16, 17
S_C0 = 52
S_NEUT = 53
S_SO = 54
S_T0, S_T1, S_T2, S_T3 = 55, 56, 57, 58
S_XCC, S_RETRY, S_FL = 59, 60, 61
S_KC = 62
S_SPIN = 63
S_OS = 98
SPIN_MAX = 1 << 20
STAMP0 = 68
S_AS = 84
V_OK, V_OV, V_OO = 8, 12, 14
V_L16, V_L0, V_POLL, V_SCR = 18, 19, 20, 21
V_AKX, V_AKY, V_AVX, V_AVY = 22, 26, 30, 38
V_T = 46
V_SX, V_SY = 56, 88
V_NEGM = 112
V_O = 128
V_OX, V_OW, V_AX, V_AW = 76, 60, 64, 68
A_Q, A_L, A_ONE, A_XF, A_RING = 0, 64, 80, 96, 192
NRING = 16
SL = lambda i: i * 16384
XS = lambda c: ((7 - c) % 3) * 28672
WS_ = lambda c: SL(6 + (7 - c) % 3)
KSL = lambda i: SL(9 - i % 4)
VSL = lambda i: SL(5 - i % 4)
WOSL = {(0, 0): SL(0), (0, 1): SL(1), (1, 0): SL(9), (2, 0): SL(8), (3, 0): SL(5), (1, 1): SL(7), (2, 1): SL(4), (3, 1): SL(6)}
K_WIN, V_WIN, WQ_WIN = SL(6), SL(2), SL(6)
QSCR = SL(2); OSCR = SL(3); LSCR = SL(6)
OB_OFF, FL_OFF, PB_OFF = 0, 16 << 20, 32 << 20
FL2 = 1 << 17
FL3 = 2 << 17
WS_BYTES = 256 << 20
ACT = (0, 1, 4, 5)

OLAY = [1]
def opos(u, s):
    if OLAY[0] == 0: return 4 * u + s if u < 3 else 12 + s // 2
    return (0, 3, 7, 11)[s] + u if (u, s) != (3, 0) else 6

class Op:
    def __init__(self, ins, lo, hi, hard=None, pre=(), dep=None):
        self.i = ins; self.lo = lo; self.hi = hi; self.hard = hi if hard is None else hard; self.pre = list(pre); self.dep = dep; self.g = None; self.use = self.hard + 1

def schedule(G, L, D, X, C, name=""):
    n = G.n()
    for q in (L, D, X, C):
        for k in range(len(q) - 2, -1, -1):
            q[k].hi = min(q[k].hi, q[k + 1].hi - 1); q[k].hard = min(q[k].hard, q[k + 1].hard)
    ptr = {"L": 0, "D": 0, "X": 0, "C": 0}; Q = {"L": L, "D": D, "X": X, "C": C}
    lastD = [-5]
    def head(k):
        return Q[k][ptr[k]] if ptr[k] < len(Q[k]) else None
    def slots(o, g):
        return [x for x in range(max(lastD[0] + 1, 0, g - 12), g) if not G.pre[x]]
    def avail(o, g, strict=True):
        if o is None or o.lo > g: return False
        if o.dep is not None:
            for d in o.dep:
                if d.g is None or (strict and d.g >= g): return False
        if strict and o.i.kind == "vm":
            if G.pre[g]: return False
            if len(slots(o, g)) < len(o.pre): return False
        return True
    def put(k, g):
        o = head(k); o.g = g; ptr[k] += 1
        if g < 0:
            G.head += o.pre + [o.i]; return
        if k in "LD":
            pre = list(o.pre)
            if k == "D":
                sl = slots(o, g); sl = sl[max(0, len(sl) - len(pre)):] if pre else []
                for x in sl: G.pre[x].append(pre.pop(0))
                lastD[0] = g
            if G.mem[g] and pre: G.mem[g] += pre + [o.i]
            else: G.pre[g] += pre; G.mem[g].append(o.i)
        else: G.val[g].append(o.i)
    over = 0
    for g in range(-1, n):
        if g >= 0:
            cands = [(head(k).hi, k) for k in "LDX" if avail(head(k), g)]
            if cands and G.cost(g) <= 0:
                put(min(cands)[1], g)
            while G.cost(g) <= 4 and g not in G.blocked:
                if avail(head("C"), g): put("C", g)
                elif avail(head("X"), g) and head("X").i.op not in TRANS: put("X", g)
                else: break
        if g < 0:
            while head("L") is not None and head("L").hi < 0 and head("L").lo < 0: put("L", g)
        ch = True
        while ch:
            ch = False
            for k in "LDXC":
                o = head(k)
                if o is not None and o.hard <= g:
                    assert avail(o, g, False), "%s: cannot meet hard deadline g=%d lo=%d %s" % (name, g, o.lo, o.i.t)
                    put(k, g); ch = True; over += g >= 0
    for k in "LDXC": assert head(k) is None, (name, k, head(k).i.t, head(k).lo, n)
    leads = sorted(o.use - o.g for o in L if o.g >= 0)
    sys.stderr.write("%s: mfma %d est %d cycles (floor %d), forced %d, lds leads min %s\n" % (name, n, G.est(), 16 * n, over, leads[:24]))

def spread(G, TV):
    cost = lambda o: 8 if (o.i.op in TRANS or o.i.op.startswith("v_permlane")) else 4
    for k in range(len(TV) - 2, -1, -1): TV[k].hard = min(TV[k].hard, TV[k + 1].hard)
    for k in range(1, len(TV)): TV[k].lo = max(TV[k].lo, TV[k - 1].lo)
    p = 0; g = TV[0].lo
    while p < len(TV):
        rate = 8; acc = 0
        for k in range(p, len(TV)):
            acc += cost(TV[k]); h = TV[k].hard
            if k + 1 < len(TV) and TV[k + 1].hard == h: continue
            assert h >= g, (TV[k].i.t, g, h)
            rate = max(rate, (acc + sum(G.cost(x) for x in range(g, h + 1))) / (h - g + 1))
        while p < len(TV) and TV[p].lo <= g and (G.cost(g) + cost(TV[p]) / 2 <= rate or TV[p].hard <= g):
            G.val[g].append(TV[p].i); p += 1
        g += 1

class Ring:
    def __init__(self): self.k = 0; self.free_at = [-1] * NRING
    def alloc(self, last_use):
        s = self.k % NRING; self.k += 1; lo = self.free_at[s]; self.free_at[s] = last_use
        return A_RING + 4 * s, lo
    def peek(self, ahead=0): return A_RING + 4 * ((self.k + ahead) % NRING)

def tile_dma(kind, idx, lds, lo, hi, nt=True):
    ops = []
    if kind == "K": srd, vo, base, off, fl = SRD_K, lambda j: V_OK + j, S_KVB, idx * 16384, " nt" if nt else ""
    elif kind == "V": srd, vo, base, off, fl = SRD_V, lambda j: V_OV + (j & 1), S_KVB, idx * 16384, " nt" if nt else ""
    elif kind == "WO": srd, vo, fl = SRD_WO, lambda j: V_OO + j, ""
    if kind == "WO" and idx == (3, 1):
        return [Op(I("buffer_load_dwordx4 %s, v%d, %s, s%d offen offset:%d" % (ar(A_XF + 4 * j), V_OO + j, sr(SRD_WO), S_SO, j * 1024), "WOr"), lo, lo + (hi - lo) * (j + 1) // 4, hard=hi,
                   pre=[I("s_xor_b32 s%d, s%d, 0x%x" % (S_SO, S_WOB, (3 << 17) | (1 << 16)))] if j == 0 else []) for j in range(4)]
    tag = "%s%s" % (kind, idx)
    for j in range(4):
        pre = []
        if j == 0:
            pre = [I("s_add_u32 m0, s%d, 0x%x" % (S_L4, lds))]
            if kind == "WO":
                hh, half = idx
                pre += [I("s_xor_b32 s%d, s%d, 0x%x" % (S_SO, S_WOB, (hh << 17) | (half << 16)))]
            else: pre += [I("s_add_u32 s%d, s%d, 0x%x" % (S_SO, base, off))]
        h = lo + (hi - lo) * (j + 1) // 4
        ops.append(Op(I("buffer_load_dwordx4 v%d, %s, s%d offen offset:%d%s lds" % (vo(j), sr(srd), S_SO, j * 1024, fl), tag), lo, h, hard=hi, pre=pre))
    return ops

def stage_so(c): return (S_AS + 2 * (c % 7), S_AS + 2 * (c % 7) + 1)
def stage_setup(c):
    sw, sx = stage_so(c)
    return [I("s_add_u32 s%d, s%d, %d" % (S_KC, S_ROT, c)), I("s_and_b32 s%d, s%d, 7" % (S_KC, S_KC)),
            I("s_lshl_b32 s%d, s%d, 19" % (sw, S_KC)), I("s_add_u32 s%d, s%d, s%d" % (sw, sw, S_WB)),
            I("s_lshl_b32 s%d, s%d, 7" % (sx, S_KC)), I("s_add_u32 s%d, s%d, s%d" % (sx, sx, S_XB))]
def stage_dma(c, lo, hi):
    ops = []; tag = "A%d" % c
    seq = []; sw, sx = stage_so(c)
    for j in range(4):
        seq.append((I("buffer_load_dwordx4 v%d, %s, s%d offen offset:%d lds" % (V_OW + j, sr(SRD_WQ), sw, j * 1024), tag), [I("s_add_u32 m0, s%d, 0x%x" % (S_L4, WS_(c)))] if j == 0 else []))
    for j in range(7):
        p = [I("s_add_u32 m0, s%d, 0x%x" % (S_LX, XS(c) + 1024 * j))] if j in (0, 4) else []
        seq.append((I("buffer_load_dwordx4 v%d, %s, s%d offen offset:%d lds" % (V_OX + j, sr(SRD_X), sx, (j & 3) * 1024), tag), p))
    for k, (ins, p) in enumerate(seq):
        ops.append(Op(ins, lo, lo + (hi - lo) * (k + 1) // len(seq), hard=hi, pre=p))
    return ops

def flat(ops):
    out = []
    for o in ops: out += o.pre + [o.i]
    return out

class K:
    def __init__(self, cfg):
        self.c = cfg; self.ins = []; self.nst = 0
    def __call__(self, s, tag=None):
        for l in s.split("\n"):
            l = l.strip()
            if l: self.ins.append(I(l, tag))
    def add(self, lst): self.ins += lst
    def stamp_ins(self, name):
        st = self.c.get("stamps")
        if not st or name not in st.split(","): return []
        return self.stamp_at(1 + st.split(",").index(name), name.startswith("spin"))
    def stamp_at(self, k, spin=False):
        b = STAMP0 + 2 * k
        assert b + 1 < S_AS
        if spin: return [I("s_mov_b32 s%d, s%d" % (b, STAMP0)), I("s_add_u32 s%d, s%d, s%d" % (b + 1, STAMP0 + 1, S_SPIN))]
        return [I("s_waitcnt lgkmcnt(0)"), I("s_memrealtime s[64:65]"), I("s_memtime s[66:67]"), I("s_waitcnt lgkmcnt(0)"), I("s_mov_b32 s%d, s64" % b), I("s_mov_b32 s%d, s66" % (b + 1))]
    def stamp(self, name): self.add(self.stamp_ins(name))
    def gstamps(self, G, prefix):
        for nm in (self.c.get("stamps") or "").split(","):
            if nm.startswith(prefix) and nm[len(prefix):].isdigit(): G.val[int(nm[len(prefix):])] += self.stamp_ins(nm)

    def prologue(self):
        a = self; c = self.c
        a("s_cmp_ge_u32 s2, 256"); a("s_cbranch_scc1 L_end")
        for d, off in ((SRD_WQ, 24), (SRD_X, 0)):
            a("s_load_dwordx2 s[%d:%d], s[0:1], %d" % (d, d + 1, off))
        if c.get("stamps"):
            a("s_memrealtime s[64:65]"); a("s_memtime s[66:67]")
        T = V_T
        if c.get("touch", 1):
            a("s_getpc_b64 s[%d:%d]" % (S_T1, S_T2)); a("L_pc:")
            a("s_bfe_u32 s%d, s2, 0x20003" % S_T0); a("s_mul_i32 s%d, s%d, %d" % (S_T0, S_T0, c["touch_n"] * 512))
            a("v_min_u32 v6, %d, v0" % (4 * c["touch_n"] - 1)); a("v_lshl_add_u32 v6, v6, 7, s%d" % S_T0)
            a("v_min_u32 v6, L_codeend-L_pc-4, v6")
            a("global_load_dword a84, v6, s[%d:%d]" % (S_T1, S_T2), "touch")
        a("v_lshrrev_b32 v1, 6, v0"); a("v_and_b32 v0, 63, v0"); a("v_readfirstlane_b32 s3, v1")
        a("s_mov_b32 s%d, 0" % S_NEUT)
        a("L_restart:")
        a("v_lshrrev_b32 v1, 4, v0"); a("v_and_b32 v2, 15, v0"); a("v_lshrrev_b32 v3, 3, v0"); a("v_and_b32 v4, 7, v0")
        a("s_and_b32 s%d, s2, 7" % S_ROT); a("s_lshr_b32 s%d, s2, 3" % S_T3)
        if c.get("map", 2) == 2:
            a("s_and_b32 s%d, s%d, 7" % (S_B, S_T3)); a("s_lshr_b32 s%d, s%d, 3" % (S_CQ, S_T3))
            a("s_lshl2_add_u32 s%d, s%d, s%d" % (S_H, S_ROT, S_CQ))
        else:
            a("s_and_b32 s%d, s2, 1" % S_B); a("s_and_b32 s%d, s%d, 3" % (S_T0, S_T3)); a("s_lshl2_add_u32 s%d, s%d, s%d" % (S_B, S_B, S_T0))
            a("s_lshr_b32 s%d, s%d, 1" % (S_H, S_ROT)); a("s_lshr_b32 s%d, s2, 5" % S_T0); a("s_lshl3_add_u32 s%d, s%d, s%d" % (S_H, S_H, S_T0))
        a("v_lshlrev_b32 v5, 1, v1"); a("v_xor_b32 v5, v5, v2"); a("v_lshlrev_b32 v5, 4, v5")
        a("v_lshl_add_u32 v%d, v1, 13, v5" % V_OW)
        a("v_add_u32 v%d, %d, v%d" % (V_OW + 1, 31744, V_OW))
        a("v_xor_b32 v6, 0x80, v%d" % V_OW)
        a("v_add_u32 v%d, %d, v6" % (V_OW + 2, 2 * 31744)); a("v_add_u32 v%d, %d, v6" % (V_OW + 3, 3 * 31744))
        a("s_lshl_b32 s%d, s%d, 8" % (S_WB, S_H)); a("s_lshl_b32 s%d, s3, 17" % S_T0); a("s_add_u32 s%d, s%d, s%d" % (S_WB, S_WB, S_T0))
        a("s_lshl_b32 s%d, s3, 12" % S_L4)
        def srd(d, nb):
            a("s_mov_b32 s%d, 0x%x" % (d + 2, nb)); a("s_mov_b32 s%d, 0x20000" % (d + 3))
        srd(SRD_WQ, 512 * 4096 * 2); srd(SRD_X, 8 * 224 * 512 * 2)
        a("s_and_b32 s%d, s3, 1" % S_E); a("s_lshl_b32 s%d, s%d, 6" % (S_T1, S_E))
        a("v_xor_b32 v6, v4, v1"); a("v_lshlrev_b32 v6, 4, v6"); a("v_lshl_add_u32 v6, v3, 10, v6")
        a("v_xor_b32 v%d, s%d, v6" % (V_OX, S_T1))
        a("v_xor_b32 v7, 64, v%d" % V_OX)
        a("v_add_u32 v%d, %d, v7" % (V_OX + 1, 7168)); a("v_add_u32 v%d, %d, v%d" % (V_OX + 2, 2 * 7168, V_OX)); a("v_add_u32 v%d, %d, v7" % (V_OX + 3, 3 * 7168))
        for j in range(4, 7): a("v_add_u32 v%d, 0x8000, v%d" % (V_OX + j, V_OX + j - 4))
        a("s_mul_i32 s%d, s%d, %d" % (S_XB, S_B, 229376)); a("s_mul_i32 s%d, s3, %d" % (S_T0, 57344)); a("s_add_u32 s%d, s%d, s%d" % (S_XB, S_XB, S_T0))
        a("s_mul_i32 s%d, s3, 7168" % S_LX)
        rot = c.get("rot", "xcd")
        if rot == "two":
            a("s_add_u32 s%d, s%d, s%d" % (S_T0, S_B, S_H)); a("s_and_b32 s%d, s%d, 1" % (S_T0, S_T0)); a("s_lshl2_add_u32 s%d, s%d, s%d" % (S_ROT, S_T0, S_ROT))
        a.add(stage_setup(0) + stage_setup(1))
        a("s_waitcnt lgkmcnt(0)")
        for d, off in ((SRD_K, 8), (SRD_V, 16), (SRD_WO, 32), (SRD_OUT, 40), (SRD_DBG, 48), (SRD_WS, 56)):
            a("s_load_dwordx2 s[%d:%d], s[0:1], %d" % (d, d + 1, off))
        a.add(flat(stage_dma(0, 0, 0)))
        st1 = stage_dma(1, 0, 0); n1 = c.get("n1", 4)
        a.add(flat(st1[:n1]))
        srd(SRD_K, 8 * 32 * 512 * 128 * 2); srd(SRD_V, 8 * 32 * 512 * 128 * 2); srd(SRD_WO, 4096 * 512 * 2)
        srd(SRD_OUT, 8 * 224 * 512 * 2); srd(SRD_DBG, 256); srd(SRD_WS, 48 << 20)
        a("s_waitcnt lgkmcnt(0)")
        if c.get("stamps"): a("s_mov_b64 s[18:19], s[%d:%d]" % (SRD_WS, SRD_WS + 1)); a("s_mov_b32 s%d, s64" % STAMP0); a("s_mov_b32 s%d, s66" % (STAMP0 + 1))
        a.stamp("S0")
        if c.get("wsoff"):
            a("s_add_u32 s%d, s%d, 0x%x" % (SRD_WS, SRD_WS, c["wsoff"] << 20)); a("s_addc_u32 s%d, s%d, 0" % (SRD_WS + 1, SRD_WS + 1))
        a("s_lshr_b32 s%d, s%d, 2" % (S_HG, S_H)); a("s_and_b32 s%d, s%d, 3" % (S_CQ, S_H))
        for ch in range(2, 8): a.add(stage_setup(ch))
        a("s_lshl_b32 s%d, s%d, 5" % (S_T0, S_B)); a("s_add_u32 s%d, s%d, s%d" % (S_T0, S_T0, S_H))
        a("s_lshl_b32 s%d, s%d, 17" % (S_KVB, S_T0)); a("s_add_u32 s%d, s%d, s%d" % (S_KVB, S_KVB, S_L4))
        a("s_lshl_b32 s%d, s%d, 2" % (S_T0, S_T0)); a("s_add_u32 s%d, s%d, s3" % (S_T0, S_T0))
        a("s_lshl_b32 s%d, s%d, 3" % (S_OB, S_HG)); a("s_add_u32 s%d, s%d, s%d" % (S_OB, S_OB, S_B)); a("s_lshl_b32 s%d, s%d, 2" % (S_OB, S_OB)); a("s_add_u32 s%d, s%d, s3" % (S_OB, S_OB))
        a("s_mul_i32 s%d, s%d, %d" % (S_OB, S_OB, 4 * 14336))
        a("s_mul_i32 s%d, s%d, 14336" % (S_OS, S_CQ)); a("s_add_u32 s%d, s%d, s%d" % (S_OS, S_OS, S_OB))
        for u in range(1, 4): a("s_add_u32 s%d, s%d, %d" % (S_OS + u, S_OS, 4096 * u))
        a("s_lshl_b32 s%d, s%d, 7" % (S_FL, S_T0)); a("s_add_u32 s%d, s%d, 0x%x" % (S_FL, S_FL, FL_OFF))
        a("s_lshl_b32 s%d, s%d, 17" % (S_WOB, S_H)); a("s_lshl_b32 s%d, s3, 14" % S_T0); a("s_add_u32 s%d, s%d, s%d" % (S_WOB, S_WOB, S_T0))
        a("s_lshl_b32 s%d, s%d, 8" % (S_T0, S_CQ)); a("s_add_u32 s%d, s%d, s%d" % (S_WOB, S_WOB, S_T0))
        a("s_lshl_b32 s%d, s%d, 2" % (S_T0, S_B)); a("s_add_u32 s%d, s%d, s%d" % (S_T0, S_T0, S_CQ)); a("s_mul_i32 s%d, s%d, %d" % (S_PB, S_T0, 8 * 57344))
        a("s_lshl_b32 s%d, s3, 11" % S_T0); a("s_add_u32 s%d, s%d, s%d" % (S_PB, S_PB, S_T0)); a("s_add_u32 s%d, s%d, 0x%x" % (S_PB, S_PB, PB_OFF - 8192))
        cc = f2u(math.log2(math.e) / math.sqrt(128.0))
        a("s_mov_b32 s%d, 0x%x" % (S_C0, cc))
        a("s_cmp_lg_u32 s%d, 0" % S_NEUT); a("s_cbranch_scc1 L_noinit")
        a("s_mov_b32 s%d, 0x%x" % (S_RETRY, f2u(2.0 ** 40))); a("s_mov_b32 s%d, 0" % S_SPIN)
        for u in range(4): a("v_mov_b32 v%d, 0x7f800000" % (V_NEGM + 4 * u))
        a("L_noinit:")
        a("s_lshl_b32 s%d, s%d, 3" % (S_T1, S_CQ)); a("s_lshl_b32 s%d, 1, s%d" % (S_T0, S_T1)); a("v_mov_b32 v%d, s%d" % (V_T + 1, S_T0))
        a("s_lshl3_add_u32 s%d, s%d, s%d" % (S_T1, S_B, S_HG)); a("s_lshl_b32 s%d, s3, 8" % S_KC); a("s_lshl2_add_u32 s%d, s%d, s%d" % (S_KC, S_T1, S_KC)); a("s_add_u32 s%d, s%d, s%d" % (S_KC, S_KC, S_NEUT))
        a("v_lshlrev_b32 v%d, 4, v0" % V_L16)
        a("v_cmp_eq_u32 vcc, 0, v0"); a("v_bfrev_b32 v6, 1"); a("v_cndmask_b32 v%d, v6, 0, vcc" % V_L0)
        a("v_lshlrev_b32 v7, 2, v0"); a("s_mov_b64 vcc, 0xff"); a("v_cndmask_b32 v%d, v6, v7, vcc" % (V_T + 8))
        a("v_and_b32 v6, 3, v0")
        a("v_xor_b32 v7, v2, v1"); a("v_lshlrev_b32 v7, 4, v7"); a("v_lshl_add_u32 v%d, v1, 8, v7" % V_OK)
        for j in (1, 2, 3): a("v_xor_b32 v%d, %d, v%d" % (V_OK + j, j << 6, V_OK))
        a("v_lshl_add_u32 v%d, v1, 8, v5" % V_OV); a("v_xor_b32 v%d, 0x80, v%d" % (V_OV + 1, V_OV))
        a("v_lshl_add_u32 v%d, v1, 10, v5" % V_OO); a("v_xor_b32 v7, 0x80, v%d" % V_OO)
        a("v_add_u32 v%d, 3072, v7" % (V_OO + 1)); a("v_add_u32 v%d, 6144, v%d" % (V_OO + 2, V_OO)); a("v_add_u32 v%d, 9216, v7" % (V_OO + 3))
        a("v_lshrrev_b32 v7, 1, v2"); a("v_xor_b32 v7, v7, v1"); a("v_lshlrev_b32 v7, 4, v7"); a("v_lshl_add_u32 v7, v2, 7, v7")
        a("s_lshr_b32 s%d, s3, 1" % S_T0); a("s_mul_i32 s%d, s%d, %d" % (S_T0, S_T0, 7 * 2048))
        a("s_lshl_b32 s%d, s%d, 13" % (S_T1, S_E)); a("s_add_u32 s%d, s%d, s%d" % (S_T2, S_T0, S_T1)); a("s_add_u32 s%d, s%d, %d" % (S_T0, S_T0, 3 * 2048))
        a("v_add_u32 v%d, s%d, v7" % (V_AX, S_T2)); a("v_xor_b32 v%d, 64, v%d" % (V_AX + 1, V_AX))
        a("v_add_u32 v%d, s%d, v7" % (V_AX + 2, S_T0)); a("v_xor_b32 v%d, 64, v%d" % (V_AX + 3, V_AX + 2))
        a("v_lshrrev_b32 v3, 2, v2"); a("v_and_b32 v4, 1, v1"); a("v_lshl_or_b32 v4, v4, 2, v3")
        a("s_lshl_b32 s%d, s%d, 1" % (S_T0, S_E)); a("v_xor_b32 v4, s%d, v4" % S_T0); a("v_lshlrev_b32 v4, 5, v4"); a("v_lshl_add_u32 v4, v6, 3, v4")
        a("v_lshl_add_u32 v7, v1, 3, v3"); a("v_lshl_add_u32 v7, v7, 8, v4"); a("v_add_u32 v%d, 0x%x, v7" % (V_AW, WQ_WIN))
        for j in range(1, 8): a("v_xor_b32 v%d, %d, v%d" % (V_AW + j, j << 5, V_AW))
        a("v_lshl_add_u32 v7, v1, 2, v3"); a("v_lshl_add_u32 v7, v7, 8, v4")
        a("s_add_u32 s%d, s%d, 0x%x" % (S_T2, S_T1, V_WIN)); a("v_add_u32 v%d, s%d, v7" % (V_AVX, S_T2))
        for j in range(1, 8): a("v_xor_b32 v%d, %d, v%d" % (V_AVX + j, j << 5, V_AVX))
        for j in range(8): a("v_xor_b32 v%d, 0x2000, v%d" % (V_AVY + j, V_AVX + j))
        a("v_and_b32 v7, 1, v1"); a("v_lshlrev_b32 v7, 1, v7"); a("v_lshrrev_b32 v3, 1, v1"); a("v_or_b32 v7, v7, v3")
        a("s_lshl_b32 s%d, s%d, 2" % (S_T0, S_E)); a("v_xor_b32 v7, s%d, v7" % S_T0); a("v_xor_b32 v7, v7, v2"); a("v_lshlrev_b32 v7, 4, v7"); a("v_lshl_add_u32 v7, v2, 8, v7")
        a("s_add_u32 s%d, s%d, 0x%x" % (S_T2, S_T1, K_WIN)); a("v_add_u32 v%d, s%d, v7" % (V_AKX, S_T2))
        for s in range(1, 4): a("v_xor_b32 v%d, %d, v%d" % (V_AKX + s, s << 6, V_AKX))
        for s in range(4): a("v_xor_b32 v%d, 0x2000, v%d" % (V_AKY + s, V_AKX + s))
        a("v_mov_b32 v7, 0x3f803f80")
        for k in range(4): a("v_accvgpr_write_b32 a%d, v7" % (A_ONE + k))
        a("s_add_u32 s%d, s%d, 0x%x" % (S_T0, S_L4, SL(2))); a("v_add_u32 v%d, s%d, v%d" % (V_SCR, S_T0, V_L16))
        for q in range(4): a("v_and_b32 v%d, 0xffffdfff, v%d" % (252 + q, V_AKX + q))
        a("s_lshl_b32 s%d, s3, 2" % S_T0); a("s_add_u32 s%d, s%d, 0x%x" % (S_T0, S_T0, LSCR)); a("v_add_u32 v%d, s%d, v%d" % (T + 5, S_T0, V_L16))
        a("v_xor_b32 v%d, 4, v%d" % (T + 6, T + 5)); a("v_xor_b32 v%d, 0x1000, v%d" % (T + 7, V_SCR)); a("v_add_u32 v1, 0x%x, v%d" % (LSCR, V_L16))
        a("v_and_b32 v%d, 7, v0" % (T + 9)); a("v_lshlrev_b32 v%d, 2, v%d" % (T + 9, T + 9))
        a("v_mov_b32 v6, 0")
        if c.get("warm"):
            for k in range(16):
                a("v_mul_u32_u24 v2, %d, v0" % (0x9e3b + 0x2f17 * k)); a("v_mul_u32_u24 v2, v2, v2"); a("v_and_b32 v2, 0x807f807f, v2"); a("v_or_b32 v2, 0x3f003f00, v2"); a("v_accvgpr_write_b32 a%d, v2" % (160 + k))
            a("s_mov_b32 s%d, 0" % S_T0); a("L_warm:")
            for m in range(16): self.ins.append(I("%s %s, %s, %s, 0" % (MF, ar(176 + 4 * (m % 4)), ar(160 + 4 * (m % 4)), ar(160 + 4 * (m // 4))))); self.ins[-1].kind = "opaque"
            a("s_add_u32 s%d, s%d, 1" % (S_T0, S_T0)); a("s_cmp_lt_u32 s%d, %d" % (S_T0, c["warm"])); a("s_cbranch_scc1 L_warm")
        a.stamp("S1")
        a.add(flat(st1[n1:]))
        a.stamp("S2")
        a("s_add_u32 s%d, s%d, s%d" % (S_T0, S_FL, S_NEUT))
        a("buffer_store_dword v6, v%d, %s, s%d offen sc1" % (V_T + 8, sr(SRD_WS), S_T0), "flagreset")
        for k in range(2):
            a("s_add_u32 s%d, s%d, 0x%x" % (S_T0, S_T0, FL2))
            a("buffer_store_dword v6, v%d, %s, s%d offen sc1" % (V_T + 8, sr(SRD_WS), S_T0), "flagreset")

    def acc(self, u, j): return V_O + (u * 8 + j) * 4 if u < 3 else V_O + 96 + 4 * ACT.index(j)
    def rowmax_finish(self, M):
        a = self; T = V_T
        for u in range(4): a("v_mov_b32 v%d, v%d" % (T + u, M[u]))
        for u in range(4): a("v_permlane16_swap_b32 v%d, v%d" % (M[u], T + u))
        for u in range(4): a("v_max_f32 v%d, v%d, v%d" % (M[u], M[u], T + u))
        for u in range(4): a("v_mov_b32 v%d, v%d" % (T + u, M[u]))
        for u in range(4): a("v_permlane32_swap_b32 v%d, v%d" % (M[u], T + u))
        for u in range(4): a("v_max_f32 v%d, v%d, v%d" % (M[u], M[u], T + u))
        for u in range(4):
            for k in range(4): a("v_sub_f32 v%d, 0, v%d" % (V_NEGM + 4 * u + k, M[u]))

    def streamAB(self):
        c = self.c; T = V_T
        G = Gaps(); ring = Ring(); L = []; D = []; X = []; C = []; TV = []
        SLAT = 5; nt = c.get("nt", True)
        LEAD = c.get("leadA", 10); BOFF = c.get("boffA", 16); BUB = c.get("bubA", 5)
        xf = lambda ch, u, ks: A_XF + 32 * (ch & 1) + 8 * u + 4 * ks
        groups = [(j, [ch]) for ch in range(6) for j in range(8)] + [(j, [6]) for j in ACT] + [(j, [7]) for j in ACT] + [(j, [6, 7]) for j in (2, 3, 6, 7)]
        nA = 448
        bar = {ch: 56 * ch - BOFF for ch in range(1, 7)}; bar[0] = -1; bar[7] = 336 + 32 - BOFF
        BQ = nA - c.get("boffQ", 18)
        rel = lambda ch: bar[ch + 1] if ch < 6 else BQ
        LA = []; xfirst = {}; xlast = {}; adone = {}
        for j, chs in groups:
            us = [0, 1, 2] + ([3] if j in ACT else [])
            steps = [(ch, ks) for ch in chs for ks in range(2)]; ns = len(steps)
            m0 = G.n(); fr = []
            for k, (ch, ks) in enumerate(steps):
                reg, lo = ring.alloc(m0 + ns * (len(us) - 1) + k); fr.append(reg)
                for eh in range(2):
                    LA.append((m0 + k, Op(I("ds_read_b64_tr_b16 %s, v%d offset:%d" % (ar(reg + 2 * eh, 2), V_AW + j, WS_(ch) - WQ_WIN + ks * 8192 + eh * 1024)),
                                          max(lo, bar[ch]), min(m0 + k - LEAD, rel(ch) - BUB), hard=min(m0 + k - 1, rel(ch) - 2))))
            for u in us:
                for k, (ch, ks) in enumerate(steps):
                    A = self.acc(u, j)
                    m = G.mfma("%s %s, %s, %s, %s" % (MF, vr(A), ar(fr[k]), ar(xf(ch, u, ks)), "0" if ch == 0 and ks == 0 else vr(A)))
                    xfirst.setdefault((ch, u, ks), m); xlast[(ch, u, ks)] = m; adone[(u, j)] = m
        assert G.n() == nA
        for (ch, u, ks), m in xfirst.items():
            lo = max(bar[ch], xlast.get((ch - 2, u, ks), -1))
            LA.append((m, Op(I("ds_read_b128 %s, v%d offset:%d" % (ar(xf(ch, u, ks)), V_AX + (2 if u == 3 else 0) + ks, XS(ch) + (u * 2048 if u < 3 else 0))), lo, m - LEAD, hard=m - 1)))
        L += [o for m, o in sorted(LA, key=lambda t: t[0])]
        for o in L:
            if o.lo < bar[7] and o.use <= 368: o.hi = min(o.hi, bar[7] - BUB); o.hard = min(o.hard, bar[7] - 2)
            elif o.lo < bar[7] and o.use > 368: o.lo = bar[7]
        for ch in range(1, 8): G.pre[bar[ch] - 1] += [W(vm="A%d" % ch, lgkm0=True)]; G.pre[bar[ch]] += [I("s_barrier")]
        G.pre[BQ - 1] += [W(vm="K0", lgkm0=True)]; G.pre[BQ] += [I("s_barrier")]
        gw = BQ - BUB - 2
        for k in range(2): L.append(Op(I("ds_write_b128 v%d, %s offset:%d" % (V_SCR, vr(self.acc(3, 4 * k)), QSCR - SL(2) + k * 1024)), gw + k, gw + k, hard=BQ - 2))
        LEAD = c.get("leadB", 10); BOFF = c.get("boffB", 13); BUB = c.get("bubB", 5)
        segs = [("QK", "X", 0), ("QK", "Y", 0)]
        for i in range(8):
            segs += [("PV", "X", i)] + ([("QK", "X", i + 1)] if i < 7 else []) + [("PV", "Y", i)] + ([("QK", "Y", i + 1)] if i < 7 else [])
        pos = {}; p = nA
        for sg in segs:
            pos[sg] = p; nu = 4 if sg[1] == "X" else 3
            p += 8 * nu + (nu if sg[0] == "PV" else 0) + (4 if sg == ("QK", "X", 0) else 0)
        barB = {i: pos[("PV", "X", i)] - BOFF for i in range(8)}; barB[-1] = BQ; barB[8] = 10 ** 6
        quse = {}; sdone = {}; nuse = {}
        V_M4, V_MX, V_AKM = 240, 244, 252
        def kread(reg, lo, ad, off, use, st):
            L.append(Op(I("ds_read_b128 %s, v%d offset:%d" % (ar(reg), ad, off)), max(lo, barB[st]), min(use - LEAD, barB[st + 1] - BUB), hard=min(use - 1, barB[st + 1] - 2)))
        for op, un, i in segs:
            nu = 4 if un == "X" else 3; S = V_SX if un == "X" else V_SY
            if (op, un, i) == ("QK", "X", 0):
                for si, s in enumerate((0, 2, 1, 3)):
                    if s == 1:
                        for k in range(2): kread(A_Q + 48 + 4 * (2 * k + 1), BQ, T + 7, QSCR - SL(2) + k * 1024, G.n() + 3, -1)
                    if s == 3:
                        m0 = G.n(); fr = []
                        for q in range(4):
                            reg, lo = ring.alloc(m0 + q); fr.append(reg); kread(reg, lo, V_AKM + q, KSL(0) - K_WIN, m0 + q, -1)
                        for q in range(4):
                            m = G.mfma("%s %s, %s, %s, %s" % (MF, vr(V_M4), ar(fr[q]), ar(A_Q + 48 + 4 * q), "0" if q == 0 else vr(V_M4)))
                        mdone = m
                    for kt in range(2):
                        m0 = G.n(); reg, lo = ring.alloc(m0 + 3); kread(reg, lo, V_AKX + s, KSL(0) - K_WIN + kt * 4096, m0, -1)
                        for u in range(4):
                            Dd = S + 8 * u + 4 * kt
                            m = G.mfma("%s %s, %s, %s, %s" % (MF, vr(Dd), ar(reg), ar(A_Q + 16 * u + 4 * s), "0" if si == 0 else vr(Dd)))
                            quse.setdefault((u, s), m); sdone[(u, kt)] = m
            elif op == "QK":
                st = i - 1; ad = V_AKX if un == "X" else V_AKY
                pv0 = pos[("PV", un, i)]
                for kt in range(2):
                    m0 = G.n(); fr = []
                    for s in range(4):
                        reg, lo = ring.alloc(m0 + 4 * (nu - 1) + s); fr.append(reg)
                        kread(reg, lo, ad + s, KSL(i) - K_WIN + kt * 4096, m0 + s, st)
                    for u in range(nu):
                        Dd = S + 8 * u + 4 * kt
                        for s in range(4):
                            m = G.mfma("%s %s, %s, %s, %s" % (MF, vr(Dd), ar(fr[s]), ar(A_Q + 16 * u + 4 * s), vr(V_NEGM + 4 * u) if s == 0 else vr(Dd)))
                            if s == 0: nuse.setdefault(u, m)
                        dl = pv0 + u - 2
                        lo = max(m + SLAT, pos[("PV", "X", 0)] + 2)
                        ex = [Op(I("v_exp_f32 v%d, v%d" % (Dd + k, Dd + k)), lo, dl - 1) for k in range(4)]
                        cv = [Op(I("v_cvt_pk_bf16_f32 v%d, v%d, v%d" % (S + 8 * u + 2 * kt + k, Dd + 2 * k, Dd + 2 * k + 1)), lo, dl, dep=ex[2 * k:2 * k + 2]) for k in range(2)]
                        X += ex; C += cv
            else:
                ad = V_AVX if un == "X" else V_AVY
                first = (un == "X" and i == 0)
                for j in range(8):
                    m0 = G.n()
                    reg, lo = ring.alloc(m0 + nu - 1)
                    for t in range(2):
                        L.append(Op(I("ds_read_b64_tr_b16 %s, v%d offset:%d" % (ar(reg + 2 * t, 2), ad + j, VSL(i) - V_WIN + t * 4096)),
                                    max(lo, barB[i]), min(m0 - LEAD, barB[i + 1] - BUB), hard=min(m0 - 1, barB[i + 1] - 2)))
                    for u in range(nu):
                        O = V_O + (u * 8 + j) * 4
                        G.mfma("%s %s, %s, %s, %s" % (MF, vr(O), ar(reg), vr(S + 8 * u), "0" if first else vr(O)))
                    if j == 0:
                        for u in range(nu):
                            G.mfma("%s %s, %s, %s, %s" % (MF, ar(A_L + 4 * u), ar(A_ONE), vr(S + 8 * u), "0" if first else ar(A_L + 4 * u)))
        n = G.n()
        for i in range(8): G.pre[barB[i] - 1] += [W(vm=["V%d" % i, "K%d" % (i + 1)], lgkm0=True)]; G.pre[barB[i]] += [I("s_barrier")]
        lateq = []
        def conv(u, s):
            A = self.acc(u, 2 * s); lo = max(adone[(u, 2 * s)], adone[(u, 2 * s + 1)]) + 3; hard = quse[(u, s)] - 2
            hs = gw - 1 if u == 3 else hard
            body = [("v_mul_f32 v%d, s%d, v%d" % (A + k, S_C0, A + k), hs) for k in range(8)] + [("v_cvt_pk_bf16_f32 v%d, v%d, v%d" % (A + k, A + 2 * k, A + 2 * k + 1), hs) for k in range(4)]
            for k, (t, h) in enumerate(body):
                TV.append(Op(I(t), lo, h))
                if k == 1:
                    TV.extend(lateq); del lateq[:]
            lateq.extend([Op(I("v_permlane16_swap_b32 v%d, v%d" % (A + k, A + 2 + k)), lo, hs) for k in range(2)] +
                         [Op(I("v_accvgpr_write_b32 a%d, v%d" % (A_Q + 16 * u + 4 * s + k, A + k)), lo, hard) for k in range(4)])
        for u, s in [(0, 0), (3, 0), (1, 0), (2, 0), (3, 2), (0, 2), (1, 2), (2, 2)] + [(u, s) for s in (1, 3) for u in range(3)]: conv(u, s)
        TV.extend(lateq)
        pv0 = pos[("PV", "X", 0)]
        def maxchain(u):
            B = V_M4 if u == 3 else V_SX + 8 * u; M = V_MX + 2 * u; N = V_NEGM + 4 * u
            return ["v_max3_f32 v%d, v%d, v%d, v%d" % (M, B, B + 1, B + 2), "v_max_f32 v%d, v%d, v%d" % (M, M, B + 3), "v_mov_b32 v%d, v%d" % (M + 1, M),
                    "v_permlane16_swap_b32 v%d, v%d" % (M, M + 1), "v_max_f32 v%d, v%d, v%d" % (M, M, M + 1), "v_mov_b32 v%d, v%d" % (M + 1, M),
                    "v_permlane32_swap_b32 v%d, v%d" % (M, M + 1), "v_max_f32 v%d, v%d, v%d" % (M, M, M + 1), "v_min_f32 v%d, -v%d, v%d" % (N, M, N)] + ["v_mov_b32 v%d, v%d" % (N + k, N) for k in (1, 2, 3)]
        ch4 = {u: maxchain(u) for u in range(4)}
        lo = sdone[(2, 0)] + 3
        for k in range(9):
            for u in (0, 3, 1, 2): TV.append(Op(I(ch4[u][k]), lo, nuse[0] - 1))
        for u in (0, 1, 2, 3):
            for k in range(9, 12): TV.append(Op(I(ch4[u][k]), lo, min(nuse[u] - 1, pv0)))
        for u in range(4):
            B = V_SX + 8 * u; lo = sdone[(u, 1)] + 3; hard = pv0 + u - 2
            for t in ["v_add_f32 v%d, v%d, v%d" % (B + k, B + k, V_NEGM + 4 * u) for k in range(8)] + ["v_exp_f32 v%d, v%d" % (B + k, B + k) for k in range(8)] + \
                     ["v_cvt_pk_bf16_f32 v%d, v%d, v%d" % (B + k, B + 2 * k, B + 2 * k + 1) for k in range(4)]: TV.append(Op(I(t), lo, hard))
        win = [(("a", ch), max(bar[ch], 0), (bar[ch + 1] if ch < 7 else BQ) - 2) for ch in range(8)] + [(("b", i), barB[i], min(barB[i + 1] - 2, n - 1 - c.get("dtail", 8))) for i in range(-1, 8)]
        for (ph, i), lo, hi in win:
            lst = c["kvA" if ph == "a" else "kvB"].get(i, []); l0 = lo
            if ph == "a" and i + 2 < 8:
                mid = hi if not lst else lo + (hi - lo) * 11 // (11 + 4 * len(lst))
                ops = stage_dma(i + 2, lo, mid)
                for o in ops: o.hi += c.get("dlagA", 0); o.hard = hi
                D += ops; lo = mid
            if (ph, i) == ("b", -1):
                D.append(Op(I("buffer_atomic_add v%d, v%d, %s, s%d offen" % (T + 1, V_L0, sr(SRD_DBG), S_KC), "hello"), lo + 1, lo + 20, hard=hi))
            if (ph, i) == ("b", 6):
                D.append(Op(I("buffer_load_dword v%d, v%d, %s, s%d offen sc1" % (T + 8, T + 9, sr(SRD_DBG), S_T3), "hl"), lo + 1, lo + 3, hard=hi, pre=[I("s_lshl_b32 s%d, s%d, 5" % (S_T3, S_B))]))
            for k, (kind, ix) in enumerate(lst):
                h0 = lo + (hi - lo) * (k + 1) // len(lst)
                ops = tile_dma(kind, ix, KSL(ix) if kind == "K" else VSL(ix) if kind == "V" else WOSL[ix], l0 + 1, h0, nt)
                for j, o in enumerate(ops):
                    o.hi = lo + (hi - lo) * (4 * k + j + 1) // (4 * len(lst)); o.hard = hi
                    if c.get("even"): o.lo = max(o.lo, o.hi - c["even"])
                D += ops
        px = pos[("PV", "X", 7)]; py = pos[("PV", "Y", 7)]
        rl3 = Op(I("v_accvgpr_read_b32 v%d, a%d" % (T + 3, A_L + 12)), py - 1, n - 1); C.append(rl3)
        rl = [Op(I("v_accvgpr_read_b32 v%d, a%d" % (T + u, A_L + 4 * u)), py + 3 + u + SLAT, n - 1) for u in range(3)]; C += rl
        m1 = Op(I("v_max3_f32 v%d, v%d, v%d, v%d" % (T + 4, T, T + 1, T + 2)), py, n - 1); m2 = Op(I("v_max_f32 v%d, v%d, v%d" % (T + 4, T + 4, T + 3)), py, n - 1); C += [m1, m2]
        X += [Op(I("v_rcp_f32 v%d, v%d" % (2 + 2 * u, T + u)), py, n - 1, dep=[rl[u]]) for u in range(3)]
        for k, j in enumerate((2, 3, 6, 7)):
            L.append(Op(I("ds_write_b128 v%d, %s offset:%d" % (V_SCR, vr(V_O + (24 + j) * 4), OSCR - SL(2) + k * 1024)), px + 4 + 4 * j + 3 + SLAT, n - 1))
        L.append(Op(I("ds_write_b32 v%d, v%d" % (T + 5, T + 3)), py, n - 1, dep=[rl3]))
        L.append(Op(I("ds_write_b32 v%d, v%d offset:1024" % (T + 5, T + 4)), py, n - 1, dep=[m2]))
        schedule(G, L, D, X, C, "AB")
        spread(G, TV)
        self.gstamps(G, "a")
        self.add([W(vm="A0"), I("s_barrier")])
        self.stamp("A0")
        self.add(G.flatten())
        self.nAB = n; self.pv0 = pv0

    def ofrag(self, u, s): return V_SX + 4 * (4 * u + s if u < 3 else 12 + s // 2)
    def ostore(self, u, s):
        f = 4 * u + s if u < 3 else 12 + s // 2
        return I("buffer_store_dwordx4 %s, v%d, %s, s%d offen offset:%d sc1" % (vr(V_SX + 4 * f), V_L16, sr(SRD_WS), S_OS + opos(u, s) // 4, (opos(u, s) % 4) * 1024), "ost%d" % (s // 2))
    def transBC(self):
        a = self; T = V_T; c = self.c
        self.tail = []
        a.add([W(vm=["WO(0, 0)", "WO(0, 1)"], lgkm0=True), I("s_barrier")])
        a.stamp("M")
        a("ds_read_b128 %s, v1 offset:1024" % vr(V_NEGM))
        a("ds_read_b32 v%d, v%d" % (T + 4, T + 6))
        for k, j in enumerate((2, 3, 6, 7)): a("ds_read_b128 %s, v%d offset:%d" % (vr(V_O + (24 + j) * 4), T + 7, OSCR - SL(2) + k * 1024))
        def norm(u, s, rl):
            O = V_O + (u * 8 + 2 * s) * 4; F = self.ofrag(u, s)
            for k in range(4): a("v_pk_mul_f32 %s, %s, %s op_sel_hi:[1,0]" % (vr(O + 2 * k, 2), vr(O + 2 * k, 2), vr(rl, 2)))
            for k in range(4): a("v_cvt_pk_bf16_f32 v%d, v%d, v%d" % (F + k, O + 2 * k, O + 2 * k + 1))
        for s in range(2):
            for u in range(3): norm(u, s, 2 + 2 * u); a.add([self.ostore(u, s)])
        a("v_max3_f32 v%d, v%d, v%d, v%d" % (V_NEGM, V_NEGM, V_NEGM + 1, V_NEGM + 2)); a("v_max_f32 v%d, v%d, v%d" % (V_NEGM, V_NEGM, V_NEGM + 3))
        a("v_add_f32 v%d, v%d, v%d" % (T + 3, T + 3, T + 4))
        a("v_cmp_lt_f32 vcc, s%d, v%d" % (S_RETRY, V_NEGM))
        a("v_rcp_f32 v%d, v%d" % (T, T + 3))
        a("s_cbranch_vccnz L_fallback")
        for j in ACT:
            O = V_O + (24 + j) * 4
            for k in range(2): a("v_pk_add_f32 %s, %s, %s" % (vr(O + 2 * k, 2), vr(O + 2 * k, 2), vr(O + 8 + 2 * k, 2)))
        a("s_barrier")
        norm(3, 0, T); a.add([self.ostore(3, 0)])
        a("s_lshl_b32 s%d, s%d, 1" % (S_T0, S_E)); a("s_xor_b32 s%d, s%d, s%d" % (S_T0, S_T0, S_HG)); a("s_lshl_b32 s%d, s%d, 5" % (S_T0, S_T0))
        a("s_or_b32 s%d, s%d, 0x%x" % (S_T0, S_T0, V_WIN))
        for k in range(16): a("v_xor_b32 v%d, s%d, v%d" % (V_AVX + k, S_T0, V_AVX + k))
        self.normB = lambda: [norm(u, s, T if u == 3 else 2 + 2 * u) for s in (2, 3) for u in range(4) if not (u == 3 and s & 1)]

    def spin(self, name, load):
        for s in ["L_%s_spin:" % name, "s_add_u32 s%d, s%d, 1" % (S_SPIN, S_SPIN), "s_cmp_ge_u32 s%d, 0x%x" % (S_SPIN, SPIN_MAX), "s_cbranch_scc1 L_%s_ok" % name,
                  "s_sleep 1", load, "s_waitcnt vmcnt(0)", "s_branch L_%s" % name]: self.tail.append(I(s))

    def phaseC(self):
        a = self; c = self.c; T = V_T
        LEAD = c.get("leadC", 10)
        acc = lambda u, j: V_O + (j * 4 + u) * 4
        fidx = lambda u, s: 4 * u + s if u < 3 else 12 + s // 2
        def bfrag(hh, u, s):
            return vr(V_SX + 4 * fidx(u, s)) if hh == 0 else ar(56 * (hh - 1) + 4 * fidx(u, s))
        JO = [1, 2, 3, 4, 5, 6, 7, 0]
        started = set(); done = {}; firstuse = {}
        def build(groups):
            G = Gaps(); ring = Ring(); L = []
            for grp in groups:
                m0 = G.n(); fr = []
                seq = [(u, k) for u in range(4) for k, (hh, j, s) in enumerate(grp) if not (u == 3 and s & 1)]
                for k, (hh, j, s) in enumerate(grp):
                    us = [i for i, (u, kk) in enumerate(seq) if kk == k]
                    reg, lo = ring.alloc(m0 + us[-1]); fr.append(reg)
                    slot = WOSL[(hh, s >> 1)]
                    ad = (V_AVX if slot < SL(8) else V_NEGM) + (8 if s & 1 else 0) + j
                    off = slot - (0 if hh == 0 else SL(4) if slot < SL(8) else SL(8))
                    for t in range(2):
                        L.append(Op(I("ds_read_b64_tr_b16 %s, v%d offset:%d" % (ar(reg + 2 * t, 2), ad, off + t * 4096)), lo, m0 + us[0] - LEAD, hard=m0 + us[0] - 1))
                for u, k in seq:
                    hh, j, s = grp[k]; A = acc(u, j)
                    m = G.mfma("%s %s, %s, %s, %s" % (MF, vr(A), ar(fr[k]), bfrag(hh, u, s), vr(A) if (u, j) in started else "0"))
                    started.add((u, j)); done[(u, j)] = m; firstuse.setdefault((hh, u, s), m)
            return G, L
        G, L = build([[(0, j, s) for s in range(4)] for j in JO]); D = []; C = []
        sp = c.get("bspace", 12); k = 0; fa = c.get("flagAat", 4)
        for s in (2, 3):
            for u in range(4):
                if u == 3 and s & 1: continue
                if k == fa: D.append(Op(I("buffer_store_dword v7, v%d, %s, s%d offen sc1" % (V_L0, sr(SRD_WS), S_FL), "flag"), sp * k - 2, sp * k - 1, hard=G.n() - 1, pre=[W(vm="ost0")]))
                D.append(Op(self.ostore(u, s), sp * k, sp * k + 1, hard=G.n() - 1)); k += 1
        wa = Op(I("v_add_u32 v6, 0x%x, v%d" % (WOSL[(3, 1)] - SL(2), V_SCR)), 0, G.n() - 1); C.append(wa)
        for j in range(4): L.append(Op(I("ds_write_b128 v6, %s offset:%d" % (ar(A_XF + 4 * j), j * 1024)), 70 + 3 * j, G.n() - 12, dep=[wa]))
        for k in range(16): C.append(Op(I("v_add_u32 v%d, 0x%x, v%d" % (V_NEGM + k, SL(8), V_AVX + k)), 0, G.n() - 1))
        for u in range(4): C.append(Op(I("v_add_u32 v%d, %d, v%d" % (V_OK + u, 4096 * u, V_L16)), 0, G.n() - 1))
        F = S_WOB
        for t in [                  "v_lshlrev_b32 v2, 11, v0", "v_xor_b32 v2, s%d, v2" % S_T3, "v_lshl_add_u32 v%d, v0, 2, v2" % V_OV,
                  "v_and_b32 v4, 15, v0", "v_lshlrev_b32 v4, 10, v4", "v_lshrrev_b32 v2, 4, v0", "v_lshl_add_u32 v%d, v2, 3, v4" % (V_OV + 1), "v_xor_b32 v1, 0x1000, v%d" % V_SCR]:
            C.append(Op(I(t), 0, G.n() - 1))
        schedule(G, L, D, [], C, "P0"); self.gstamps(G, "p")
        sal = ["s_xor_b32 s%d, s%d, 0x%x" % (87 + hh, S_FL, hh << 9) for hh in (1, 2, 3)] + ["s_add_u32 s91, s%d, 0x%x" % (S_FL, FL3)]
        for hh in (1, 2, 3):
            sal += ["s_xor_b32 s%d, s%d, %d" % (S_T0, S_CQ, hh), "s_mul_i32 s%d, s%d, 14336" % (S_T0, S_T0), "s_add_u32 s%d, s%d, s%d" % (S_XB + hh - 1, S_T0, S_OB)]
        sal += ["s_mul_i32 s%d, s%d, 57344" % (S_LX, S_HG), "s_add_u32 s%d, s%d, s%d" % (S_LX, S_LX, S_PB),
                "s_mul_i32 s%d, s%d, 224" % (S_T0, S_B), "s_lshr_b32 s%d, s3, 1" % S_T1, "s_mul_i32 s%d, s%d, 112" % (S_T1, S_T1), "s_add_u32 s%d, s%d, s%d" % (S_T0, S_T0, S_T1),
                "s_lshl_b32 s%d, s%d, 10" % (S_T0, S_T0), "s_lshl_b32 s%d, s%d, 8" % (S_T1, S_CQ), "s_add_u32 s%d, s%d, s%d" % (S_T0, S_T0, S_T1),
                "s_lshl_b32 s%d, s%d, 5" % (S_T1, S_HG), "s_add_u32 s%d, s%d, s%d" % (S_T0, S_T0, S_T1),
                "s_lshl_b32 s%d, s%d, 16" % (S_T1, S_E), "s_add_u32 s%d, s%d, s%d" % (S_T1, S_T1, S_T0), "s_add_u32 s%d, s%d, %d" % (S_T2, S_T0, 48 * 1024)]
        g = 1
        for t in sal:
            while G.pre[g] or any(x.kind == "vm" for x in G.mem[g]): g += 1
            G.pre[g].append(I(t)); g += 2
        spA = ["s_buffer_load_dword s%d, %s, s%d glc" % (83 + hh, sr(SRD_WS), 87 + hh) for hh in (1, 2, 3)]
        spB = ["s_buffer_load_dword s%d, %s, s%d offset:0x%x glc" % (83 + hh, sr(SRD_WS), 87 + hh, FL3) for hh in (1, 2, 3)]
        chk3 = ["s_waitcnt lgkmcnt(0)", "s_and_b32 s84, s84, s85", "s_and_b32 s84, s84, s86"]
        G.pre[G.n() - c.get("spoffA", 6) - 3] += [W(lgkm0=True)]
        for k in range(3): G.pre[G.n() - c.get("spoffA", 6) - 2 + k] += [I(spA[k])]
        a.add(G.head); G.head = []
        self.normB()
        a("v_mov_b32 v7, 1")
        hz = ["v_subrev_u32 v2, 0x01010101, v%d" % (T + 8), "v_not_b32 v3, v%d" % (T + 8), "v_and_b32 v2, v2, v3", "v_and_b32 v2, 0x80808080, v2", "v_cmp_ne_u32 vcc, 0, v2", "s_cbranch_vccnz L_hello_spin"]
        for t in hz: a(t)
        a("L_hello_ok:")
        a("s_add_u32 s%d, s%d, 0x%x" % (S_T3, S_FL, FL2))
        for t in ["L_hello_spin:", "s_add_u32 s%d, s%d, 1" % (S_SPIN, S_SPIN), "s_cmp_ge_u32 s%d, 0x%x" % (S_SPIN, SPIN_MAX), "s_cbranch_scc1 L_hello_ok", "s_sleep 4",
                  "buffer_load_dword v%d, v%d, %s, s%d offen sc1" % (T + 8, T + 9, sr(SRD_DBG), S_T3), "s_waitcnt vmcnt(0)"] + hz + ["s_branch L_hello_ok"]: self.tail.append(I(t))
        a.stamp("C0")
        a.add(G.flatten())
        a.stamp("P1")
        flB = "buffer_store_dword v7, v%d, %s, s91 offen sc1" % (V_L0, sr(SRD_WS))
        def sspin(name, lds3):
            for t in ["L_%s_spin:" % name, "s_add_u32 s%d, s%d, 1" % (S_SPIN, S_SPIN), "s_cmp_ge_u32 s%d, 0x%x" % (S_SPIN, SPIN_MAX), "s_cbranch_scc1 L_%s_ok" % name] + lds3 + ["s_branch L_%s" % name]: self.tail.append(I(t))
            return [I(t) for t in ["L_%s:" % name] + chk3 + ["s_cbranch_scc0 L_%s_spin" % name, "L_%s_ok:" % name]]
        a.add(sspin("poll", spA))
        a.stamp("P2")
        s0 = c.get("s0", [1, 2, 3, 4, 5, 6, 7]); s1 = c.get("s1", [1, 2, 3, 4, 5]); s2 = c.get("s2", [])
        groups = [[(hh, j, 0)] for hh in (1, 2, 3) for j in s0]
        groups += [[(hh, j, 1) for hh in (1, 2, 3)] for j in s1]
        groups += [[(hh, j, 2) for hh in (1, 2, 3)] for j in s2]
        for j in JO:
            for s, early in enumerate((s0, s1, s2, [])):
                if j not in early: groups.append([(hh, j, s) for hh in (1, 2, 3)])
        G, L = build(groups); D = []; X = []; C = []
        n = G.n()
        lds = []
        for s in range(4):
            for hh in (1, 2, 3):
                for u in range(4):
                    if u == 3 and s & 1: continue
                    f = fidx(u, s)
                    lds.append((I("buffer_load_dwordx4 %s, v%d, %s, s%d offen offset:%d sc1" % (ar(56 * (hh - 1) + 4 * f), V_OK + opos(u, s) // 4, sr(SRD_WS), S_XB + hh - 1, (opos(u, s) % 4) * 1024), "of"), firstuse[(hh, u, s)]))
        n0 = c.get("n0", 12); n1 = c.get("n1c", 17); sp = c.get("ospace", 3); gP = c.get("gP", 20); gB = c.get("gB", 44)
        a.add([x[0] for x in lds[:n0]])
        for k in range(16): a("v_add_u32 v%d, 0x%x, v%d" % (V_AVX + k, SL(4), V_AVX + k))
        a("v_bfrev_b32 v6, 1"); self.pubsetup = len(self.ins)
        a.add([W(vm=["ost1"])]); a(flB, "flag")
        a("s_barrier")
        a.stamp("P3")
        for k in range(n0, 21): D.append(Op(lds[k][0], sp * (k - n0), sp * (k - n0), hard=min(gB - 1, lds[k][1] - 1)))
        for k in range(3): G.pre[gP + k] += [I(spB[k])]
        G.pre[gB] += sspin("pollb", spB)
        for k in range(21, 42): D.append(Op(lds[k][0], gB + 1 + sp * (k - 21), gB + 1 + sp * (k - 21), hard=lds[k][1] - 1))
        def pub(lo, hi):
            m = sum(1 << k for k in range(lo, hi + 1))
            return [I("s_mov_b64 exec, 0x%x" % m), I("buffer_store_dword v7, v%d, %s, 0 offen sc1" % (V_OV, sr(SRD_WS)), "flag2"), I("s_mov_b64 exec, -1")]
        sp2 = "s_buffer_load_dwordx8 s[88:95], %s, s%d glc" % (sr(SRD_WS), S_T3)
        pubs = c.get("pubs", {5: 2, 6: 3, 7: 4, 8: 5})
        pubgap = {}
        for idx, j in enumerate(range(1, 8)):
            B = (V_AKX if idx & 1 else V_T)
            last = max(done[(u, j)] for u in range(4))
            prev = max(done[(u, j - 2)] for u in range(4)) + 13 if j > 2 else 0
            cv = {}
            for u in (3, 0, 1, 2):
                for k in range(2):
                    cv[(u, k)] = Op(I("v_cvt_pk_bf16_f32 v%d, v%d, v%d" % (B + 2 * u + k, acc(u, j) + 2 * k, acc(u, j) + 2 * k + 1)), max(done[(u, j)] + 5, prev), min(last + 9, n - 3))
                    C.append(cv[(u, k)])
            st = [I("buffer_store_dwordx4 %s, v%d, %s, s%d offen offset:%d sc1" % (vr(B + 4 * hf), V_L16, sr(SRD_WS), S_SO, hf * 1024), "pst%d" % j) for hf in range(2)]
            pre = [I("s_xor_b32 s%d, s%d, %d" % (S_SO, S_HG, j)), I("s_mul_i32 s%d, s%d, 57344" % (S_SO, S_SO)), I("s_add_u32 s%d, s%d, s%d" % (S_SO, S_SO, S_PB)), I("s_add_u32 s%d, s%d, %d" % (S_SO, S_SO, j * 8192))]
            if j in pubs: pubgap[j] = done[(1, j)] + 3
            D.append(Op(st[0], min(done[(1, j)] + 6, n - 2), last + 5, hard=min(last + 10, n - 2), pre=pre, dep=[cv[(u, k)] for u in (0, 1) for k in range(2)]))
            D.append(Op(st[1], min(last + 6, n - 1), last + 7, hard=min(last + 11, n - 1), dep=[cv[(u, k)] for u in (2, 3) for k in range(2)]))
        if 8 in pubs: pubgap[8] = n - c.get("puboff", 12)
        npub = 0
        for j in sorted(pubs):
            r = V_OO + sorted(pubs).index(j)
            self.ins[self.pubsetup:self.pubsetup] = [I("s_mov_b64 vcc, 0x%x" % sum(1 << k for k in range(npub + 1, pubs[j] + 1))), I("v_cndmask_b32 v%d, v6, v%d, vcc" % (r, V_OV))]
            G.pre[pubgap[j] - 1] += [W(vm="pst%d" % pubs[j])]
            G.mem[pubgap[j]].append(I("buffer_store_dword v7, v%d, %s, 0 offen sc1" % (r, sr(SRD_WS)), "flag2")); G.pre[pubgap[j]].append(I("L_pub%d:" % j)); npub = pubs[j]
        schedule(G, L, D, X, C, "phaseC"); self.gstamps(G, "c")
        G.pre[n - c.get("spoffP", 6)] += [W(lgkm0=True), I(sp2)]
        self.add(G.flatten())
        a.stamp("C1"); a.stamp("spin0")
        def red(j):
            for d in range(8):
                x = acc(0, j) + d; t = acc(2, j) + 2 * (d & 3)
                a("v_lshlrev_b32 v%d, 16, v%d" % (t, x)); a("v_and_b32 v%d, 0xffff0000, v%d" % (t + 1, x))
                a("v_pk_add_f32 %s, %s, %s" % (vr(V_O + 2 * d, 2), vr(V_O + 2 * d, 2), vr(t, 2)))
        NE = c.get("nearly", 3); NB = c.get("nblock", 5)
        a("s_waitcnt lgkmcnt(0)")
        def ldin(j, hidden=False):
            a("s_add_u32 s%d, s%d, %d" % (S_SO, S_LX, j * 8192))
            for hf in range(2):
                a("buffer_load_dwordx4 %s, v%d, %s, s%d offen offset:%d sc1" % (vr(acc(hf, j)), V_L16, sr(SRD_WS), S_SO, hf * 1024), "in%d" % j)
                if hidden: self.ins[-1].kind = "opaque"
        def block(j):
            a("s_cmp_eq_u32 s%d, 0" % (88 + j)); a("s_cbranch_scc1 L_f%d_%s" % (j, "pub" if j <= NE else "spin")); a("L_f%d_ok:" % j)
            t = []
            if j <= NE: t += ["L_f%d_pub:" % j, "s_waitcnt vmcnt(0)"] + [x.t for x in pub(npub + 1, 7)]
            t += ["L_f%d_spin:" % j, "s_add_u32 s%d, s%d, 1" % (S_SPIN, S_SPIN), "s_cmp_ge_u32 s%d, 0x%x" % (S_SPIN, SPIN_MAX), "s_cbranch_scc1 L_f%d_ok" % j,
                  sp2, "s_waitcnt lgkmcnt(0)", "s_cmp_eq_u32 s%d, 0" % (88 + j), "s_cbranch_scc1 L_f%d_spin" % j, "s_branch L_f%d_ok" % j]
            for x in t: self.tail.append(I(x))
        for j in range(1, NB + 1):
            block(j); ldin(j)
            if j == NE:
                a.stamp("T0"); a.stamp("spin1")
                for k in range(npub + 1, 8):
                    if k == 7: a(sp2)
                    a.add([W(vm="pst%d" % k)] + pub(k, k))
                a("s_waitcnt lgkmcnt(0)")
                a.stamp("T1"); a.stamp("spin2")
        a("s_mov_b32 s%d, %d" % (S_T0, NB + 1))
        ntry = [0]
        def tryall():
            ntry[0] += 1
            a("s_waitcnt lgkmcnt(0)")
            for j in range(NB + 1, 8):
                lab = "L_try%d_%d" % (ntry[0], j)
                a("s_cmp_lg_u32 s%d, %d" % (S_T0, j)); a("s_cbranch_scc1 %s" % lab); a("s_cmp_eq_u32 s%d, 0" % (88 + j)); a("s_cbranch_scc1 %s" % lab)
                ldin(j, True); a("s_add_u32 s%d, s%d, 1" % (S_T0, S_T0)); a("%s:" % lab)
        tryall()
        for j in range(1, NB + 1):
            if j in c.get("tryat", (1, 3)): a(sp2)
            red(j)
            if j in c.get("tryat", (1, 3)): tryall()
        a.stamp("T2"); a.stamp("spin3")
        for j in range(NB + 1, 8):
            a("s_cmp_gt_u32 s%d, %d" % (S_T0, j)); a("s_cbranch_scc1 L_have%d" % j)
            block(j); ldin(j, True); a("L_have%d:" % j)
        for j in range(NB + 1, 8):
            a("s_waitcnt vmcnt(%d)" % (2 * (7 - j))); red(j)
        a.stamp("T3")
        a("ds_write_b128 v%d, %s offset:%d" % (V_SCR, vr(acc(3, 0)), OSCR - SL(2)))
        osc = c.get("outsc", "")
        for u in range(3):
            for k in range(2): a("v_cvt_pk_bf16_f32 v%d, v%d, v%d" % (T + 2 * u + k, acc(u, 0) + 2 * k, acc(u, 0) + 2 * k + 1))
        a.add([W(lgkm0=True), I("s_barrier")])
        a("ds_read_b128 %s, v%d offset:%d" % (vr(4), 1, OSCR - SL(2)))
        for u in range(3):
            a("buffer_store_dwordx2 %s, v%d, %s, s%d offen%s" % (vr(T + 2 * u, 2), V_OV + 1, sr(SRD_OUT), S_T1, osc))
            if u < 2: a("s_add_u32 s%d, s%d, 16384" % (S_T1, S_T1))
        a("s_cmp_eq_u32 s%d, 1" % S_E); a("s_cbranch_scc1 L_fin")
        for k in range(2): a("v_pk_add_f32 %s, %s, %s" % (vr(4 + 2 * k, 2), vr(4 + 2 * k, 2), vr(acc(3, 0) + 2 * k, 2)))
        for k in range(2): a("v_cvt_pk_bf16_f32 v%d, v%d, v%d" % (2 + k, 4 + 2 * k, 5 + 2 * k))
        a("buffer_store_dwordx2 %s, v%d, %s, s%d offen%s" % (vr(2, 2), V_OV + 1, sr(SRD_OUT), S_T2, osc))
        a("L_fin:")

    def fallback(self):
        t = lambda s: self.tail.append(I(s)); T = V_T
        t("L_fallback:")
        t("s_waitcnt vmcnt(0) lgkmcnt(0)"); t("s_barrier")
        t("s_mov_b32 s%d, 0x7f800000" % S_RETRY); t("s_mov_b32 s%d, 0" % S_KC)
        M = [V_NEGM + 4 * u for u in range(4)]
        for u in range(4): t("v_mov_b32 v%d, 0xff800000" % M[u])
        t("L_fb_loop:")
        t("s_add_u32 m0, s%d, 0x%x" % (S_L4, KSL(0))); t("s_add_u32 s%d, s%d, s%d" % (S_SO, S_KVB, S_KC))
        for j in range(4): t("buffer_load_dwordx4 v%d, %s, s%d offen offset:%d lds" % (V_OK + j, sr(SRD_K), S_SO, j * 1024))
        t("s_waitcnt vmcnt(0)"); t("s_barrier")
        for ad in (V_AKX, V_AKY):
            for kt in range(2):
                for s in range(4): t("ds_read_b128 %s, v%d offset:%d" % (ar(A_XF + 4 * s), ad + s, KSL(0) - K_WIN + kt * 4096))
                t("s_waitcnt lgkmcnt(0)")
                for u in range(4):
                    for s in range(4):
                        Dd = V_SY + 4 * u
                        t("%s %s, %s, %s, %s" % (MF, vr(Dd), ar(A_XF + 4 * s), ar(A_Q + 16 * u + 4 * s), "0" if s == 0 else vr(Dd)))
                t("s_nop 7")
                for u in range(4):
                    Dd = V_SY + 4 * u
                    t("v_max3_f32 v%d, v%d, v%d, v%d" % (M[u], M[u], Dd, Dd + 1)); t("v_max3_f32 v%d, v%d, v%d, v%d" % (M[u], M[u], Dd + 2, Dd + 3))
                t("s_nop 1")
        t("s_barrier")
        t("s_add_u32 s%d, s%d, 0x4000" % (S_KC, S_KC)); t("s_cmp_lt_u32 s%d, 0x20000" % S_KC); t("s_cbranch_scc1 L_fb_loop")
        for u in range(4): t("v_mov_b32 v%d, v%d" % (V_SY + u, M[u]))
        save = self.ins; self.ins = self.tail
        self.rowmax_finish([V_SY + u for u in range(4)])
        self.ins = save
        t("s_mov_b32 s%d, 0x40000000" % S_NEUT); t("s_branch L_restart")

    def build(self):
        a = self
        self.prologue(); self.streamAB(); self.stamp("B1"); self.transBC(); self.phaseC()
        self.fallback()
        ex = self.c.get("exp", "")
        if ex:
            seen = 0; keep = []
            for i in self.ins:
                if i.kind == "mfma": seen += 1
                if 0 < seen < self.nAB:
                    if "d" in ex and i.kind == "vm" and i.lds: continue
                    if "b" in ex and i.op == "s_barrier": continue
                    if "v" in ex and i.kind == "pseudo": i.need = (None, i.need[1])
                    if "l" in ex and i.kind == "pseudo": i.need = (i.need[0], False)
                    if "x" in ex and i.op == "v_exp_f32": continue
                if "v" in ex and i.kind == "vm" and i.lds and seen: keep.append(I("s_waitcnt vmcnt(40)"))
                if i.op == "s_cbranch_vccnz" and "fallback" in i.t: continue
                keep.append(i)
            self.ins = keep
        main = insert_waits(self.ins, AGE=self.c.get("age", 8), MINAGE=self.c.get("minage", 6))
        main, n1 = fix_hazards(main, self.c.get("verbose"))
        tail, n2 = fix_hazards(self.tail)
        verify_waits(main)
        est = estimate(main); nb = self.nAB
        sys.stderr.write("issue estimate A(0..335) %d  trans(336..pv0) %d  B %d  P0 %d  C %d; waits %d\n" % (sum(est[:336]), sum(est[336:self.pv0]), sum(est[self.pv0:nb - 1]), sum(est[nb:nb + 111]), sum(est[nb + 112:]), sum(1 for i in main if i.op == "s_waitcnt")))
        sys.stderr.write("hazard pads %d, instructions %d\n" % (n1, len(main) + len(tail)))
        A = Asm()
        for i in main:
            if i.kind == "label": A.raw(i.t)
            else: A(i.t)
        if self.c.get("stamps"):
            A("s_waitcnt vmcnt(0)")
            n = 2 + len(self.c["stamps"].split(","))
            for i in self.stamp_at(n - 1): A(i.t)
            A("s_lshl2_add_u32 s%d, s2, s3" % S_T0); A("s_mul_i32 s%d, s%d, %d" % (S_T0, S_T0, 16 * n)); A("s_add_u32 s%d, s%d, 0x%x" % (S_T0, S_T0, STAMP_OFF))
            A("s_mov_b64 exec, 1"); A("v_mov_b32 v4, s%d" % S_T0); A("v_mov_b32 v3, 0")
            for k in range(n):
                for h in range(2):
                    A("v_mov_b32 v2, s%d" % (STAMP0 + 2 * k + h)); A("global_store_dwordx2 v4, v[2:3], s[18:19] offset:%d" % (8 * (k + h * n))); A("s_nop 1")
            sys.stderr.write("stamps: %d\n" % (2 * n))
        A.label("L_end"); A("s_endpgm")
        for i in tail:
            if i.kind == "label": A.raw(i.t)
            else: A(i.t)
        A.label("L_codeend")
        return A.text()

def reduce_kernel():
    a = Asm()
    a("s_cmp_ge_u32 s2, 256"); a("s_cbranch_scc1 R_end")
    a("s_load_dwordx2 s[4:5], s[0:1], 40"); a("s_load_dwordx2 s[6:7], s[0:1], 56")
    a("v_lshrrev_b32 v1, 6, v0"); a("v_and_b32 v0, 63, v0"); a("v_readfirstlane_b32 s3, v1"); a("v_lshlrev_b32 v2, 4, v0")
    a("s_waitcnt lgkmcnt(0)")
    a("s_mov_b32 s8, s4"); a("s_and_b32 s9, s5, 0xffff"); a("s_mov_b32 s10, %d" % (8 * 224 * 512 * 2)); a("s_mov_b32 s11, 0x20000")
    a("s_mov_b32 s12, s6"); a("s_and_b32 s13, s7, 0xffff"); a("s_mov_b32 s14, 0x%x" % WS_BYTES); a("s_mov_b32 s15, 0x20000")
    a("s_lshl_b32 s16, s2, 16"); a("s_lshl_b32 s17, s3, 11"); a("s_add_u32 s16, s16, s17"); a("s_add_u32 s16, s16, 0x%x" % PB_OFF)
    for hg in range(8):
        a("s_add_u32 s17, s16, %d" % (hg * 8192)); a("s_xor_b32 s18, s17, 2048")
        a("buffer_load_dwordx4 %s, v2, s[12:15], s17 offen" % vr(32 + 12 * hg))
        a("buffer_load_dwordx4 %s, v2, s[12:15], s17 offen offset:1024" % vr(36 + 12 * hg))
        a("buffer_load_dwordx2 %s, v2, s[12:15], s18 offen offset:1032" % vr(40 + 12 * hg, 2))
    a("s_lshr_b32 s19, s2, 5"); a("s_mul_i32 s19, s19, 224"); a("s_lshr_b32 s20, s3, 1"); a("s_mul_i32 s20, s20, 112"); a("s_add_u32 s19, s19, s20")
    a("s_lshl_b32 s19, s19, 10"); a("s_and_b32 s20, s2, 31"); a("s_lshl_b32 s20, s20, 5"); a("s_add_u32 s19, s19, s20")
    a("s_and_b32 s20, s3, 1"); a("s_lshl_b32 s21, s20, 16"); a("s_add_u32 s21, s21, s19"); a("s_add_u32 s22, s19, %d" % (48 * 1024))
    a("v_and_b32 v3, 15, v0"); a("v_lshlrev_b32 v3, 10, v3"); a("v_lshrrev_b32 v4, 4, v0"); a("v_lshl_add_u32 v3, v4, 3, v3")
    for k in range(16): a("v_mov_b32 v%d, 0" % (8 + k))
    for hg in range(8):
        a("s_waitcnt vmcnt(%d)" % (21 - 3 * hg))
        for d in range(10):
            src = 32 + 12 * hg + d; dd = d if d < 8 else d - 2
            a("v_lshlrev_b32 v4, 16, v%d" % src); a("v_and_b32 v5, 0xffff0000, v%d" % src)
            a("v_add_f32 v%d, v%d, v4" % (8 + 2 * dd, 8 + 2 * dd)); a("v_add_f32 v%d, v%d, v5" % (9 + 2 * dd, 9 + 2 * dd))
    for d in range(8): a("v_cvt_pk_bf16_f32 v%d, v%d, v%d" % (24 + d, 8 + 2 * d, 9 + 2 * d))
    for u in range(3):
        a("buffer_store_dwordx2 %s, v3, s[8:11], s21 offen" % vr(24 + 2 * u, 2)); a("s_add_u32 s21, s21, 16384")
    a("s_cmp_eq_u32 s20, 1"); a("s_cbranch_scc1 R_end")
    a("buffer_store_dwordx2 %s, v3, s[8:11], s22 offen" % vr(30, 2))
    a.label("R_end"); a("s_endpgm")
    return a.text()

DEFAULT = dict(
    kvA={5: [("K", 0)], 6: [("V", 0)], 7: [("K", 1), ("V", 1)]},
    kvB={-1: [("K", 2)], 0: [("V", 2), ("K", 3)], 1: [("V", 3), ("K", 4)], 2: [("V", 4), ("K", 5)], 3: [("V", 5), ("K", 6)], 4: [("V", 6), ("K", 7)],
         5: [("V", 7), ("WO", (0, 0)), ("WO", (0, 1))], 6: [("WO", (1, 0)), ("WO", (2, 0)), ("WO", (3, 0))], 7: [("WO", (1, 1)), ("WO", (2, 1)), ("WO", (3, 1))]},
    touch_n=21, map=1, rot='two', wotouch=99,
)
HEADER = open("standalone__gqa_block_cached__near_ridge.s.ref").read().split("; Override")[0]

def generate(fn, **kw):
    cfg = dict(DEFAULT); cfg.update(kw); OLAY[0] = cfg.get("olay", 1)
    body = K(cfg).build()
    ks = [(KN, body, 256, 256, 163840, 512, 256)]
    open(fn, "w").write(wrap(ks, HEADER))

if __name__ == "__main__":
    import ast
    kw = {}
    for x in sys.argv[2:]:
        k, v = x.split("=", 1)
        try: v = ast.literal_eval(v)
        except Exception: pass
        kw[k] = v
    generate(sys.argv[1], **kw)
```

```python
import sys, math, struct
from asmlib import Asm, wrap, KN, STAMP_OFF
from stream import *

MF = "v_mfma_f32_16x16x32_bf16"
def vr(b, n=4): return "v[%d:%d]" % (b, b + n - 1)
def ar(b, n=4): return "a[%d:%d]" % (b, b + n - 1)
def sr(b, n=4): return "s[%d:%d]" % (b, b + n - 1)
def f2u(x): return struct.unpack("<I", struct.pack("<f", x))[0]

S_WG, S_W = 2, 3
SRD_X, SRD_WQ, SRD_K, SRD_V, SRD_WO, SRD_WS, SRD_OUT, SRD_DBG = 20, 24, 28, 32, 36, 40, 44, 48
S_B, S_H, S_HG, S_CQ, S_E, S_ROT = 4, 5, 6, 7, 8, 9
S_XB, S_WB, S_KVB, S_WOB, S_LX, S_L4 = 10, 11, 12, 13, 14, 15
S_OB, S_PB = 16, 17
S_C0 = 52
S_NEUT = 53
S_SO = 54
S_T0, S_T1, S_T2, S_T3 = 55, 56, 57, 58
S_XCC, S_RETRY, S_FL = 59, 60, 61
S_KC = 62
S_SPIN = 63
S_OS = 92
S_CH, S_ACC, S_BIAS = 99, 100, 101
SPIN_MAX = 1 << 20
STAMP0 = 68
S_AS = 84
V_OK, V_OV, V_OO = 8, 12, 14
V_L16, V_L0, V_POLL, V_SCR = 18, 19, 20, 21
V_AKX, V_AKY, V_AVX, V_AVY = 22, 26, 30, 38
V_T = 46
V_SX, V_SY = 56, 88
V_NEGM = 112
V_O = 128
V_OX, V_OW, V_AX, V_AW = 76, 60, 64, 68
A_Q, A_L, A_ONE, A_XF, A_RING = 0, 64, 80, 96, 192
NRING = 16
SL = lambda i: i * 16384
XS = lambda c: ((7 - c) % 3) * 28672
WS_ = lambda c: SL(6 + (7 - c) % 3)
KSL = lambda i: SL(9 - i % 4)
VSL = lambda i: SL(5 - i % 4)
WOSL = {(0, 0): SL(0), (0, 1): SL(1), (1, 0): SL(9), (2, 0): SL(8), (3, 0): SL(5), (1, 1): SL(7), (2, 1): SL(4), (3, 1): SL(6)}
K_WIN, V_WIN, WQ_WIN = SL(6), SL(2), SL(6)
QSCR = SL(2); OSCR = SL(3); LSCR = SL(6)
FL_OFF = 64 << 20
FL3 = 1 << 17
FLP_OFF = 65 << 20
WS_BYTES = 256 << 20
ACT = (0, 1, 4, 5)

OLAY = [1]; NTF = ['']
def opos(u, s):
    if OLAY[0] == 0: return 4 * u + s if u < 3 else 12 + s // 2
    return (0, 3, 7, 11)[s] + u if (u, s) != (3, 0) else 6

class Op:
    def __init__(self, ins, lo, hi, hard=None, pre=(), dep=None):
        self.i = ins; self.lo = lo; self.hi = hi; self.hard = hi if hard is None else hard; self.pre = list(pre); self.dep = dep; self.g = None; self.use = self.hard + 1

def schedule(G, L, D, X, C, name=""):
    n = G.n()
    for q in (L, D, X, C):
        for k in range(len(q) - 2, -1, -1):
            q[k].hi = min(q[k].hi, q[k + 1].hi - 1); q[k].hard = min(q[k].hard, q[k + 1].hard)
    ptr = {"L": 0, "D": 0, "X": 0, "C": 0}; Q = {"L": L, "D": D, "X": X, "C": C}
    lastD = [-5]
    def head(k):
        return Q[k][ptr[k]] if ptr[k] < len(Q[k]) else None
    def slots(o, g):
        return [x for x in range(max(lastD[0] + 1, 0, g - 12), g) if not G.pre[x]]
    def avail(o, g, strict=True):
        if o is None or o.lo > g: return False
        if o.dep is not None:
            for d in o.dep:
                if d.g is None or (strict and d.g >= g): return False
        if strict and o.i.kind == "vm":
            if G.pre[g]: return False
            if len(slots(o, g)) < len(o.pre): return False
        return True
    def put(k, g):
        o = head(k); o.g = g; ptr[k] += 1
        if g < 0:
            G.head += o.pre + [o.i]; return
        if k in "LD":
            pre = list(o.pre)
            if k == "D":
                sl = slots(o, g); sl = sl[max(0, len(sl) - len(pre)):] if pre else []
                for x in sl: G.pre[x].append(pre.pop(0))
                lastD[0] = g
            if G.mem[g] and pre: G.mem[g] += pre + [o.i]
            else: G.pre[g] += pre; G.mem[g].append(o.i)
        else: G.val[g].append(o.i)
    over = 0
    for g in range(-1, n):
        if g >= 0:
            cands = [(head(k).hi, k) for k in "LDX" if avail(head(k), g)]
            cands = [x for x in cands if G.cost(g) <= (4 if x[1] == "L" and not G.mem[g] else 0)]
            if cands:
                put(min(cands)[1], g)
            while G.cost(g) <= 4 and g not in G.blocked:
                if avail(head("C"), g): put("C", g)
                elif avail(head("X"), g) and head("X").i.op not in TRANS: put("X", g)
                else: break
        if g < 0:
            while head("L") is not None and head("L").hi < 0 and head("L").lo < 0: put("L", g)
        ch = True
        while ch:
            ch = False
            for k in "LDXC":
                o = head(k)
                if o is not None and o.hard <= g:
                    assert avail(o, g, False), "%s: cannot meet hard deadline g=%d lo=%d %s" % (name, g, o.lo, o.i.t)
                    put(k, g); ch = True; over += g >= 0
    for k in "LDXC": assert head(k) is None, (name, k, head(k).i.t, head(k).lo, n)
    leads = sorted(o.use - o.g for o in L if o.g >= 0)
    sys.stderr.write("%s: mfma %d est %d cycles (floor %d), forced %d, lds leads min %s\n" % (name, n, G.est(), 16 * n, over, leads[:24]))

def spread(G, TV):
    cost = lambda o: 8 if (o.i.op in TRANS or o.i.op.startswith("v_permlane")) else 4
    for k in range(len(TV) - 2, -1, -1): TV[k].hard = min(TV[k].hard, TV[k + 1].hard)
    for k in range(1, len(TV)): TV[k].lo = max(TV[k].lo, TV[k - 1].lo)
    p = 0; g = TV[0].lo
    while p < len(TV):
        rate = 8; acc = 0
        for k in range(p, len(TV)):
            acc += cost(TV[k]); h = TV[k].hard
            if k + 1 < len(TV) and TV[k + 1].hard == h: continue
            assert h >= g, (TV[k].i.t, g, h)
            rate = max(rate, (acc + sum(G.cost(x) for x in range(g, h + 1))) / (h - g + 1))
        while p < len(TV) and TV[p].lo <= g and (G.cost(g) + cost(TV[p]) / 2 <= rate or TV[p].hard <= g):
            G.val[g].append(TV[p].i); p += 1
        g += 1

class Ring:
    def __init__(self): self.k = 0; self.free_at = [-1] * NRING
    def alloc(self, last_use):
        s = self.k % NRING; self.k += 1; lo = self.free_at[s]; self.free_at[s] = last_use
        return A_RING + 4 * s, lo
    def peek(self, ahead=0): return A_RING + 4 * ((self.k + ahead) % NRING)

def tile_dma(kind, idx, lds, lo, hi, nt=True):
    ops = []
    if kind == "K": srd, vo, base, off, fl = SRD_K, lambda j: V_OK + j, S_KVB, idx * 16384, " nt" if nt else ""
    elif kind == "V": srd, vo, base, off, fl = SRD_V, lambda j: V_OV + (j & 1), S_KVB, idx * 16384, " nt" if nt else ""
    else: srd, vo, fl = SRD_WO, lambda j: V_OO + j, ""
    if kind == "WT":
        return [Op(I("buffer_load_dword a%d, v3, %s, s%d offen offset:%d%s" % (85 + j, sr(SRD_WO), S_SO, (j & 1) * 2048, " nt" if "o" in NTF[0] else ""), "WT"), lo, lo + (hi - lo) * (j + 1) // 4, hard=hi,
                   pre=[I("s_add_u32 s%d, s%d, %d" % (S_SO, S_ROT, (j >> 1) * 4096))] if j % 2 == 0 else []) for j in range(idx)]
    if kind == "WR":
        return [Op(I("buffer_load_dwordx4 %s, v%d, %s, s%d offen offset:%d" % (ar(A_XF + 4 * j), V_OO + j, sr(SRD_WO), S_SO, j * 1024), "WOr"), lo, lo + (hi - lo) * (j + 1) // 4, hard=hi,
                   pre=[I("s_xor_b32 s%d, s%d, 0x%x" % (S_SO, S_WOB, (3 << 17) | (1 << 16)))] if j == 0 else []) for j in range(4)]
    tag = "%s%s" % (kind, idx)
    for j in range(4):
        pre = []
        if j == 0:
            pre = [I("s_add_u32 m0, s%d, 0x%x" % (S_L4, lds))]
            if kind == "WO":
                hh, half = idx
                pre += [I("s_xor_b32 s%d, s%d, 0x%x" % (S_SO, S_WOB, (hh << 17) | (half << 16)))]
            else: pre += [I("s_add_u32 s%d, s%d, 0x%x" % (S_SO, base, off))]
        h = lo + (hi - lo) * (j + 1) // 4
        ops.append(Op(I("buffer_load_dwordx4 v%d, %s, s%d offen offset:%d%s lds" % (vo(j), sr(srd), S_SO, j * 1024, fl), tag), lo, h, hard=hi, pre=pre))
    return ops

def stage_so(c): return (S_AS + 2 * (c % 7), S_AS + 2 * (c % 7) + 1)
def stage_setup(c):
    sw, sx = stage_so(c)
    return [I("s_add_u32 s%d, s%d, %d" % (S_KC, S_ROT, c)), I("s_and_b32 s%d, s%d, 7" % (S_KC, S_KC)),
            I("s_lshl_b32 s%d, s%d, 19" % (sw, S_KC)), I("s_add_u32 s%d, s%d, s%d" % (sw, sw, S_WB)),
            I("s_lshl_b32 s%d, s%d, 7" % (sx, S_KC)), I("s_add_u32 s%d, s%d, s%d" % (sx, sx, S_XB))]
def stage_dma(c, lo, hi):
    ops = []; tag = "A%d" % c
    seq = []; sw, sx = stage_so(c)
    for j in range(4):
        seq.append((I("buffer_load_dwordx4 v%d, %s, s%d offen offset:%d%s lds" % (V_OW + j, sr(SRD_WQ), sw, j * 1024, " nt" if "w" in NTF[0] else ""), tag), [I("s_add_u32 m0, s%d, 0x%x" % (S_L4, WS_(c)))] if j == 0 else []))
    for j in range(7):
        p = [I("s_add_u32 m0, s%d, 0x%x" % (S_LX, XS(c) + 1024 * j))] if j in (0, 4) else []
        seq.append((I("buffer_load_dwordx4 v%d, %s, s%d offen offset:%d%s lds" % (V_OX + j, sr(SRD_X), sx, (j & 3) * 1024, " nt" if "x" in NTF[0] else ""), tag), p))
    for k, (ins, p) in enumerate(seq):
        ops.append(Op(ins, lo, lo + (hi - lo) * (k + 1) // len(seq), hard=hi, pre=p))
    return ops

def flat(ops):
    out = []
    for o in ops: out += o.pre + [o.i]
    return out

class K:
    def __init__(self, cfg):
        self.c = cfg; self.ins = []; self.nst = 0; NTF[0] = cfg.get("ntf", "")
    def __call__(self, s, tag=None):
        for l in s.split("\n"):
            l = l.strip()
            if l: self.ins.append(I(l, tag))
    def add(self, lst): self.ins += lst
    def stamp_ins(self, name):
        st = self.c.get("stamps")
        if not st or name not in st.split(","): return []
        return self.stamp_at(1 + st.split(",").index(name), name.startswith("spin"))
    def stamp_at(self, k, spin=False):
        b = STAMP0 + 2 * k
        assert b + 1 < S_AS
        if spin: return [I("s_mov_b32 s%d, s%d" % (b, STAMP0)), I("s_add_u32 s%d, s%d, s%d" % (b + 1, STAMP0 + 1, S_SPIN))]
        return [I("s_waitcnt lgkmcnt(0)"), I("s_memrealtime s[64:65]"), I("s_memtime s[66:67]"), I("s_waitcnt lgkmcnt(0)"), I("s_mov_b32 s%d, s64" % b), I("s_mov_b32 s%d, s66" % (b + 1))]
    def stamp(self, name): self.add(self.stamp_ins(name))
    def gstamps(self, G, prefix):
        for nm in (self.c.get("stamps") or "").split(","):
            if nm.startswith(prefix) and nm[len(prefix):].isdigit(): G.val[int(nm[len(prefix):])] += self.stamp_ins(nm)

    def prologue(self):
        a = self; c = self.c
        a("s_cmp_ge_u32 s2, 256"); a("s_cbranch_scc1 L_end")
        for d, off in ((SRD_WQ, 24), (SRD_X, 0)):
            a("s_load_dwordx2 s[%d:%d], s[0:1], %d" % (d, d + 1, off))
        if c.get("stamps"):
            a("s_memrealtime s[64:65]"); a("s_memtime s[66:67]")
        T = V_T
        if c.get("touch", 1):
            a("s_getpc_b64 s[%d:%d]" % (S_T1, S_T2)); a("L_pc:")
            a("s_bfe_u32 s%d, s2, 0x20003" % S_T0); a("s_mul_i32 s%d, s%d, %d" % (S_T0, S_T0, c["touch_n"] * 512))
            a("v_min_u32 v6, %d, v0" % (4 * c["touch_n"] - 1)); a("v_lshl_add_u32 v6, v6, 7, s%d" % S_T0)
            a("v_min_u32 v6, L_codeend-L_pc-4, v6")
            a("global_load_dword a84, v6, s[%d:%d]" % (S_T1, S_T2), "touch")
        a("v_lshrrev_b32 v1, 6, v0"); a("v_and_b32 v0, 63, v0"); a("v_readfirstlane_b32 s3, v1")
        a("s_mov_b32 s%d, 0" % S_NEUT)
        a("L_restart:")
        a("v_lshrrev_b32 v1, 4, v0"); a("v_and_b32 v2, 15, v0"); a("v_lshrrev_b32 v3, 3, v0"); a("v_and_b32 v4, 7, v0")
        a("s_and_b32 s%d, s2, 7" % S_ROT); a("s_lshr_b32 s%d, s2, 3" % S_T3)
        if c.get("map", 2) == 2:
            a("s_and_b32 s%d, s%d, 7" % (S_B, S_T3)); a("s_lshr_b32 s%d, s%d, 3" % (S_CQ, S_T3))
            a("s_lshl2_add_u32 s%d, s%d, s%d" % (S_H, S_ROT, S_CQ))
        elif c["map"] == 3:
            a("s_bfe_u32 s%d, s2, 0x10002" % S_B); a("s_and_b32 s%d, s%d, 3" % (S_T0, S_T3)); a("s_lshl2_add_u32 s%d, s%d, s%d" % (S_B, S_B, S_T0))
            a("s_and_b32 s%d, s2, 3" % S_H); a("s_lshr_b32 s%d, s2, 5" % S_T0); a("s_lshl3_add_u32 s%d, s%d, s%d" % (S_H, S_H, S_T0))
            if c.get("rot") == "xcd": a("s_bfe_u32 s%d, s2, 0x10002" % S_T0); a("s_and_b32 s%d, s2, 3" % S_ROT); a("s_lshl1_add_u32 s%d, s%d, s%d" % (S_ROT, S_ROT, S_T0))
        else:
            a("s_and_b32 s%d, s2, 1" % S_B); a("s_and_b32 s%d, s%d, 3" % (S_T0, S_T3)); a("s_lshl2_add_u32 s%d, s%d, s%d" % (S_B, S_B, S_T0))
            a("s_lshr_b32 s%d, s%d, 1" % (S_H, S_ROT)); a("s_lshr_b32 s%d, s2, 5" % S_T0); a("s_lshl3_add_u32 s%d, s%d, s%d" % (S_H, S_H, S_T0))
        a("v_lshlrev_b32 v5, 1, v1"); a("v_xor_b32 v5, v5, v2"); a("v_lshlrev_b32 v5, 4, v5")
        a("v_lshl_add_u32 v%d, v1, 13, v5" % V_OW)
        a("v_add_u32 v%d, %d, v%d" % (V_OW + 1, 31744, V_OW))
        a("v_xor_b32 v6, 0x80, v%d" % V_OW)
        a("v_add_u32 v%d, %d, v6" % (V_OW + 2, 2 * 31744)); a("v_add_u32 v%d, %d, v6" % (V_OW + 3, 3 * 31744))
        a("s_lshl_b32 s%d, s%d, 8" % (S_WB, S_H)); a("s_lshl_b32 s%d, s3, 17" % S_T0); a("s_add_u32 s%d, s%d, s%d" % (S_WB, S_WB, S_T0))
        a("s_lshl_b32 s%d, s3, 12" % S_L4)
        def srd(d, nb):
            a("s_mov_b32 s%d, 0x%x" % (d + 2, nb)); a("s_mov_b32 s%d, 0x20000" % (d + 3))
        srd(SRD_WQ, 512 * 4096 * 2); srd(SRD_X, 8 * 224 * 512 * 2)
        a("s_and_b32 s%d, s3, 1" % S_E); a("s_lshl_b32 s%d, s%d, 6" % (S_T1, S_E))
        a("v_xor_b32 v6, v4, v1"); a("v_lshlrev_b32 v6, 4, v6"); a("v_lshl_add_u32 v6, v3, 10, v6")
        a("v_xor_b32 v%d, s%d, v6" % (V_OX, S_T1))
        a("v_xor_b32 v7, 64, v%d" % V_OX)
        a("v_add_u32 v%d, %d, v7" % (V_OX + 1, 7168)); a("v_add_u32 v%d, %d, v%d" % (V_OX + 2, 2 * 7168, V_OX)); a("v_add_u32 v%d, %d, v7" % (V_OX + 3, 3 * 7168))
        for j in range(4, 7): a("v_add_u32 v%d, 0x8000, v%d" % (V_OX + j, V_OX + j - 4))
        a("s_mul_i32 s%d, s%d, %d" % (S_XB, S_B, 229376)); a("s_mul_i32 s%d, s3, %d" % (S_T0, 57344)); a("s_add_u32 s%d, s%d, s%d" % (S_XB, S_XB, S_T0))
        a("s_mul_i32 s%d, s3, 7168" % S_LX)
        rot = c.get("rot", "xcd")
        if rot == "two":
            a("s_add_u32 s%d, s%d, s%d" % (S_T0, S_B, S_H)); a("s_and_b32 s%d, s%d, 1" % (S_T0, S_T0)); a("s_lshl2_add_u32 s%d, s%d, s%d" % (S_ROT, S_T0, S_ROT))
        a.add(stage_setup(0) + stage_setup(1))
        a("s_waitcnt lgkmcnt(0)")
        for d, off in ((SRD_K, 8), (SRD_V, 16), (SRD_WO, 32), (SRD_OUT, 40), (SRD_DBG, 48), (SRD_WS, 56)):
            a("s_load_dwordx2 s[%d:%d], s[0:1], %d" % (d, d + 1, off))
        a.add(flat(stage_dma(0, 0, 0)))
        st1 = stage_dma(1, 0, 0); n1 = c.get("n1", 4)
        a.add(flat(st1[:n1]))
        srd(SRD_K, 8 * 32 * 512 * 128 * 2); srd(SRD_V, 8 * 32 * 512 * 128 * 2); srd(SRD_WO, 4096 * 512 * 2)
        srd(SRD_OUT, 8 * 224 * 512 * 2); srd(SRD_DBG, 256); srd(SRD_WS, 66 << 20)
        a("s_waitcnt lgkmcnt(0)")
        if c.get("stamps"): a("s_mov_b64 s[18:19], s[%d:%d]" % (SRD_WS, SRD_WS + 1)); a("s_mov_b32 s%d, s64" % STAMP0); a("s_mov_b32 s%d, s66" % (STAMP0 + 1))
        a.stamp("S0"); self.w0 = len(self.ins)
        if c.get("wsoff"):
            a("s_add_u32 s%d, s%d, 0x%x" % (SRD_WS, SRD_WS, c["wsoff"] << 20)); a("s_addc_u32 s%d, s%d, 0" % (SRD_WS + 1, SRD_WS + 1))
        a("s_lshr_b32 s%d, s%d, 2" % (S_HG, S_H)); a("s_and_b32 s%d, s%d, 3" % (S_CQ, S_H))
        for ch in range(2, 8): a.add(stage_setup(ch))
        a("s_lshl_b32 s%d, s%d, 5" % (S_T0, S_B)); a("s_add_u32 s%d, s%d, s%d" % (S_T0, S_T0, S_H))
        a("s_lshl_b32 s%d, s%d, 17" % (S_KVB, S_T0)); a("s_add_u32 s%d, s%d, s%d" % (S_KVB, S_KVB, S_L4))
        a("s_lshl_b32 s%d, s%d, 2" % (S_T0, S_T0)); a("s_add_u32 s%d, s%d, s3" % (S_T0, S_T0))
        a("s_lshr_b32 s%d, s%d, 2" % (S_OB, S_B)); a("s_lshl_b32 s%d, s%d, 5" % (S_OB, S_OB)); a("s_add_u32 s%d, s%d, s%d" % (S_OB, S_OB, S_H))
        a("s_and_b32 s%d, s%d, 3" % (S_PB, S_B)); a("s_lshl2_add_u32 s%d, s%d, s%d" % (S_OB, S_OB, S_PB)); a("s_and_b32 s%d, s%d, 1" % (S_PB, S_B)); a("s_lshl1_add_u32 s%d, s%d, s%d" % (S_OB, S_OB, S_PB))
        a("s_lshl_b32 s%d, s%d, 17" % (S_OB, S_OB)); a("s_lshl_b32 s%d, s3, 11" % S_PB); a("s_add_u32 s%d, s%d, s%d" % (S_OB, S_OB, S_PB)); a("s_xor_b32 s%d, s%d, 0x20000" % (S_PB, S_OB))
        a("s_lshl_b32 s%d, s%d, 7" % (S_FL, S_T0)); a("s_add_u32 s%d, s%d, 0x%x" % (S_FL, S_FL, FL_OFF))
        a("s_lshl_b32 s%d, s%d, 10" % (S_XCC, S_T0)); a("s_add_u32 s%d, s%d, 0x%x" % (S_XCC, S_XCC, FLP_OFF))
        a("s_lshl_b32 s%d, s%d, 17" % (S_WOB, S_H)); a("s_lshl_b32 s%d, s3, 14" % S_T0); a("s_add_u32 s%d, s%d, s%d" % (S_WOB, S_WOB, S_T0))
        a("s_lshl_b32 s%d, s%d, 8" % (S_T0, S_CQ)); a("s_add_u32 s%d, s%d, s%d" % (S_WOB, S_WOB, S_T0))
        cc = f2u(math.log2(math.e) / math.sqrt(128.0))
        a("s_mov_b32 s%d, 0x%x" % (S_C0, cc))
        a("s_cmp_lg_u32 s%d, 0" % S_NEUT); a("s_cbranch_scc1 L_noinit")
        a("s_mov_b32 s%d, 0x%x" % (S_RETRY, f2u(2.0 ** 40))); a("s_mov_b32 s%d, 0" % S_SPIN)
        for u in range(4): a("v_mov_b32 v%d, 0x7f800000" % (V_NEGM + 4 * u))
        a("s_mov_b32 s%d, 0" % S_BIAS)
        if "pol" in c:
            a("s_lshr_b32 s%d, s%d, 21" % (S_BIAS, S_OB)); a("s_lshr_b32 s%d, s2, 2" % S_T0); a("s_xor_b32 s%d, s%d, s%d" % (S_BIAS, S_BIAS, S_T0))
            if c["pol"] == 2: a("s_lshr_b32 s%d, s2, 3" % S_BIAS)
            a("s_xor_b32 s%d, s%d, %d" % (S_BIAS, S_BIAS, c["pol"] & 1)); a("s_and_b32 s%d, s%d, 1" % (S_BIAS, S_BIAS)); a("s_lshl_b32 s%d, s%d, 21" % (S_BIAS, S_BIAS)); a("s_sub_u32 s%d, 0x100000, s%d" % (S_BIAS, S_BIAS))
        a("L_noinit:")
        a("s_lshl3_add_u32 s%d, s%d, s%d" % (S_T1, S_B, S_HG)); a("s_lshl_b32 s%d, s3, 8" % S_KC); a("s_lshl2_add_u32 s%d, s%d, s%d" % (S_KC, S_T1, S_KC)); a("s_add_u32 s%d, s%d, s%d" % (S_KC, S_KC, S_NEUT))
        a("v_lshlrev_b32 v%d, 4, v0" % V_L16)
        a("v_cmp_eq_u32 vcc, 0, v0"); a("v_bfrev_b32 v6, 1"); a("v_cndmask_b32 v%d, v6, 0, vcc" % V_L0)
        a("v_lshlrev_b32 v7, 7, v0"); a("s_mov_b64 vcc, 0xfe"); a("v_cndmask_b32 v%d, v6, v7, vcc" % (V_T + 8))
        a("v_and_b32 v6, 3, v0")
        a("v_xor_b32 v7, v2, v1"); a("v_lshlrev_b32 v7, 4, v7"); a("v_lshl_add_u32 v%d, v1, 8, v7" % V_OK)
        for j in (1, 2, 3): a("v_xor_b32 v%d, %d, v%d" % (V_OK + j, j << 6, V_OK))
        a("v_lshl_add_u32 v%d, v1, 8, v5" % V_OV); a("v_xor_b32 v%d, 0x80, v%d" % (V_OV + 1, V_OV))
        a("v_lshl_add_u32 v%d, v1, 10, v5" % V_OO); a("v_xor_b32 v7, 0x80, v%d" % V_OO)
        a("v_add_u32 v%d, 3072, v7" % (V_OO + 1)); a("v_add_u32 v%d, 6144, v%d" % (V_OO + 2, V_OO)); a("v_add_u32 v%d, 9216, v7" % (V_OO + 3))
        a("v_lshrrev_b32 v7, 1, v2"); a("v_xor_b32 v7, v7, v1"); a("v_lshlrev_b32 v7, 4, v7"); a("v_lshl_add_u32 v7, v2, 7, v7")
        a("s_lshr_b32 s%d, s3, 1" % S_T0); a("s_mul_i32 s%d, s%d, %d" % (S_T0, S_T0, 7 * 2048))
        a("s_lshl_b32 s%d, s%d, 13" % (S_T1, S_E)); a("s_add_u32 s%d, s%d, s%d" % (S_T2, S_T0, S_T1)); a("s_add_u32 s%d, s%d, %d" % (S_T0, S_T0, 3 * 2048))
        a("v_add_u32 v%d, s%d, v7" % (V_AX, S_T2)); a("v_xor_b32 v%d, 64, v%d" % (V_AX + 1, V_AX))
        a("v_add_u32 v%d, s%d, v7" % (V_AX + 2, S_T0)); a("v_xor_b32 v%d, 64, v%d" % (V_AX + 3, V_AX + 2))
        a("v_lshrrev_b32 v3, 2, v2"); a("v_and_b32 v4, 1, v1"); a("v_lshl_or_b32 v4, v4, 2, v3")
        a("s_lshl_b32 s%d, s%d, 1" % (S_T0, S_E)); a("v_xor_b32 v4, s%d, v4" % S_T0); a("v_lshlrev_b32 v4, 5, v4"); a("v_lshl_add_u32 v4, v6, 3, v4")
        a("v_lshl_add_u32 v7, v1, 3, v3"); a("v_lshl_add_u32 v7, v7, 8, v4"); a("v_add_u32 v%d, 0x%x, v7" % (V_AW, WQ_WIN))
        for j in range(1, 8): a("v_xor_b32 v%d, %d, v%d" % (V_AW + j, j << 5, V_AW))
        a("v_lshl_add_u32 v7, v1, 2, v3"); a("v_lshl_add_u32 v7, v7, 8, v4")
        a("s_add_u32 s%d, s%d, 0x%x" % (S_T2, S_T1, V_WIN)); a("v_add_u32 v%d, s%d, v7" % (V_AVX, S_T2))
        for j in range(1, 8): a("v_xor_b32 v%d, %d, v%d" % (V_AVX + j, j << 5, V_AVX))
        for j in range(8): a("v_xor_b32 v%d, 0x2000, v%d" % (V_AVY + j, V_AVX + j))
        a("v_and_b32 v7, 1, v1"); a("v_lshlrev_b32 v7, 1, v7"); a("v_lshrrev_b32 v3, 1, v1"); a("v_or_b32 v7, v7, v3")
        a("s_lshl_b32 s%d, s%d, 2" % (S_T0, S_E)); a("v_xor_b32 v7, s%d, v7" % S_T0); a("v_xor_b32 v7, v7, v2"); a("v_lshlrev_b32 v7, 4, v7"); a("v_lshl_add_u32 v7, v2, 8, v7")
        a("s_add_u32 s%d, s%d, 0x%x" % (S_T2, S_T1, K_WIN)); a("v_add_u32 v%d, s%d, v7" % (V_AKX, S_T2))
        for s in range(1, 4): a("v_xor_b32 v%d, %d, v%d" % (V_AKX + s, s << 6, V_AKX))
        for s in range(4): a("v_xor_b32 v%d, 0x2000, v%d" % (V_AKY + s, V_AKX + s))
        a("v_mov_b32 v7, 0x3f803f80")
        for k in range(4): a("v_accvgpr_write_b32 a%d, v7" % (A_ONE + k))
        a("s_add_u32 s%d, s%d, 0x%x" % (S_T0, S_L4, SL(2))); a("v_add_u32 v%d, s%d, v%d" % (V_SCR, S_T0, V_L16))
        for q in range(4): a("v_and_b32 v%d, 0xffffdfff, v%d" % (252 + q, V_AKX + q))
        a("s_lshl_b32 s%d, s3, 2" % S_T0); a("s_add_u32 s%d, s%d, 0x%x" % (S_T0, S_T0, LSCR)); a("v_add_u32 v%d, s%d, v%d" % (T + 5, S_T0, V_L16))
        a("v_xor_b32 v%d, 4, v%d" % (T + 6, T + 5)); a("v_xor_b32 v%d, 0x1000, v%d" % (T + 7, V_SCR)); a("v_add_u32 v1, 0x%x, v%d" % (LSCR, V_L16))
        a("v_and_b32 v%d, 7, v0" % (T + 9)); a("v_xor_b32 v%d, s%d, v%d" % (T + 9, S_HG, T + 9)); a("v_lshlrev_b32 v%d, 2, v%d" % (T + 9, T + 9))
        a("v_and_b32 v4, 1, v0"); a("v_lshlrev_b32 v4, 13, v4"); a("v_and_b32 v5, 2, v0"); a("v_lshl_add_u32 v4, v5, 7, v4"); a("v_bfrev_b32 v5, 1"); a("s_mov_b64 vcc, 15"); a("v_cndmask_b32 v4, v5, v4, vcc")
        a("v_mov_b32 v5, 1"); a("s_add_u32 s%d, s%d, 0x1c000" % (S_T3, S_OB)); a("s_mov_b32 s%d, 0" % S_ACC)
        a("s_lshl_b32 s%d, s3, 2" % S_T0); a("v_mov_b32 v%d, s%d" % (T, S_T0)); a("v_mov_b32 v%d, 0" % (T + 2))
        sh = 15 if c.get("map") != 2 else 14
        a("s_and_b32 s%d, s%d, %d" % (S_T0, S_B, 3 if sh == 15 else 7)); a("s_lshl_b32 s%d, s%d, %d" % (S_T0, S_T0, sh)); a("s_lshl_b32 s%d, s3, %d" % (S_T1, sh - 2)); a("s_add_u32 s%d, s%d, s%d" % (S_T0, S_T0, S_T1))
        a("s_lshl_b32 s%d, s%d, 17" % (S_T1, S_H)); a("s_add_u32 s%d, s%d, s%d" % (S_ROT, S_T0, S_T1))
        a("v_and_b32 v3, 15, v0"); a("v_lshlrev_b32 v3, 7, v3")
        a("v_mov_b32 v6, 0")
        if c.get("warm"):
            seg = self.ins[self.w0:]; del self.ins[self.w0:]
            for k in range(8):
                a("v_mul_u32_u24 v7, %d, v0" % (0x9e3b + 0x2f17 * k)); a("v_mul_u32_u24 v7, v7, v7"); a("v_and_b32 v7, 0x807f807f, v7"); a("v_or_b32 v%d, 0x3f003f00, v7" % (88 + k))
            m = 0
            def wm():
                self.ins.append(I("%s %s, %s, %s, 0" % (MF, ar(176 + 4 * (m % 4)), vr(88 + 2 * (m % 3)), vr(88 + 2 * (m // 3 % 3))))); self.ins[-1].kind = "opaque"
            for k, i in enumerate(seg):
                self.ins.append(i)
                if k % c["warm"] == 0: wm(); m += 1
            for k in range(c.get("warm2", 0)): wm(); m += 1
        a.stamp("S1")
        a.add(flat(st1[n1:]))
        a.stamp("S2")
        a("buffer_store_dword v5, v4, %s, s%d offen sc1" % (sr(SRD_WS), S_T3), "probe")
        a("s_lshl_b32 s%d, s%d, 13" % (S_T0, S_E)); a("s_add_u32 s%d, s%d, s%d" % (S_T3, S_T3, S_T0)); a("s_xor_b32 s98, s%d, 0x2000" % S_T3)
        a("s_add_u32 s%d, s%d, s%d" % (S_T0, S_FL, S_NEUT))
        a("buffer_store_dword v6, v%d, %s, s%d offen sc1" % (V_L0, sr(SRD_WS), S_T0), "flagreset")
        a("s_add_u32 s%d, s%d, 0x%x" % (S_T0, S_T0, FL3))
        a("buffer_store_dword v6, v%d, %s, s%d offen sc1" % (V_L0, sr(SRD_WS), S_T0), "flagreset")
        a("s_add_u32 s%d, s%d, s%d" % (S_T0, S_XCC, S_NEUT))
        a("buffer_store_dword v6, v%d, %s, s%d offen sc1" % (V_T + 8, sr(SRD_WS), S_T0), "flagreset")

    def acc(self, u, j): return V_O + (u * 8 + j) * 4 if u < 3 else V_O + 96 + 4 * ACT.index(j)
    def rowmax_finish(self, M):
        a = self; T = V_T
        for u in range(4): a("v_mov_b32 v%d, v%d" % (T + u, M[u]))
        for u in range(4): a("v_permlane16_swap_b32 v%d, v%d" % (M[u], T + u))
        for u in range(4): a("v_max_f32 v%d, v%d, v%d" % (M[u], M[u], T + u))
        for u in range(4): a("v_mov_b32 v%d, v%d" % (T + u, M[u]))
        for u in range(4): a("v_permlane32_swap_b32 v%d, v%d" % (M[u], T + u))
        for u in range(4): a("v_max_f32 v%d, v%d, v%d" % (M[u], M[u], T + u))
        for u in range(4):
            for k in range(4): a("v_sub_f32 v%d, 0, v%d" % (V_NEGM + 4 * u + k, M[u]))

    def streamAB(self):
        c = self.c; T = V_T
        G = Gaps(); ring = Ring(); L = []; D = []; X = []; C = []; TV = []
        SLAT = 5; nt = c.get("nt", True)
        LEAD = c.get("leadA", 10); BOFF = c.get("boffA", 16); BUB = c.get("bubA", 5)
        xf = lambda ch, u, ks: A_XF + 32 * (ch & 1) + 8 * u + 4 * ks
        groups = [(j, [ch]) for ch in range(6) for j in range(8)] + [(j, [6]) for j in ACT] + [(j, [7]) for j in ACT] + [(j, [6, 7]) for j in (2, 3, 6, 7)]
        nA = 448
        bar = {ch: 56 * ch - BOFF for ch in range(1, 7)}; bar[0] = -1; bar[7] = 336 + 32 - BOFF
        BQ = nA - c.get("boffQ", 18)
        rel = lambda ch: bar[ch + 1] if ch < 6 else BQ
        LA = []; xfirst = {}; xlast = {}; adone = {}
        for j, chs in groups:
            us = [0, 1, 2] + ([3] if j in ACT else [])
            steps = [(ch, ks) for ch in chs for ks in range(2)]; ns = len(steps)
            m0 = G.n(); fr = []
            for k, (ch, ks) in enumerate(steps):
                reg, lo = ring.alloc(m0 + ns * (len(us) - 1) + k); fr.append(reg)
                for eh in range(2):
                    LA.append((m0 + k, Op(I("ds_read_b64_tr_b16 %s, v%d offset:%d" % (ar(reg + 2 * eh, 2), V_AW + j, WS_(ch) - WQ_WIN + ks * 8192 + eh * 1024)),
                                          max(lo, bar[ch]), min(m0 + k - LEAD, rel(ch) - BUB), hard=min(m0 + k - 1, rel(ch) - 2))))
            for u in us:
                for k, (ch, ks) in enumerate(steps):
                    A = self.acc(u, j)
                    m = G.mfma("%s %s, %s, %s, %s" % (MF, vr(A), ar(fr[k]), ar(xf(ch, u, ks)), "0" if ch == 0 and ks == 0 else vr(A)))
                    xfirst.setdefault((ch, u, ks), m); xlast[(ch, u, ks)] = m; adone[(u, j)] = m
        assert G.n() == nA
        for (ch, u, ks), m in xfirst.items():
            lo = max(bar[ch], xlast.get((ch - 2, u, ks), -1))
            LA.append((m, Op(I("ds_read_b128 %s, v%d offset:%d" % (ar(xf(ch, u, ks)), V_AX + (2 if u == 3 else 0) + ks, XS(ch) + (u * 2048 if u < 3 else 0))), lo, m - LEAD, hard=m - 1)))
        L += [o for m, o in sorted(LA, key=lambda t: t[0])]
        for o in L:
            if o.lo < bar[7] and o.use <= 368: o.hi = min(o.hi, bar[7] - BUB); o.hard = min(o.hard, bar[7] - 2)
            elif o.lo < bar[7] and o.use > 368: o.lo = bar[7]
        for ch in range(1, 8): G.pre[bar[ch] - 1] += [W(vm="A%d" % ch, lgkm0=True)]; G.pre[bar[ch]] += [I("s_barrier")]
        G.pre[BQ - 1] += [W(vm="K0", lgkm0=True)]; G.pre[BQ] += [I("s_barrier")]
        for p in range(2, 6):
            G.pre[bar[p] + 1] += [I("s_mov_b32 s%d, 0" % S_T0)]
            G.pre[bar[p] + 2] += [I("s_buffer_load_dword s%d, %s, s%d offset:%d glc" % (S_T0, sr(SRD_WS), 98 if p & 1 else S_T3, (p >> 2) * 256))]
            for g in range(bar[p] + c.get("pr0", 14), bar[p + 1] - 2, 3): G.pre[g] += [I("%s s%d, s%d, s%d" % ("s_sub_u32" if p & 1 else "s_add_u32", S_ACC, S_ACC, S_T0))]
        gw = BQ - BUB - 2
        for k in range(2): L.append(Op(I("ds_write_b128 v%d, %s offset:%d" % (V_SCR, vr(self.acc(3, 4 * k)), QSCR - SL(2) + k * 1024)), gw + k, gw + k, hard=BQ - 2))
        LEAD = c.get("leadB", 10); BOFF = c.get("boffB", 13); BUB = c.get("bubB", 5)
        segs = [("QK", "X", 0), ("QK", "Y", 0)]
        for i in range(8):
            segs += [("PV", "X", i)] + ([("QK", "X", i + 1)] if i < 7 else []) + [("PV", "Y", i)] + ([("QK", "Y", i + 1)] if i < 7 else [])
        pos = {}; p = nA
        for sg in segs:
            pos[sg] = p; nu = 4 if sg[1] == "X" else 3
            p += 8 * nu + (nu if sg[0] == "PV" else 0) + (4 if sg == ("QK", "X", 0) else 0)
        barB = {i: pos[("PV", "X", i)] - BOFF for i in range(8)}; barB[-1] = BQ; barB[8] = 10 ** 6
        quse = {}; sdone = {}; nuse = {}
        V_M4, V_MX, V_AKM = 240, 244, 252
        def kread(reg, lo, ad, off, use, st):
            L.append(Op(I("ds_read_b128 %s, v%d offset:%d" % (ar(reg), ad, off)), max(lo, barB[st]), min(use - LEAD, barB[st + 1] - BUB), hard=min(use - 1, barB[st + 1] - 2)))
        for op, un, i in segs:
            nu = 4 if un == "X" else 3; S = V_SX if un == "X" else V_SY
            if (op, un, i) == ("QK", "X", 0):
                for si, s in enumerate((0, 2, 1, 3)):
                    if s == 1:
                        for k in range(2): kread(A_Q + 48 + 4 * (2 * k + 1), BQ, T + 7, QSCR - SL(2) + k * 1024, G.n() + 3, -1)
                    if s == 3:
                        m0 = G.n(); fr = []
                        for q in range(4):
                            reg, lo = ring.alloc(m0 + q); fr.append(reg); kread(reg, lo, V_AKM + q, KSL(0) - K_WIN, m0 + q, -1)
                        for q in range(4):
                            m = G.mfma("%s %s, %s, %s, %s" % (MF, vr(V_M4), ar(fr[q]), ar(A_Q + 48 + 4 * q), "0" if q == 0 else vr(V_M4)))
                        mdone = m
                    for kt in range(2):
                        m0 = G.n(); reg, lo = ring.alloc(m0 + 3); kread(reg, lo, V_AKX + s, KSL(0) - K_WIN + kt * 4096, m0, -1)
                        for u in range(4):
                            Dd = S + 8 * u + 4 * kt
                            m = G.mfma("%s %s, %s, %s, %s" % (MF, vr(Dd), ar(reg), ar(A_Q + 16 * u + 4 * s), "0" if si == 0 else vr(Dd)))
                            quse.setdefault((u, s), m); sdone[(u, kt)] = m
            elif op == "QK":
                st = i - 1; ad = V_AKX if un == "X" else V_AKY
                pv0 = pos[("PV", un, i)]
                for kt in range(2):
                    m0 = G.n(); fr = []
                    for s in range(4):
                        reg, lo = ring.alloc(m0 + 4 * (nu - 1) + s); fr.append(reg)
                        kread(reg, lo, ad + s, KSL(i) - K_WIN + kt * 4096, m0 + s, st)
                    for u in range(nu):
                        Dd = S + 8 * u + 4 * kt
                        for s in range(4):
                            m = G.mfma("%s %s, %s, %s, %s" % (MF, vr(Dd), ar(fr[s]), ar(A_Q + 16 * u + 4 * s), vr(V_NEGM + 4 * u) if s == 0 else vr(Dd)))
                            if s == 0: nuse.setdefault(u, m)
                        dl = pv0 + u - 2
                        lo = max(m + SLAT, pos[("PV", "X", 0)] + 2)
                        ex = [Op(I("v_exp_f32 v%d, v%d" % (Dd + k, Dd + k)), lo, dl - 1) for k in range(4)]
                        cv = [Op(I("v_cvt_pk_bf16_f32 v%d, v%d, v%d" % (S + 8 * u + 2 * kt + k, Dd + 2 * k, Dd + 2 * k + 1)), lo, dl, dep=ex[2 * k:2 * k + 2]) for k in range(2)]
                        X += ex; C += cv
            else:
                ad = V_AVX if un == "X" else V_AVY
                first = (un == "X" and i == 0)
                for j in range(8):
                    m0 = G.n()
                    reg, lo = ring.alloc(m0 + nu - 1)
                    for t in range(2):
                        L.append(Op(I("ds_read_b64_tr_b16 %s, v%d offset:%d" % (ar(reg + 2 * t, 2), ad + j, VSL(i) - V_WIN + t * 4096)),
                                    max(lo, barB[i]), min(m0 - LEAD, barB[i + 1] - BUB), hard=min(m0 - 1, barB[i + 1] - 2)))
                    for u in range(nu):
                        O = V_O + (u * 8 + j) * 4
                        G.mfma("%s %s, %s, %s, %s" % (MF, vr(O), ar(reg), vr(S + 8 * u), "0" if first else vr(O)))
                    if j == 0:
                        for u in range(nu):
                            G.mfma("%s %s, %s, %s, %s" % (MF, ar(A_L + 4 * u), ar(A_ONE), vr(S + 8 * u), "0" if first else ar(A_L + 4 * u)))
        n = G.n()
        for i in range(8): G.pre[barB[i] - 1] += [W(vm=["V%d" % i, "K%d" % (i + 1)], lgkm0=True)]; G.pre[barB[i]] += [I("s_barrier")]
        lateq = []
        def conv(u, s):
            A = self.acc(u, 2 * s); lo = max(adone[(u, 2 * s)], adone[(u, 2 * s + 1)]) + 3; hard = quse[(u, s)] - 2
            hs = gw - 1 if u == 3 else hard
            body = [("v_mul_f32 v%d, s%d, v%d" % (A + k, S_C0, A + k), hs) for k in range(8)] + [("v_cvt_pk_bf16_f32 v%d, v%d, v%d" % (A + k, A + 2 * k, A + 2 * k + 1), hs) for k in range(4)]
            for k, (t, h) in enumerate(body):
                TV.append(Op(I(t), lo, h))
                if k == 1:
                    TV.extend(lateq); del lateq[:]
            lateq.extend([Op(I("v_permlane16_swap_b32 v%d, v%d" % (A + k, A + 2 + k)), lo, hs) for k in range(2)] +
                         [Op(I("v_accvgpr_write_b32 a%d, v%d" % (A_Q + 16 * u + 4 * s + k, A + k)), lo, hard) for k in range(4)])
        for u, s in [(0, 0), (3, 0), (1, 0), (2, 0), (3, 2), (0, 2), (1, 2), (2, 2)] + [(u, s) for s in (1, 3) for u in range(3)]: conv(u, s)
        TV.extend(lateq)
        pv0 = pos[("PV", "X", 0)]
        def maxchain(u):
            B = V_M4 if u == 3 else V_SX + 8 * u; M = V_MX + 2 * u; N = V_NEGM + 4 * u
            return ["v_max3_f32 v%d, v%d, v%d, v%d" % (M, B, B + 1, B + 2), "v_max_f32 v%d, v%d, v%d" % (M, M, B + 3), "v_mov_b32 v%d, v%d" % (M + 1, M),
                    "v_permlane16_swap_b32 v%d, v%d" % (M, M + 1), "v_max_f32 v%d, v%d, v%d" % (M, M, M + 1), "v_mov_b32 v%d, v%d" % (M + 1, M),
                    "v_permlane32_swap_b32 v%d, v%d" % (M, M + 1), "v_max_f32 v%d, v%d, v%d" % (M, M, M + 1), "v_min_f32 v%d, -v%d, v%d" % (N, M, N)] + ["v_mov_b32 v%d, v%d" % (N + k, N) for k in (1, 2, 3)]
        ch4 = {u: maxchain(u) for u in range(4)}
        lo = sdone[(2, 0)] + 3
        for k in range(9):
            for u in (0, 3, 1, 2): TV.append(Op(I(ch4[u][k]), lo, nuse[0] - 1))
        for u in (0, 1, 2, 3):
            for k in range(9, 12): TV.append(Op(I(ch4[u][k]), lo, min(nuse[u] - 1, pv0)))
        for u in range(4):
            B = V_SX + 8 * u; lo = sdone[(u, 1)] + 3; hard = pv0 + u - 2
            for t in ["v_add_f32 v%d, v%d, v%d" % (B + k, B + k, V_NEGM + 4 * u) for k in range(8)] + ["v_exp_f32 v%d, v%d" % (B + k, B + k) for k in range(8)] + \
                     ["v_cvt_pk_bf16_f32 v%d, v%d, v%d" % (B + k, B + 2 * k, B + 2 * k + 1) for k in range(4)]: TV.append(Op(I(t), lo, hard))
        win = [(("a", ch), max(bar[ch], 0), (bar[ch + 1] if ch < 7 else BQ) - 2) for ch in range(8)] + [(("b", i), barB[i], min(barB[i + 1] - 2, n - 1 - c.get("dtail", 8))) for i in range(-1, 8)]
        for (ph, i), lo, hi in win:
            lst = c["kvA" if ph == "a" else "kvB"].get(i, []); l0 = lo
            if ph == "a" and i + 2 < 8:
                mid = hi if not lst else lo + (hi - lo) * 11 // (11 + 4 * len(lst))
                ops = stage_dma(i + 2, lo, mid)
                for o in ops: o.hi += c.get("dlagA", 0); o.hard = hi
                D += ops; lo = mid
            if (ph, i) == ("b", 2):
                D.append(Op(I("buffer_atomic_add v%d, v%d, %s, s%d offen" % (T + 1, V_L0, sr(SRD_DBG), S_KC), "hello"), lo + 1, lo + 20, hard=hi))
            if (ph, i) == ("b", 6):
                D.append(Op(I("buffer_load_dword v%d, v%d, %s, s%d offen sc1" % (T + 8, T + 9, sr(SRD_DBG), S_T3), "hl"), lo + 1, lo + 3, hard=hi, pre=[I("s_lshl_b32 s%d, s%d, 5" % (S_T3, S_B))]))
            for k, (kind, ix) in enumerate(lst):
                h0 = lo + (hi - lo) * (k + 1) // len(lst)
                ops = tile_dma(kind, ix, KSL(ix) if kind == "K" else VSL(ix) if kind == "V" else WOSL.get(ix), l0 + 1, h0, nt)
                for j, o in enumerate(ops):
                    o.hi = lo + (hi - lo) * (4 * k + j + 1) // (4 * len(lst)); o.hard = hi
                    if c.get("even"): o.lo = max(o.lo, o.hi - c["even"])
                D += ops
        px = pos[("PV", "X", 7)]; py = pos[("PV", "Y", 7)]
        rl3 = Op(I("v_accvgpr_read_b32 v%d, a%d" % (T + 3, A_L + 12)), py - 1, n - 1); C.append(rl3)
        rl = [Op(I("v_accvgpr_read_b32 v%d, a%d" % (T + u, A_L + 4 * u)), py + 3 + u + SLAT, n - 1) for u in range(3)]; C += rl
        m1 = Op(I("v_max3_f32 v%d, v%d, v%d, v%d" % (T + 4, T, T + 1, T + 2)), py, n - 1); m2 = Op(I("v_max_f32 v%d, v%d, v%d" % (T + 4, T + 4, T + 3)), py, n - 1); C += [m1, m2]
        X += [Op(I("v_rcp_f32 v%d, v%d" % (2 + 2 * u, T + u)), py, n - 1, dep=[rl[u]]) for u in range(3)]
        for k, j in enumerate((2, 3, 6, 7)):
            L.append(Op(I("ds_write_b128 v%d, %s offset:%d" % (V_SCR, vr(V_O + (24 + j) * 4), OSCR - SL(2) + k * 1024)), px + 4 + 4 * j + 3 + SLAT, n - 1))
        L.append(Op(I("ds_write_b32 v%d, v%d" % (T + 5, T + 3)), py, n - 1, dep=[rl3]))
        L.append(Op(I("ds_write_b32 v%d, v%d offset:1024" % (T + 5, T + 4)), py, n - 1, dep=[m2]))
        g = barB[0] + 60
        G.pre[g] += [I("s_lshl_b32 s%d, s%d, 1" % (S_T0, S_E))]; G.pre[g + 1] += [I("s_sub_u32 s%d, 1, s%d" % (S_T0, S_T0))]; G.pre[g + 2] += [I("s_mul_i32 s%d, s%d, s%d" % (S_T0, S_T0, S_ACC))]
        G.val[g + 3] += [I("v_mov_b32 v%d, s%d" % (T + 1, S_T0))]; G.mem[g + 5] += [I("ds_write_b32 v%d, v%d" % (T, T + 1))]
        g = barB[1] + 40
        G.mem[g] += [I("ds_read_b128 v[4:7], v%d" % (T + 2))]
        G.val[g + 10] += [I("v_add3_u32 v4, v4, v5, v6"), I("v_add3_u32 v4, v4, v7, s%d" % S_BIAS)]; G.val[g + 12] += [I("v_readfirstlane_b32 s%d, v4" % S_T0)]
        sal = ["s_lshr_b32 s%d, s%d, 31" % (S_T0, S_T0), "s_lshl_b32 s%d, s%d, 13" % (S_CH, S_T0), "s_lshl1_add_u32 s%d, s%d, 1" % (S_T0, S_T0), "s_lshl_b32 s%d, s%d, 3" % (S_T3, S_CQ), "s_lshl_b32 s%d, s%d, s%d" % (S_T0, S_T0, S_T3),
               "s_add_u32 s%d, s%d, s%d" % (S_OS, S_OB, S_CH)] + ["s_add_u32 s%d, s%d, %d" % (S_OS + k, S_OS, 16384 * k) for k in range(1, 7)]
        for k, t in enumerate(sal): G.pre[g + 14 + 2 * k] += [I(t)]
        G.val[g + 26] += [I("v_mov_b32 v%d, s%d" % (T + 1, S_T0))]
        schedule(G, L, D, X, C, "AB")
        spread(G, TV)
        for lo, hi, step in c.get("pace", []):
            for g in range(lo, hi, step): G.val[g].append(I("s_nop 5"))
        self.gstamps(G, "a")
        self.add([W(vm="A0"), I("s_barrier")])
        self.stamp("A0")
        self.add(G.flatten())
        self.nAB = n; self.pv0 = pv0

    def ofrag(self, u, s): return V_SX + 4 * (4 * u + s if u < 3 else 12 + s // 2)
    def ostore(self, u, s):
        f = 4 * u + s if u < 3 else 12 + s // 2
        return I("buffer_store_dwordx4 %s, v%d, %s, s%d offen offset:%d sc1" % (vr(V_SX + 4 * f), V_L16, sr(SRD_WS), S_OS + opos(u, s) // 2, (opos(u, s) % 2) * 1024), "ost%d" % (s // 2))
    def transBC(self):
        a = self; T = V_T; c = self.c
        self.tail = []
        a.add([W(vm=["WO(0, 0)", "WO(0, 1)"], lgkm0=True), I("s_barrier")])
        a.stamp("M")
        a("ds_read_b128 %s, v1 offset:1024" % vr(V_NEGM))
        a("ds_read_b32 v%d, v%d" % (T + 4, T + 6))
        for k, j in enumerate((2, 3, 6, 7)): a("ds_read_b128 %s, v%d offset:%d" % (vr(V_O + (24 + j) * 4), T + 7, OSCR - SL(2) + k * 1024))
        def norm(u, s, rl):
            O = V_O + (u * 8 + 2 * s) * 4; F = self.ofrag(u, s)
            for k in range(4): a("v_pk_mul_f32 %s, %s, %s op_sel_hi:[1,0]" % (vr(O + 2 * k, 2), vr(O + 2 * k, 2), vr(rl, 2)))
            for k in range(4): a("v_cvt_pk_bf16_f32 v%d, v%d, v%d" % (F + k, O + 2 * k, O + 2 * k + 1))
        for s in range(2):
            for u in range(3): norm(u, s, 2 + 2 * u); a.add([self.ostore(u, s)])
        a("v_max3_f32 v%d, v%d, v%d, v%d" % (V_NEGM, V_NEGM, V_NEGM + 1, V_NEGM + 2)); a("v_max_f32 v%d, v%d, v%d" % (V_NEGM, V_NEGM, V_NEGM + 3))
        a("v_add_f32 v%d, v%d, v%d" % (T + 3, T + 3, T + 4))
        a("v_cmp_lt_f32 vcc, s%d, v%d" % (S_RETRY, V_NEGM))
        a("v_rcp_f32 v%d, v%d" % (T, T + 3))
        a("s_cbranch_vccnz L_fallback")
        for j in ACT:
            O = V_O + (24 + j) * 4
            for k in range(2): a("v_pk_add_f32 %s, %s, %s" % (vr(O + 2 * k, 2), vr(O + 2 * k, 2), vr(O + 8 + 2 * k, 2)))
        norm(3, 0, T); a.add([self.ostore(3, 0)])
        a("s_lshl_b32 s%d, s%d, 1" % (S_T0, S_E)); a("s_xor_b32 s%d, s%d, s%d" % (S_T0, S_T0, S_HG)); a("s_lshl_b32 s%d, s%d, 5" % (S_T0, S_T0))
        a("s_or_b32 s%d, s%d, 0x%x" % (S_T0, S_T0, V_WIN))
        for k in range(16): a("v_xor_b32 v%d, s%d, v%d" % (V_AVX + k, S_T0, V_AVX + k))
        def normB(nlin):
            for k, (u, s) in enumerate([(u, s) for s in (2, 3) for u in range(4) if not (u == 3 and s & 1)]):
                norm(u, s, T if u == 3 else 2 + 2 * u)
                if k < nlin: a.add([self.ostore(u, s)])
        self.normB = normB

    def spin(self, name, load):
        for s in ["L_%s_spin:" % name, "s_add_u32 s%d, s%d, 1" % (S_SPIN, S_SPIN), "s_cmp_ge_u32 s%d, 0x%x" % (S_SPIN, SPIN_MAX), "s_cbranch_scc1 L_%s_ok" % name,
                  "s_sleep 1", load, "s_waitcnt vmcnt(0)", "s_branch L_%s" % name]: self.tail.append(I(s))

    def phaseC(self):
        a = self; c = self.c; T = V_T
        LEAD = c.get("leadC", 10)
        acc = lambda u, j: V_O + (j * 4 + u) * 4
        fidx = lambda u, s: 4 * u + s if u < 3 else 12 + s // 2
        def bfrag(hh, u, s):
            return vr(V_SX + 4 * fidx(u, s)) if hh == 0 else ar(56 * (hh - 1) + 4 * fidx(u, s))
        JO = [1, 2, 3, 4, 5, 6, 7, 0]
        started = set(); done = {}; firstuse = {}
        s0 = c.get("s0", [1, 2, 3, 4, 5, 6, 7]); s1 = c.get("s1", [1, 2, 3, 4, 5]); s2 = c.get("s2", [])
        groups = [[(0, j, s) for s in range(4)] for j in JO]
        groups += [[(hh, j, 0)] for hh in (1, 2, 3) for j in s0]
        groups += [[(hh, j, 1) for hh in (1, 2, 3)] for j in s1]
        groups += [[(hh, j, 2) for hh in (1, 2, 3)] for j in s2]
        for j in JO:
            for s, early in enumerate((s0, s1, s2, [])):
                if j not in early: groups.append([(hh, j, s) for hh in (1, 2, 3)])
        gFA = c.get("gFA", 34); gSA = c.get("gSA", 56); gCA = c.get("gCA", 76); gFB = c.get("gFB", 108); gSB = c.get("gSB", 128); gCB = c.get("gCB", 148)
        gW2 = c.get("gW2", 150); gRB = 100
        late = c.get("kvP", []); staged = any(("WR", (3, 1)) in v for v in c["kvB"].values())
        G = Gaps(); ring = Ring(); L = []; D = []; X = []; C = []
        for grp in groups:
            m0 = G.n(); fr = []
            seq = [(u, k) for u in range(4) for k, (hh, j, s) in enumerate(grp) if not (u == 3 and s & 1)]
            for k, (hh, j, s) in enumerate(grp):
                us = [i for i, (u, kk) in enumerate(seq) if kk == k]
                reg, lo = ring.alloc(m0 + us[-1]); fr.append(reg)
                slot = WOSL[(hh, s >> 1)]
                ad = (V_AVX if slot < SL(8) else V_NEGM) + (8 if s & 1 else 0) + j
                off = slot - (0 if hh == 0 else SL(4) if slot < SL(8) else SL(8))
                hard = m0 + us[0] - 1
                if hh: lo = max(lo, gW2 if (hh, s >> 1) in late or (staged and (hh, s >> 1) == (3, 1)) else gFA + 1, gRB + 20 if slot < SL(8) else 40)
                else: hard = min(hard, gRB - 1)
                for t in range(2):
                    L.append(Op(I("ds_read_b64_tr_b16 %s, v%d offset:%d" % (ar(reg + 2 * t, 2), ad, off + t * 4096)), lo, min(m0 + us[0] - LEAD, hard), hard=hard))
            for u, k in seq:
                hh, j, s = grp[k]; A = acc(u, j)
                m = G.mfma("%s %s, %s, %s, %s" % (MF, vr(A), ar(fr[k]), bfrag(hh, u, s), vr(A) if (u, j) in started else "0"))
                started.add((u, j)); done[(u, j)] = m; firstuse.setdefault((hh, u, s), m)
        n = G.n()
        VB = lambda k: V_L16 if k == 0 else 7 + k
        def fixed_vm(g, wait, ins):
            G.pre[g - 1] += [W(vm=wait)]; G.mem[g].append(ins); G.pre[g].append(I("L_fx%d:" % g))
        nlin = c.get("nlin", 2); sp = c.get("bspace", 8)
        bl = [(u, s) for s in (2, 3) for u in range(4) if not (u == 3 and s & 1)]
        for k, (u, s) in enumerate(bl[nlin:]): D.append(Op(self.ostore(u, s), sp * k, sp * k + 1, hard=gCA - 1))
        fixed_vm(gFA, "ost0", I("buffer_store_dword v7, v%d, %s, s%d offen sc1" % (V_L0, sr(SRD_WS), S_FL), "flag"))
        G.pre[gFA + 1] += [I("s_barrier")]
        spA = ["s_buffer_load_dword s%d, %s, s%d glc" % (83 + hh, sr(SRD_WS), 87 + hh) for hh in (1, 2, 3)]
        spB = ["s_buffer_load_dword s%d, %s, s%d offset:0x%x glc" % (83 + hh, sr(SRD_WS), 87 + hh, FL3) for hh in (1, 2, 3)]
        chk3 = ["s_waitcnt lgkmcnt(0)", "s_and_b32 s84, s84, s85", "s_and_b32 s84, s84, s86"]
        flB = "buffer_store_dword v7, v%d, %s, s91 offen sc1" % (V_L0, sr(SRD_WS))
        def sspin(name, lds3, first=()):
            for t in ["L_%s_first:" % name] + lds3 + list(first) + chk3 + ["s_cbranch_scc1 L_%s_ok" % name,
                      "L_%s_spin:" % name, "s_add_u32 s%d, s%d, 1" % (S_SPIN, S_SPIN), "s_cmp_ge_u32 s%d, 0x%x" % (S_SPIN, SPIN_MAX), "s_cbranch_scc1 L_%s_ok" % name] + lds3 + chk3 + \
                     ["s_cbranch_scc0 L_%s_spin" % name, "s_branch L_%s_ok" % name]: self.tail.append(I(t))
            return [I(t) for t in chk3 + ["s_cbranch_scc0 L_%s_first" % name, "L_%s_ok:" % name]]
        for k in range(3): G.pre[gSA + k] += [I(spA[k])]; G.pre[gSB + k] += [I(spB[k])]
        G.pre[gCA] += sspin("poll", spA, ["s_waitcnt vmcnt(0)", flB] if gFB > gCA else []); G.pre[gCB] += sspin("pollb", spB)
        fixed_vm(gFB, "ost1", I(flB, "flag"))
        lds = []
        for s in range(4):
            for hh in (1, 2, 3):
                for u in range(4):
                    if u == 3 and s & 1: continue
                    f = fidx(u, s)
                    lds.append((I("buffer_load_dwordx4 %s, v%d, %s, s%d offen offset:%d sc1" % (ar(56 * (hh - 1) + 4 * f), VB(opos(u, s) // 2), sr(SRD_WS), S_XB + hh - 1, (opos(u, s) % 2) * 1024), "of"), firstuse[(hh, u, s)]))
        n0 = c.get("n0", 12); sp0 = c.get("osp0", 2); sp = c.get("ospace", 3)
        for k in range(21):
            g = gCA + 1 + sp0 * k if k < n0 else max(c.get("gA2", gFB + 2), gCA + 1 + sp0 * n0) + sp * (k - n0)
            D.append(Op(lds[k][0], g, g, hard=lds[k][1] - 1))
        wd = []
        for ix in late: wd += tile_dma("WO", ix, WOSL[ix], 0, gW2 - 2)
        for k, o in enumerate(wd):
            o.lo = o.hi = c.get("wp0", 4) + c.get("wpsp", 5) * k
            if o.i.tag == "WO(3, 1)": o.lo = o.hi = max(o.lo, gFA + 2 + (k & 3))
        D2 = wd + [Op(lds[k][0], gCB + 1 + sp * (k - 21), gCB + 1 + sp * (k - 21), hard=lds[k][1] - 1) for k in range(21, 42)]
        D = sorted(D + D2, key=lambda o: o.lo)
        if staged:
            assert gFA + 12 < gCA < gW2
            C.append(Op(I("v_add_u32 v3, 0x%x, v%d" % (WOSL[(3, 1)] - SL(2), V_SCR)), 0, gFA))
            for j in range(4): G.mem[gFA + 3 + 2 * j].append(I("ds_write_b128 v3, %s offset:%d" % (ar(A_XF + 4 * j), j * 1024)))
        if late: G.pre[gW2 - 1] += [W(vm=["WO%s" % (ix,) for ix in late])]
        if late or staged: G.pre[gW2] += [I("s_barrier")]
        for k in range(16): C.append(Op(I("v_add_u32 v%d, 0x%x, v%d" % (V_NEGM + k, SL(8), V_AVX + k)), 0, 38))
        for k in range(1, 7): C.append(Op(I("v_add_u32 v%d, %d, v%d" % (VB(k), 16384 * k, V_L16)), 0, gCA - 1))
        V_PUB, V_OUT, V_PS = V_POLL, T + 9, 5
        for t in ["v_lshlrev_b32 v2, 14, v0", "v_xor_b32 v2, s%d, v2" % S_XCC, "v_lshl_add_u32 v%d, v0, 7, v2" % V_PUB,
                  "v_and_b32 v4, 15, v0", "v_lshlrev_b32 v4, 10, v4", "v_lshrrev_b32 v2, 4, v0", "v_lshl_add_u32 v%d, v2, 3, v4" % V_OUT, "v_xor_b32 v1, 0x1000, v%d" % V_SCR,
                  "v_bfe_u32 v2, v%d, s%d, 1" % (T + 8, S_T3), "v_lshlrev_b32 v2, 13, v2", "v_lshlrev_b32 v4, 22, v0", "v_xor_b32 v4, s%d, v4" % S_PB, "v_add_u32 v2, v2, v4",
                  "v_add_u32 v4, -1, v0", "v_lshl_add_u32 v%d, v4, 14, v2" % V_PS, "v_bfrev_b32 v6, 1"]:
            C.append(Op(I(t), 0, gRB - 1))
        for k in range(16): C.append(Op(I("v_add_u32 v%d, 0x%x, v%d" % (V_AVX + k, SL(4), V_AVX + k)), gRB, gRB + 18))
        for j in range(1, 8): C.append(Op(I("v_readlane_b32 s%d, v%d, %d" % (S_OS + j - 1, V_PS, j)), gRB, 200))
        sal = ["s_xor_b32 s%d, s%d, 0x%x" % (87 + hh, S_FL, hh << 9) for hh in (1, 2, 3)] + ["s_add_u32 s91, s%d, 0x%x" % (S_FL, FL3)]
        for hh in (1, 2, 3):
            sal += ["s_xor_b32 s%d, s%d, %d" % (S_T0, S_T3, 8 * hh), "s_lshr_b32 s%d, s%d, s%d" % (S_T0, S_ACC, S_T0), "s_and_b32 s%d, s%d, 1" % (S_T0, S_T0), "s_lshl_b32 s%d, s%d, 13" % (S_T0, S_T0),
                    "s_add_u32 s%d, s%d, s%d" % (S_T0, S_T0, S_OB), "s_xor_b32 s%d, s%d, 0x%x" % (S_XB + hh - 1, S_T0, hh << 20)]
        sal2 = ["s_add_u32 s%d, s%d, s%d" % (S_LX, S_PB, S_CH),
                "s_mul_i32 s%d, s%d, 224" % (S_T0, S_B), "s_lshr_b32 s%d, s3, 1" % S_T1, "s_mul_i32 s%d, s%d, 112" % (S_T1, S_T1), "s_add_u32 s%d, s%d, s%d" % (S_T0, S_T0, S_T1),
                "s_lshl_b32 s%d, s%d, 10" % (S_T0, S_T0), "s_lshl_b32 s%d, s%d, 8" % (S_T1, S_CQ), "s_add_u32 s%d, s%d, s%d" % (S_T0, S_T0, S_T1),
                "s_lshl_b32 s%d, s%d, 5" % (S_T1, S_HG), "s_add_u32 s%d, s%d, s%d" % (S_T0, S_T0, S_T1),
                "s_lshl_b32 s%d, s%d, 16" % (S_T1, S_E), "s_add_u32 s%d, s%d, s%d" % (S_T1, S_T1, S_T0), "s_add_u32 s%d, s%d, %d" % (S_T2, S_T0, 48 * 1024)]
        def place_sal(lst, g, lim):
            for t in lst:
                while G.pre[g] or any(x.kind == "vm" for x in G.mem[g]): g += 1
                G.pre[g].append(I(t)); assert g < lim; g += 2 if g % 3 == 0 else 1
        def pub(lo, hi):
            m = sum(1 << k for k in range(lo, hi + 1))
            return [I("s_mov_b64 exec, 0x%x" % m), I("buffer_store_dword v7, v%d, %s, 0 offen sc1" % (V_PUB, sr(SRD_WS)), "flag2"), I("s_mov_b64 exec, -1")]
        sp2 = lambda lo, hi=7: ["s_buffer_load_dword s%d, %s, s%d offset:%d glc" % (88 + j, sr(SRD_WS), S_XCC, 128 * j) for j in range(lo, hi + 1)]
        pubs = c.get("pubs", {5: 2, 6: 3, 7: 4, 8: 5})
        pubgap = {}
        for idx, j in enumerate(range(1, 8)):
            B = (V_AKX if idx & 1 else V_T)
            last = max(done[(u, j)] for u in range(4))
            prev = max(done[(u, j - 2)] for u in range(4)) + 13 if j > 2 else 0
            cv = {}
            for u in (3, 0, 1, 2):
                for k in range(2):
                    cv[(u, k)] = Op(I("v_cvt_pk_bf16_f32 v%d, v%d, v%d" % (B + 2 * u + k, acc(u, j) + 2 * k, acc(u, j) + 2 * k + 1)), max(done[(u, j)] + 5, prev), min(last + 9, n - 3))
                    C.append(cv[(u, k)])
            st = [I("buffer_store_dwordx4 %s, v%d, %s, s%d offen offset:%d sc1" % (vr(B + 4 * hf), V_L16, sr(SRD_WS), S_OS + j - 1, hf * 1024), "pst%d" % j) for hf in range(2)]
            pre = []
            if j in pubs: pubgap[j] = done[(1, j)] + 3
            D.append(Op(st[0], min(done[(1, j)] + 6, n - 2), last + 5, hard=min(last + 10, n - 2), pre=pre, dep=[cv[(u, k)] for u in (0, 1) for k in range(2)]))
            D.append(Op(st[1], min(last + 6, n - 1), last + 7, hard=min(last + 11, n - 1), dep=[cv[(u, k)] for u in (2, 3) for k in range(2)]))
        if 8 in pubs: pubgap[8] = n - c.get("puboff", 12)
        npub = 0
        for j in sorted(pubs):
            k0 = sorted(pubs).index(j); r = (2, 3, 4, T + 8)[k0]
            G.pre[262 + 2 * k0] += [I("s_mov_b64 vcc, 0x%x" % sum(1 << k for k in range(npub + 1, pubs[j] + 1)))]; G.val[262 + 2 * k0] += [I("v_cndmask_b32 v%d, v6, v%d, vcc" % (r, V_PUB))]
            fixed_vm(pubgap[j], "pst%d" % pubs[j], I("buffer_store_dword v7, v%d, %s, 0 offen sc1" % (r, sr(SRD_WS)), "flag2")); npub = pubs[j]
        schedule(G, L, D, X, C, "phaseC"); self.gstamps(G, "c")
        place_sal(sal, 1, gCA); place_sal(sal2, 272, 340)
        a.add(G.head); G.head = []
        self.normB(nlin)
        a("v_mov_b32 v7, 1")
        hz = ["v_subrev_u32 v2, 0x01010101, v%d" % (T + 8), "v_not_b32 v3, v%d" % (T + 8), "v_and_b32 v2, v2, v3", "v_and_b32 v2, 0x80808080, v2", "v_cmp_ne_u32 vcc, 0, v2", "s_cbranch_vccnz L_hello_spin"]
        for t in hz: a(t)
        a("L_hello_ok:")
        a("v_readfirstlane_b32 s%d, v%d" % (S_ACC, T + 8)); a("s_lshl3_add_u32 s%d, s%d, 1" % (S_T3, S_CQ))
        for t in ["L_hello_spin:", "s_add_u32 s%d, s%d, 1" % (S_SPIN, S_SPIN), "s_cmp_ge_u32 s%d, 0x%x" % (S_SPIN, SPIN_MAX), "s_cbranch_scc1 L_hello_ok", "s_sleep 4",
                  "buffer_load_dword v%d, v%d, %s, s%d offen sc1" % (T + 8, T + 9, sr(SRD_DBG), S_T3), "s_waitcnt vmcnt(0)"] + hz + ["s_branch L_hello_ok"]: self.tail.append(I(t))
        a.stamp("C0")
        NE = c.get("nearly", 3); NB = c.get("nblock", 5)
        G.pre[n - c.get("spoffP", 8) - 1] += [W(lgkm0=True)]
        for k, t in enumerate(sp2(1, NE)): G.pre[n - c.get("spoffP", 8) + k] += [I(t)]
        self.add(G.flatten())
        a.stamp("C1"); a.stamp("spin0")
        def red(j):
            for d in range(8):
                x = acc(0, j) + d; t = acc(2, j) + 2 * (d & 3)
                a("v_lshlrev_b32 v%d, 16, v%d" % (t, x)); a("v_and_b32 v%d, 0xffff0000, v%d" % (t + 1, x))
                a("v_pk_add_f32 %s, %s, %s" % (vr(V_O + 2 * d, 2), vr(V_O + 2 * d, 2), vr(t, 2)))
        NE = c.get("nearly", 3); NB = c.get("nblock", 5)
        a("s_waitcnt lgkmcnt(0)")
        def ldin(j, hidden=False):
            for hf in range(2):
                a("buffer_load_dwordx4 %s, v%d, %s, s%d offen offset:%d sc1" % (vr(acc(hf, j)), VB(j - 1), sr(SRD_WS), S_LX, hf * 1024), "in%d" % j)
                if hidden: self.ins[-1].kind = "opaque"
        def block(j):
            a("s_cmp_eq_u32 s%d, 0" % (88 + j)); a("s_cbranch_scc1 L_f%d_%s" % (j, "pub" if j <= NE else "spin")); a("L_f%d_ok:" % j)
            t = []
            if j <= NE: t += ["L_f%d_pub:" % j, "s_waitcnt vmcnt(0)"] + [x.t for x in pub(npub + 1, 7)]
            t += ["L_f%d_spin:" % j, "s_add_u32 s%d, s%d, 1" % (S_SPIN, S_SPIN), "s_cmp_ge_u32 s%d, 0x%x" % (S_SPIN, SPIN_MAX), "s_cbranch_scc1 L_f%d_ok" % j] + sp2(j, NE if j <= NE else 7) + ["s_waitcnt lgkmcnt(0)", "s_cmp_eq_u32 s%d, 0" % (88 + j), "s_cbranch_scc1 L_f%d_spin" % j, "s_branch L_f%d_ok" % j]
            for x in t: self.tail.append(I(x))
        for j in range(1, NB + 1):
            block(j); ldin(j)
            if j == NE:
                a.stamp("T0"); a.stamp("spin1")
                for k in range(npub + 1, 8):
                    if k == 7: a("\n".join(sp2(NE + 1)))
                    a.add([W(vm="pst%d" % k)] + pub(k, k))
                a("s_waitcnt lgkmcnt(0)")
                a.stamp("T1"); a.stamp("spin2")
        a("s_mov_b32 s%d, %d" % (S_T0, NB + 1))
        ntry = [0]
        def tryall():
            ntry[0] += 1
            a("s_waitcnt lgkmcnt(0)")
            for j in range(NB + 1, 8):
                lab = "L_try%d_%d" % (ntry[0], j)
                a("s_cmp_lg_u32 s%d, %d" % (S_T0, j)); a("s_cbranch_scc1 %s" % lab); a("s_cmp_eq_u32 s%d, 0" % (88 + j)); a("s_cbranch_scc1 %s" % lab)
                ldin(j, True); a("s_add_u32 s%d, s%d, 1" % (S_T0, S_T0)); a("%s:" % lab)
        tryall()
        for j in range(1, NB + 1):
            if j in c.get("tryat", (1, 3)): a("\n".join(sp2(NB + 1)))
            red(j)
            if j in c.get("tryat", (1, 3)): tryall()
        a.stamp("T2"); a.stamp("spin3")
        for j in range(NB + 1, 8):
            a("s_cmp_gt_u32 s%d, %d" % (S_T0, j)); a("s_cbranch_scc1 L_have%d" % j)
            block(j); ldin(j, True); a("L_have%d:" % j)
        for j in range(NB + 1, 8):
            a("s_waitcnt vmcnt(%d)" % (2 * (7 - j))); red(j)
        a.stamp("T3")
        a("ds_write_b128 v%d, %s offset:%d" % (V_SCR, vr(acc(3, 0)), OSCR - SL(2)))
        osc = c.get("outsc", "")
        for u in range(3):
            for k in range(2): a("v_cvt_pk_bf16_f32 v%d, v%d, v%d" % (T + 2 * u + k, acc(u, 0) + 2 * k, acc(u, 0) + 2 * k + 1))
        a.add([W(lgkm0=True), I("s_barrier")])
        a("ds_read_b128 %s, v%d offset:%d" % (vr(4), 1, OSCR - SL(2)))
        for u in range(3):
            a("buffer_store_dwordx2 %s, v%d, %s, s%d offen%s" % (vr(T + 2 * u, 2), V_OUT, sr(SRD_OUT), S_T1, osc))
            if u < 2: a("s_add_u32 s%d, s%d, 16384" % (S_T1, S_T1))
        a("s_cmp_eq_u32 s%d, 1" % S_E); a("s_cbranch_scc1 L_fin")
        for k in range(2): a("v_pk_add_f32 %s, %s, %s" % (vr(4 + 2 * k, 2), vr(4 + 2 * k, 2), vr(acc(3, 0) + 2 * k, 2)))
        for k in range(2): a("v_cvt_pk_bf16_f32 v%d, v%d, v%d" % (2 + k, 4 + 2 * k, 5 + 2 * k))
        a("buffer_store_dwordx2 %s, v%d, %s, s%d offen%s" % (vr(2, 2), V_OUT, sr(SRD_OUT), S_T2, osc))
        a("L_fin:")

    def fallback(self):
        t = lambda s: self.tail.append(I(s)); T = V_T
        t("L_fallback:")
        t("s_waitcnt vmcnt(0) lgkmcnt(0)"); t("s_barrier")
        t("s_mov_b32 s%d, 0x7f800000" % S_RETRY); t("s_mov_b32 s%d, 0" % S_KC)
        M = [V_NEGM + 4 * u for u in range(4)]
        for u in range(4): t("v_mov_b32 v%d, 0xff800000" % M[u])
        t("L_fb_loop:")
        t("s_add_u32 m0, s%d, 0x%x" % (S_L4, KSL(0))); t("s_add_u32 s%d, s%d, s%d" % (S_SO, S_KVB, S_KC))
        for j in range(4): t("buffer_load_dwordx4 v%d, %s, s%d offen offset:%d lds" % (V_OK + j, sr(SRD_K), S_SO, j * 1024))
        t("s_waitcnt vmcnt(0)"); t("s_barrier")
        for ad in (V_AKX, V_AKY):
            for kt in range(2):
                for s in range(4): t("ds_read_b128 %s, v%d offset:%d" % (ar(A_XF + 4 * s), ad + s, KSL(0) - K_WIN + kt * 4096))
                t("s_waitcnt lgkmcnt(0)")
                for u in range(4):
                    for s in range(4):
                        Dd = V_SY + 4 * u
                        t("%s %s, %s, %s, %s" % (MF, vr(Dd), ar(A_XF + 4 * s), ar(A_Q + 16 * u + 4 * s), "0" if s == 0 else vr(Dd)))
                t("s_nop 7")
                for u in range(4):
                    Dd = V_SY + 4 * u
                    t("v_max3_f32 v%d, v%d, v%d, v%d" % (M[u], M[u], Dd, Dd + 1)); t("v_max3_f32 v%d, v%d, v%d, v%d" % (M[u], M[u], Dd + 2, Dd + 3))
                t("s_nop 1")
        t("s_barrier")
        t("s_add_u32 s%d, s%d, 0x4000" % (S_KC, S_KC)); t("s_cmp_lt_u32 s%d, 0x20000" % S_KC); t("s_cbranch_scc1 L_fb_loop")
        for u in range(4): t("v_mov_b32 v%d, v%d" % (V_SY + u, M[u]))
        save = self.ins; self.ins = self.tail
        self.rowmax_finish([V_SY + u for u in range(4)])
        self.ins = save
        t("s_lshl_b32 s%d, s%d, 8" % (S_BIAS, S_CH)); t("s_sub_u32 s%d, 0x100000, s%d" % (S_BIAS, S_BIAS))
        t("s_mov_b32 s%d, 0x40000000" % S_NEUT); t("s_branch L_restart")

    def build(self):
        a = self
        self.prologue(); self.streamAB(); self.stamp("B1"); self.transBC(); self.phaseC()
        self.fallback()
        if self.c.get("probe"):
            seen = 0; keep = []
            for i in self.ins:
                if i.kind == "mfma": seen += 1
                if seen > self.c["probe"]: break
                keep.append(i)
            self.ins = keep; self.tail = []
            a("s_waitcnt vmcnt(0) lgkmcnt(0)"); a("s_barrier"); self.stamp("X0")
            for i in range(4, 8):
                for kind in "KV":
                    a.add(flat(tile_dma(kind, i, SL(0), 0, 0))); a("s_waitcnt vmcnt(12)")
            self.nAB = self.pv0 = 400
        ex = self.c.get("exp", "")
        if ex:
            seen = 0; keep = []
            for i in self.ins:
                if i.kind == "mfma": seen += 1
                if 0 < seen < self.nAB:
                    if "d" in ex and i.kind == "vm" and i.lds: continue
                    if "b" in ex and i.op == "s_barrier": continue
                    if "v" in ex and i.kind == "pseudo": i.need = (None, i.need[1])
                    if "l" in ex and i.kind == "pseudo": i.need = (i.need[0], False)
                    if "x" in ex and i.op == "v_exp_f32": continue
                if "v" in ex and i.kind == "vm" and i.lds and seen: keep.append(I("s_waitcnt vmcnt(40)"))
                if i.op == "s_cbranch_vccnz" and "fallback" in i.t: continue
                keep.append(i)
            self.ins = keep
        main = insert_waits(self.ins, AGE=self.c.get("age", 8), MINAGE=self.c.get("minage", 6))
        main, n1 = fix_hazards(main, self.c.get("verbose"))
        tail, n2 = fix_hazards(self.tail)
        verify_waits(main)
        est = estimate(main); nb = self.nAB
        sys.stderr.write("issue estimate A(0..335) %d  trans(336..pv0) %d  B %d  P0 %d  C %d; waits %d\n" % (sum(est[:336]), sum(est[336:self.pv0]), sum(est[self.pv0:nb - 1]), sum(est[nb:nb + 111]), sum(est[nb + 112:]), sum(1 for i in main if i.op == "s_waitcnt")))
        sys.stderr.write("hazard pads %d, instructions %d\n" % (n1, len(main) + len(tail)))
        A = Asm()
        for i in main:
            if i.kind == "label": A.raw(i.t)
            else: A(i.t)
        if self.c.get("stamps"):
            A("s_waitcnt vmcnt(0)")
            n = 2 + len(self.c["stamps"].split(","))
            for i in self.stamp_at(n - 1): A(i.t)
            A("s_lshl2_add_u32 s%d, s2, s3" % S_T0); A("s_mul_i32 s%d, s%d, %d" % (S_T0, S_T0, 16 * n)); A("s_add_u32 s%d, s%d, 0x%x" % (S_T0, S_T0, STAMP_OFF))
            A("s_mov_b64 exec, 1"); A("v_mov_b32 v4, s%d" % S_T0); A("v_mov_b32 v3, 0")
            for k in range(n):
                for h in range(2):
                    A("v_mov_b32 v2, s%d" % (STAMP0 + 2 * k + h)); A("global_store_dwordx2 v4, v[2:3], s[18:19] offset:%d" % (8 * (k + h * n))); A("s_nop 1")
            sys.stderr.write("stamps: %d\n" % (2 * n))
        A.label("L_end"); A("s_endpgm")
        for i in tail:
            if i.kind == "label": A.raw(i.t)
            else: A(i.t)
        A.label("L_codeend")
        return A.text()

DEFAULT = dict(
    kvA={5: [("K", 0)], 6: [("V", 0)], 7: [("K", 1), ("V", 1)]},
    kvB={-1: [("K", 2)], 0: [("V", 2), ("K", 3)], 1: [("V", 3), ("K", 4)], 2: [("V", 4), ("K", 5)], 3: [("V", 5), ("K", 6)], 4: [("V", 6), ("K", 7)],
         5: [("V", 7), ("WT", 4)], 6: [("WO", (0, 0)), ("WO", (0, 1)), ("WO", (1, 0)), ("WO", (2, 0))], 7: [("WO", (3, 0)), ("WO", (1, 1)), ("WO", (2, 1)), ("WR", (3, 1))]},
    kvP=[],
    nlin=2, bspace=12, gFA=34, gSA=58, gCA=88, gFB=110, gSB=130, gCB=152, gW2=160, ospace=4, osp0=2, n0=10,
    touch_n=21, map=3, rot='xcd', even=6, wotouch=99,
)
HEADER = open("standalone__gqa_block_cached__near_ridge.s.ref").read().split("; Override")[0]

def generate(fn, **kw):
    cfg = dict(DEFAULT); cfg.update(kw); OLAY[0] = cfg.get("olay", 1)
    body = K(cfg).build()
    ks = [(KN, body, 256, 256, 163840, 512, 256)]
    open(fn, "w").write(wrap(ks, HEADER))

if __name__ == "__main__":
    import ast
    kw = {}
    for x in sys.argv[2:]:
        k, v = x.split("=", 1)
        try: v = ast.literal_eval(v)
        except Exception: pass
        kw[k] = v
    generate(sys.argv[1], **kw)
```
